```python
import torch

def _softmax(x, axis=-1):
    return torch.softmax(x, dim=axis)

def _gelu(x):
    return torch.nn.functional.gelu(x, approximate='tanh')

def _silu(x):
    return torch.nn.functional.silu(x)

def _sigmoid(x):
    return torch.sigmoid(x)

def _layernorm(x, axis=-1, eps=1e-05):
    m = x.mean(dim=axis, keepdim=True)
    v = x.var(dim=axis, keepdim=True, unbiased=False)
    return (x - m) / torch.sqrt(v + eps)

def _scatter_add(tgt, idx, src, axis=0):
    return tgt.clone().index_add_(axis, idx, src)

def _segment_sum(src, seg, n):
    out = torch.zeros((n,) + src.shape[1:], dtype=src.dtype)
    return out.index_add_(0, seg, src)

def _pad(x, pw):
    flat = tuple((v for pair in reversed(pw) for v in pair))
    return torch.nn.functional.pad(x, flat)
kernel_name = 'standalone__varlen_attn_packed__ragged'

def setup_inputs():

    _w = lambda a: (lambda t: t.to(torch.bfloat16) if t.is_floating_point() else t)(torch.as_tensor(a))
    cu = torch.tensor([0, 238, 376, 669, 835, 1320, 1545, 1865, 2058], dtype=torch.int64)
    T, H, D = (int(cu[-1]), 16, 192)
    return {'q': _w((lambda *s: torch.randn(*s, dtype=torch.bfloat16) * 0.8)(T, H, D)), 'k': _w((lambda *s: torch.randn(*s, dtype=torch.bfloat16) * 0.8)(T, H, D)), 'v': _w((lambda *s: torch.randn(*s, dtype=torch.bfloat16) * 0.05)(T, H, D)), 'cu': _w(cu)}

def reference(q, k, v, cu):
    T, H, D = q.shape
    out = torch.zeros_like(q)
    scale = D ** (-0.5)
    outs = []
    for i in range(len(cu) - 1):
        s, e = (int(cu[i]), int(cu[i + 1]))
        qi, ki, vi = (q[s:e].clone(), k[s:e].clone(), v[s:e].clone())
        p = _softmax(torch.einsum('qhd,khd->hqk', qi, ki) * scale, axis=-1)
        outs.append(torch.einsum('hqk,khd->qhd', p, vi))
    return torch.concatenate(outs, axis=0)
```

```python
import math
import struct
import sys

NAME = "standalone__varlen_attn_packed__ragged"
CU = [0, 238, 376, 669, 835, 1320, 1545, 1865, 2058]
T, H, D = 2058, 16, 192
RS = H * D * 2
HB = 12288
BLK = 2 * HB
STEP = 2 * BLK
LDS_TOTAL = 163840
CSCALE = (D ** -0.5) * math.log2(math.e)
THR = 1024.0


def f32(x):
    return struct.unpack("<I", struct.pack("<f", x))[0]


IDLE, EV, OD, FULL = 0, 1, 2, 3
def mode_map(nt):
    if nt in (3, 4):
        m = []
        for w in range(8):
            t = w & 3
            if t >= nt:
                m.append((0, IDLE, w))
            else:
                m.append((t, EV if w < 4 else OD, w ^ 4))
        return m
    if nt == 2:
        return [(0, EV, 1), (0, OD, 0), (1, EV, 3), (1, OD, 2)] + [(0, IDLE, w) for w in range(4, 8)]
    if nt == 5:
        return [(0, FULL, 0), (1, FULL, 1), (2, EV, 6), (3, EV, 7), (4, EV, 5), (4, OD, 4), (2, OD, 2), (3, OD, 3)]
    if nt == 6:
        return [(w, FULL, w) for w in range(4)] + [(4, EV, 5), (4, OD, 4), (5, EV, 7), (5, OD, 6)]
    raise ValueError(nt)


CONFIGS = [
    (4, 0, 4), (4, 4, 4), (4, 8, 4), (4, 12, 4),
    (6, 0, 6), (2, 0, 6), (6, 6, 4), (2, 6, 4),
    (3, 0, 6), (0, 0, 4), (0, 4, 4), (5, 0, 4), (5, 4, 4),
    (1, 0, 5), (7, 0, 4), (7, 4, 3),
]


class Asm:
    def __init__(self):
        self.lines = []
        self.nlabel = 0

    def __call__(self, s):
        self.lines.append("    " + s)

    def label(self, name):
        self.lines.append(name + ":")

    def newlabel(self, base):
        self.nlabel += 1
        return "L_%s_%d" % (base, self.nlabel)

    def comment(self, s):
        self.lines.append("    ; " + s)


def vr(lo, n):
    return "v[%d:%d]" % (lo, lo + n - 1)


def sr(lo, n):
    return "s[%d:%d]" % (lo, lo + n - 1)


def gen():
    a = Asm()
    V_LANE = 0
    V_T = list(range(1, 9))
    V_KA0, V_VA0 = 9, 10
    V_KB = [11, 12, 13, 14]
    V_VB = [15, 16]
    V_DMA = [17, 18, 19]
    V_L, V_M, V_BS = 20, 21, 22
    V_H4 = 23
    POOL = 24
    V_P = 72
    V_C = 80
    V_S = 96
    V_Q = 112
    V_O = 160
    S_Q, S_K, S_V, S_OUT = 4, 6, 8, 12
    SRD_Q, SRD_KV, SRD_O = 16, 20, 24
    S_W, S_HEAD, S_CFG = 28, 29, 30
    S_TMP, S_TMP2, S_TMP3 = 31, 32, 33
    S_WM = 34
    S_TOK0, S_LEN, S_QT, S_TYPE, S_PART = 36, 37, 38, 39, 40
    S_NKB, S_NSTEP, S_BASEOFF = 41, 42, 43
    S_STEP, S_SLOT, S_BLK = 44, 45, 46
    S_LDBLK = 47
    S_LDSLOT = 48
    S_DMAOFF = 49
    S_FIRST = 50
    S_C = 51
    S_THR = 52
    S_UB = 53
    S_NT = 54
    S_TILE = 55
    S_NEGC = 56
    S_RET = 58
    S_SOFF = 60

    a.label(NAME + "_kernel")
    a("s_cmp_ge_u32 s2, 256")
    a("s_cbranch_scc1 L_end")
    a("s_load_dwordx8 s[4:11], s[0:1], 0")
    a("s_load_dwordx2 s[12:13], s[0:1], 32")
    a("v_lshrrev_b32 v1, 6, v0")
    a("v_and_b32 v0, 63, v0")
    a("v_readfirstlane_b32 s%d, v1" % S_W)
    a("s_and_b32 s%d, s2, 7" % S_HEAD)
    a("s_lshr_b32 s%d, s2, 3" % S_CFG)
    a("s_and_b32 s%d, s%d, 1" % (S_TMP, S_CFG))
    a("s_lshl_b32 s%d, s%d, 1" % (S_HEAD, S_HEAD))
    a("s_add_u32 s%d, s%d, s%d" % (S_HEAD, S_HEAD, S_TMP))
    a("s_lshr_b32 s%d, s%d, 1" % (S_CFG, S_CFG))
    def pack_cfg(c):
        seq, t0, nt = c
        return CU[seq] | ((CU[seq + 1] - CU[seq]) << 12) | (t0 << 21) | (nt << 25)

    def pack_map(nt):
        v = 0
        for w, (t, ty, p) in enumerate(mode_map(nt)):
            v |= (t | (ty << 3) | (p << 5)) << (8 * w)
        return v

    a("s_mov_b32 s%d, 0x%x" % (S_TMP, pack_cfg(CONFIGS[0])))
    for i in range(1, 16):
        a("s_cmp_eq_u32 s%d, %d" % (S_CFG, i))
        a("s_cselect_b32 s%d, 0x%x, s%d" % (S_TMP, pack_cfg(CONFIGS[i]), S_TMP))
    a("s_and_b32 s%d, s%d, 0xfff" % (S_TOK0, S_TMP))
    a("s_bfe_u32 s%d, s%d, 0x%x" % (S_LEN, S_TMP, 12 | (9 << 16)))
    a("s_bfe_u32 s%d, s%d, 0x%x" % (S_QT, S_TMP, 21 | (4 << 16)))
    a("s_bfe_u32 s%d, s%d, 0x%x" % (S_NT, S_TMP, 25 | (4 << 16)))
    nts = sorted(set(c[2] for c in CONFIGS))
    m0 = pack_map(nts[0])
    a("s_mov_b32 s%d, 0x%x" % (S_WM, m0 & 0xffffffff))
    a("s_mov_b32 s%d, 0x%x" % (S_WM + 1, m0 >> 32))
    for nt in nts[1:]:
        m = pack_map(nt)
        a("s_cmp_eq_u32 s%d, %d" % (S_NT, nt))
        a("s_cselect_b32 s%d, 0x%x, s%d" % (S_WM, m & 0xffffffff, S_WM))
        a("s_cselect_b32 s%d, 0x%x, s%d" % (S_WM + 1, m >> 32, S_WM + 1))
    a("s_lshl_b32 s%d, s%d, 3" % (S_TMP, S_W))
    a("s_lshr_b64 %s, %s, s%d" % (sr(S_WM, 2), sr(S_WM, 2), S_TMP))
    a("s_and_b32 s%d, s%d, 7" % (S_TILE, S_WM))
    a("s_bfe_u32 s%d, s%d, 0x%x" % (S_TYPE, S_WM, 3 | (2 << 16)))
    a("s_bfe_u32 s%d, s%d, 0x%x" % (S_PART, S_WM, 5 | (3 << 16)))
    a("s_add_u32 s%d, s%d, s%d" % (S_QT, S_QT, S_TILE))
    a("s_add_u32 s%d, s%d, 31" % (S_NKB, S_LEN))
    a("s_lshr_b32 s%d, s%d, 5" % (S_NKB, S_NKB))
    a("s_add_u32 s%d, s%d, 1" % (S_NSTEP, S_NKB))
    a("s_lshr_b32 s%d, s%d, 1" % (S_NSTEP, S_NSTEP))
    a("s_mul_i32 s%d, s%d, %d" % (S_BASEOFF, S_TOK0, RS))
    a("s_mul_i32 s%d, s%d, 384" % (S_TMP, S_HEAD))
    a("s_add_u32 s%d, s%d, s%d" % (S_BASEOFF, S_BASEOFF, S_TMP))
    a("s_add_u32 s%d, s%d, s%d" % (S_TMP, S_TOK0, S_LEN))
    a("s_mul_i32 s%d, s%d, %d" % (SRD_Q + 2, S_TMP, RS))
    a("s_mov_b32 s%d, s%d" % (SRD_KV + 2, SRD_Q + 2))
    a("s_mov_b32 s%d, s%d" % (SRD_O + 2, SRD_Q + 2))
    a("s_mov_b32 s%d, 0x00020000" % (SRD_Q + 3))
    a("s_mov_b32 s%d, 0x00020000" % (SRD_KV + 3))
    a("s_mov_b32 s%d, 0x00020000" % (SRD_O + 3))
    a("s_mov_b32 s%d, 0x%x" % (S_C, f32(CSCALE)))
    a("s_mov_b32 s%d, 0x%x" % (S_NEGC, f32(-CSCALE)))
    a("s_mov_b32 s%d, 0x%x" % (S_THR, f32(THR)))
    a("s_mul_i32 s%d, s%d, 3072" % (S_DMAOFF, S_W))

    def dma_pattern(dst, pos_reg, is_v_mask_sgpr):
        r, p, f = V_T[0], V_T[1], V_T[2]
        a("v_mul_u32_u24 v%d, 2731, v%d" % (r, pos_reg))
        a("v_lshrrev_b32 v%d, 16, v%d" % (r, r))
        a("v_mul_u32_u24 v%d, 24, v%d" % (p, r))
        a("v_sub_u32 v%d, v%d, v%d" % (p, pos_reg, p))
        if is_v_mask_sgpr is None:
            a("v_bfe_u32 v%d, v%d, 1, 3" % (f, r))
        else:
            a("v_bfe_u32 v%d, v%d, 1, 3" % (f, r))
            a("v_bfe_u32 v%d, v%d, 1, 1" % (V_T[3], r))
            a("v_lshlrev_b32 v%d, 2, v%d" % (V_T[3], V_T[3]))
            a("v_cndmask_b32 v%d, v%d, v%d, %s" % (f, f, V_T[3], is_v_mask_sgpr))
        a("v_xor_b32 v%d, v%d, v%d" % (p, p, f))
        a("v_lshlrev_b32 v%d, 4, v%d" % (p, p))
        a("v_mad_u32_u24 v%d, v%d, s%d, v%d" % (dst, r, S_TMP3, p))

    a("s_mov_b32 s%d, %d" % (S_TMP3, RS))
    for j in range(6):
        a("v_add_u32 v%d, %d, v%d" % (V_T[4], 64 * j, V_LANE))
        dma_pattern(POOL + j, V_T[4], None)
    a("s_cmp_ge_u32 s%d, 4" % S_W)
    a("s_cselect_b64 %s, -1, 0" % sr(S_RET, 2))
    a("s_and_b32 s%d, s%d, 3" % (S_TMP, S_W))
    a("s_mul_i32 s%d, s%d, 192" % (S_TMP, S_TMP))
    for i in range(3):
        a("s_add_u32 s%d, s%d, %d" % (S_TMP2, S_TMP, 64 * i))
        a("v_add_u32 v%d, s%d, v%d" % (V_T[4], S_TMP2, V_LANE))
        dma_pattern(V_DMA[i], V_T[4], sr(S_RET, 2))

    a("s_waitcnt lgkmcnt(0)")
    a("s_mov_b32 s%d, s%d" % (SRD_Q, S_Q))
    a("s_mov_b32 s%d, s%d" % (SRD_Q + 1, S_Q + 1))
    a("s_cmp_ge_u32 s%d, 4" % S_W)
    a("s_cselect_b32 s%d, s%d, s%d" % (SRD_KV, S_V, S_K))
    a("s_cselect_b32 s%d, s%d, s%d" % (SRD_KV + 1, S_V + 1, S_K + 1))
    a("s_mov_b32 s%d, s%d" % (SRD_O, S_OUT))
    a("s_mov_b32 s%d, s%d" % (SRD_O + 1, S_OUT + 1))

    a("s_mul_i32 s%d, s%d, %d" % (S_TMP, S_TILE, HB))
    a("s_sub_u32 s%d, %d, s%d" % (S_UB, LDS_TOTAL - HB, S_TMP))
    a("s_mul_i32 s%d, s%d, %d" % (S_SOFF, S_QT, 32 * RS))
    a("s_add_u32 s%d, s%d, s%d" % (S_SOFF, S_SOFF, S_BASEOFF))
    for half in range(2):
        lab = a.newlabel("qskip")
        a("s_bitcmp1_b32 s%d, %d" % (S_TYPE, half))
        a("s_cbranch_scc0 %s" % lab)
        a("s_add_u32 s%d, s%d, %d" % (S_TMP, S_SOFF, half * 16 * RS))
        for j in range(6):
            a("s_add_u32 m0, s%d, %d" % (S_UB, half * 6144 + j * 1024))
            a("s_nop 0")
            a("buffer_load_dwordx4 v%d, %s, s%d offen lds" % (POOL + j, sr(SRD_Q, 4), S_TMP))
        a.label(lab)

    def load_block():
        lab = a.newlabel("ldskip")
        a("s_cmp_ge_u32 s%d, s%d" % (S_LDBLK, S_NKB))
        a("s_cbranch_scc1 %s" % lab)
        a("s_mul_i32 s%d, s%d, %d" % (S_TMP, S_LDBLK, 32 * RS))
        a("s_add_u32 s%d, s%d, s%d" % (S_TMP, S_TMP, S_BASEOFF))
        a("s_add_u32 s%d, s%d, s%d" % (S_TMP2, S_LDSLOT, S_DMAOFF))
        for i in range(3):
            a("s_add_u32 m0, s%d, %d" % (S_TMP2, i * 1024))
            a("s_nop 0")
            a("buffer_load_dwordx4 v%d, %s, s%d offen lds" % (V_DMA[i], sr(SRD_KV, 4), S_TMP))
        a.label(lab)
        a("s_add_u32 s%d, s%d, 1" % (S_LDBLK, S_LDBLK))
        a("s_add_u32 s%d, s%d, %d" % (S_LDSLOT, S_LDSLOT, BLK))
        a("s_cmp_ge_u32 s%d, %d" % (S_LDSLOT, 3 * STEP))
        a("s_cselect_b32 s%d, 0, s%d" % (S_LDSLOT, S_LDSLOT))

    a("s_mov_b32 s%d, 0" % S_LDBLK)
    a("s_mov_b32 s%d, 0" % S_LDSLOT)
    load_block()
    load_block()
    lab_pre1 = a.newlabel("pre1")
    a("s_cmp_gt_u32 s%d, 5" % S_NT)
    a("s_cbranch_scc1 %s" % lab_pre1)
    load_block()
    load_block()
    a.label(lab_pre1)

    r, h, f = V_T[0], V_T[1], V_T[2]
    a("v_and_b32 v%d, 31, v%d" % (r, V_LANE))
    a("v_lshrrev_b32 v%d, 5, v%d" % (h, V_LANE))
    a("v_lshlrev_b32 v%d, 2, v%d" % (V_H4, h))
    a("v_bfe_u32 v%d, v%d, 1, 3" % (f, r))
    a("v_xor_b32 v%d, v%d, v%d" % (f, f, h))
    a("v_lshlrev_b32 v%d, 4, v%d" % (f, f))
    a("v_mul_u32_u24 v%d, 384, v%d" % (V_KA0, r))
    a("v_add_u32 v%d, v%d, v%d" % (V_KA0, V_KA0, f))
    rr, c, dh, b = V_T[3], V_T[4], V_T[5], V_T[6]
    a("v_bfe_u32 v%d, v%d, 2, 2" % (rr, V_LANE))
    a("v_and_b32 v%d, 3, v%d" % (c, V_LANE))
    a("v_bfe_u32 v%d, v%d, 4, 1" % (dh, V_LANE))
    a("v_bfe_u32 v%d, v%d, 3, 1" % (b, V_LANE))
    a("v_add_u32 v%d, v%d, v%d" % (rr, rr, V_H4))
    a("v_mul_u32_u24 v%d, 384, v%d" % (V_VA0, rr))
    a("v_lshl_add_u32 v%d, v%d, 6, v%d" % (V_VA0, b, V_VA0))
    a("v_lshl_add_u32 v%d, v%d, 5, v%d" % (V_VA0, dh, V_VA0))
    a("v_lshl_add_u32 v%d, v%d, 3, v%d" % (V_VA0, c, V_VA0))
    for i in range(96):
        a("v_mov_b32 v%d, 0" % (V_O + i))
    for i in range(16):
        a("v_mov_b32 v%d, 0" % (V_C + i))
    a("v_mov_b32 v%d, 0" % V_L)
    a("v_mov_b32 v%d, 0" % V_M)
    a("s_mov_b32 s%d, 1" % S_FIRST)

    lab_w0, lab_w1 = a.newlabel("w0"), a.newlabel("w1")
    a("s_cmp_gt_u32 s%d, 5" % S_NT)
    a("s_cbranch_scc1 %s" % lab_w0)
    a("s_waitcnt vmcnt(6)")
    a("s_branch %s" % lab_w1)
    a.label(lab_w0)
    a("s_waitcnt vmcnt(0)")
    a.label(lab_w1)
    a("s_barrier")
    a("v_add_u32 v%d, s%d, v%d" % (V_KB[0], S_UB, V_KA0))
    for j in range(1, 4):
        a("v_xor_b32 v%d, %d, v%d" % (V_KB[j], 32 * j, V_KB[0]))
    for ks in range(12):
        a("ds_read_b128 %s, v%d offset:%d" % (vr(V_Q + 4 * ks, 4), V_KB[ks & 3], (ks >> 2) * 128))
    a("s_waitcnt lgkmcnt(0)")
    a("s_barrier")
    lab_pre2 = a.newlabel("pre2")
    a("s_cmp_gt_u32 s%d, 5" % S_NT)
    a("s_cbranch_scc0 %s" % lab_pre2)
    load_block()
    load_block()
    a.label(lab_pre2)
    load_block()
    load_block()

    a("s_mov_b32 s%d, 0" % S_STEP)
    a("s_mov_b32 s%d, 0" % S_SLOT)
    a("s_mov_b32 s%d, 0" % S_BLK)

    a.label("L_blk")
    a("s_cmp_ge_u32 s%d, s%d" % (S_BLK, S_NKB))
    a("s_cbranch_scc1 L_unit_done")
    a("s_and_b32 s%d, s%d, 1" % (S_TMP, S_BLK))
    a("s_bitcmp1_b32 s%d, s%d" % (S_TYPE, S_TMP))
    a("s_cbranch_scc0 L_unit_done")
    a("s_mul_i32 s%d, s%d, %d" % (S_UB, S_TMP, BLK))
    a("s_add_u32 s%d, s%d, s%d" % (S_UB, S_UB, S_SLOT))
    a("v_add_u32 v%d, s%d, v%d" % (V_KB[0], S_UB, V_KA0))
    a("v_add_u32 v%d, s%d, v%d" % (V_VB[0], S_UB, V_VA0))
    for j in range(1, 4):
        a("v_xor_b32 v%d, %d, v%d" % (V_KB[j], 32 * j, V_KB[0]))
    a("v_xor_b32 v%d, 64, v%d" % (V_VB[1], V_VB[0]))
    for ks in range(12):
        a("ds_read_b128 %s, v%d offset:%d" % (vr(POOL + 4 * ks, 4), V_KB[ks & 3], (ks >> 2) * 128))
    a("s_add_u32 s%d, s%d, 1" % (S_TMP, S_BLK))
    a("s_cmp_lg_u32 s%d, s%d" % (S_TMP, S_NKB))
    a("s_cbranch_scc1 L_nomask")
    a("s_lshl_b32 s%d, s%d, 5" % (S_TMP, S_BLK))
    a("s_sub_u32 s%d, s%d, s%d" % (S_TMP, S_LEN, S_TMP))
    a("v_mov_b32 v%d, 0xff800000" % V_T[0])
    for g in range(4):
        for i in range(4):
            a("s_sub_u32 s%d, s%d, %d" % (S_TMP2, S_TMP, 8 * g + i))
            a("v_cmp_gt_i32 vcc, s%d, v%d" % (S_TMP2, V_H4))
            a("s_nop 1")
            a("v_cndmask_b32 v%d, v%d, v%d, vcc" % (V_C + 4 * g + i, V_T[0], V_C + 4 * g + i))
    a("s_nop 1")
    a.label("L_nomask")

    def vfrag(idx):
        s, t = divmod(idx, 6)
        return s, t

    for ks in range(12):
        a("s_waitcnt lgkmcnt(%d)" % min(15, 11 - ks + 2 * ks))
        a("v_mfma_f32_32x32x16_bf16 %s, %s, %s, %s" % (
            vr(V_S, 16), vr(POOL + 4 * ks, 4), vr(V_Q + 4 * ks, 4), vr(V_C if ks == 0 else V_S, 16)))
        s, t = vfrag(ks)
        for u in range(2):
            a("ds_read_b64_tr_b16 %s, v%d offset:%d" % (
                vr(POOL + 4 * ks + 2 * u, 2), V_VB[t & 1], HB + (16 * s + 8 * u) * 384 + (t >> 1) * 128))
    a("s_nop 7")
    a("s_nop 3")
    a("s_cmp_eq_u32 s%d, 0" % S_FIRST)
    a("s_cbranch_scc0 L_maxupd")
    a.label("L_exp")
    for k in range(8):
        t0, t1 = V_T[(2 * k) % 8], V_T[(2 * k + 1) % 8]
        a("v_mul_f32 v%d, s%d, v%d" % (t0, S_C, V_S + 2 * k))
        a("v_mul_f32 v%d, s%d, v%d" % (t1, S_C, V_S + 2 * k + 1))
        a("v_exp_f32 v%d, v%d" % (t0, t0))
        a("v_exp_f32 v%d, v%d" % (t1, t1))
        a("s_nop 0")
        a("v_cvt_pk_bf16_f32 v%d, v%d, v%d" % (V_P + k, t0, t1))
        if k == 0:
            a("v_add_f32 v%d, v%d, v%d" % (V_BS, t0, t1))
        else:
            a("v_add_f32 v%d, v%d, v%d" % (V_BS, V_BS, t0))
            a("v_add_f32 v%d, v%d, v%d" % (V_BS, V_BS, t1))
    a("v_cmp_lt_f32 vcc, s%d, v%d" % (S_THR, V_BS))
    a("s_cbranch_vccnz L_maxupd")
    a("v_add_f32 v%d, v%d, v%d" % (V_L, V_L, V_BS))
    a("s_waitcnt lgkmcnt(0)")
    for idx in range(12):
        s, t = vfrag(idx)
        a("v_mfma_f32_32x32x16_bf16 %s, %s, %s, %s" % (
            vr(V_O + 16 * t, 16), vr(POOL + 4 * idx, 4), vr(V_P + 4 * s, 4), vr(V_O + 16 * t, 16)))
    a.label("L_unit_done")
    a("s_add_u32 s%d, s%d, 1" % (S_BLK, S_BLK))
    a("s_bitcmp1_b32 s%d, 0" % S_BLK)
    a("s_cbranch_scc1 L_blk")
    a("s_add_u32 s%d, s%d, 3" % (S_TMP, S_BLK))
    a("s_cmp_lt_u32 s%d, s%d" % (S_TMP, S_NKB))
    a("s_cbranch_scc1 L_w6")
    a("s_cmp_eq_u32 s%d, s%d" % (S_TMP, S_NKB))
    a("s_cbranch_scc1 L_w3")
    a("s_waitcnt vmcnt(0)")
    a("s_branch L_wd")
    a.label("L_w3")
    a("s_waitcnt vmcnt(3)")
    a("s_branch L_wd")
    a.label("L_w6")
    a("s_waitcnt vmcnt(6)")
    a.label("L_wd")
    a("s_barrier")
    load_block()
    load_block()
    a("s_add_u32 s%d, s%d, %d" % (S_SLOT, S_SLOT, STEP))
    a("s_cmp_ge_u32 s%d, %d" % (S_SLOT, 3 * STEP))
    a("s_cselect_b32 s%d, 0, s%d" % (S_SLOT, S_SLOT))
    a("s_cmp_lt_u32 s%d, s%d" % (S_BLK, S_NKB))
    a("s_cbranch_scc1 L_blk")

    a("s_cmp_eq_u32 s%d, 0" % S_TYPE)
    a("s_cbranch_scc1 L_idle_epi")
    a("s_nop 7")
    a("s_nop 3")
    a("v_mov_b32 v%d, v%d" % (V_T[0], V_L))
    a("s_nop 1")
    a("v_permlane32_swap_b32 v%d, v%d" % (V_T[0], V_L))
    a("s_nop 1")
    a("v_add_f32 v%d, v%d, v%d" % (V_L, V_L, V_T[0]))
    XSZ = 12800
    a("s_mul_i32 s%d, s%d, %d" % (S_TMP, S_W, XSZ))
    a("s_mul_i32 s%d, s%d, %d" % (S_TMP2, S_PART, XSZ))
    a("v_lshlrev_b32 v%d, 4, v%d" % (V_T[1], V_LANE))
    a("v_lshlrev_b32 v%d, 3, v%d" % (V_T[2], V_LANE))
    a("v_add_u32 v%d, s%d, v%d" % (V_T[3], S_TMP, V_T[1]))
    a("v_add_u32 v%d, s%d, v%d" % (V_T[4], S_TMP, V_T[2]))
    a("v_add_u32 v%d, s%d, v%d" % (V_T[5], S_TMP2, V_T[1]))
    a("v_add_u32 v%d, s%d, v%d" % (V_T[6], S_TMP2, V_T[2]))
    a("s_cmp_eq_u32 s%d, %d" % (S_TYPE, FULL))
    a("s_cbranch_scc1 L_x_sent")
    a("ds_write_b64 v%d, %s offset:12288" % (V_T[4], vr(V_L, 2)))
    a("s_cmp_eq_u32 s%d, %d" % (S_TYPE, OD))
    a("s_cbranch_scc1 L_x_od")
    for k in range(12):
        a("ds_write_b128 v%d, %s offset:%d" % (V_T[3], vr(V_O + 48 + 4 * k, 4), k * 1024))
    a("s_branch L_x_sent")
    a.label("L_x_od")
    for k in range(12):
        a("ds_write_b128 v%d, %s offset:%d" % (V_T[3], vr(V_O + 4 * k, 4), k * 1024))
    a.label("L_x_sent")
    a("s_waitcnt lgkmcnt(0)")
    a("s_barrier")
    a("s_cmp_eq_u32 s%d, %d" % (S_TYPE, FULL))
    a("s_cbranch_scc1 L_full_norm")
    a("ds_read_b64 %s, v%d offset:12288" % (vr(V_P, 2), V_T[6]))
    for k in range(12):
        a("ds_read_b128 %s, v%d offset:%d" % (vr(POOL + 4 * k, 4), V_T[5], k * 1024))
    a("s_waitcnt lgkmcnt(12)")
    l2, m2, mn, fa, fb = V_P, V_P + 1, V_P + 2, V_P + 3, V_P + 4
    a("v_max_f32 v%d, v%d, v%d" % (mn, V_M, m2))
    a("v_sub_f32 v%d, v%d, v%d" % (fa, V_M, mn))
    a("v_sub_f32 v%d, v%d, v%d" % (fb, m2, mn))
    a("v_mul_f32 v%d, s%d, v%d" % (fa, S_C, fa))
    a("v_mul_f32 v%d, s%d, v%d" % (fb, S_C, fb))
    a("v_exp_f32 v%d, v%d" % (fa, fa))
    a("v_exp_f32 v%d, v%d" % (fb, fb))
    a("s_nop 0")
    a("v_mul_f32 v%d, v%d, v%d" % (V_L, V_L, fa))
    a("v_fma_f32 v%d, v%d, v%d, v%d" % (V_L, l2, fb, V_L))
    a("v_rcp_f32 v%d, v%d" % (V_L, V_L))
    a("s_nop 0")
    a("v_mul_f32 v%d, v%d, v%d" % (fa, fa, V_L))
    a("v_mul_f32 v%d, v%d, v%d" % (fb, fb, V_L))
    a("s_waitcnt lgkmcnt(0)")
    a("s_cmp_eq_u32 s%d, %d" % (S_TYPE, OD))
    a("s_cbranch_scc1 L_m_od")
    for i in range(48):
        a("v_mul_f32 v%d, v%d, v%d" % (V_O + i, V_O + i, fa))
        a("v_fmac_f32 v%d, v%d, v%d" % (V_O + i, POOL + i, fb))
    a("s_branch L_store")
    a.label("L_m_od")
    for i in range(48):
        a("v_mul_f32 v%d, v%d, v%d" % (V_O + 48 + i, V_O + 48 + i, fa))
        a("v_fmac_f32 v%d, v%d, v%d" % (V_O + 48 + i, POOL + i, fb))
    a("s_branch L_store")
    a.label("L_full_norm")
    a("v_rcp_f32 v%d, v%d" % (V_L, V_L))
    a("s_nop 0")
    for i in range(96):
        a("v_mul_f32 v%d, v%d, v%d" % (V_O + i, V_O + i, V_L))
    a.label("L_store")
    a("v_and_b32 v%d, 31, v%d" % (V_T[0], V_LANE))
    a("s_mov_b32 s%d, %d" % (S_TMP3, RS))
    a("v_lshlrev_b32 v%d, 2, v%d" % (V_T[1], V_H4))
    a("v_mad_u32_u24 v%d, v%d, s%d, v%d" % (V_T[0], V_T[0], S_TMP3, V_T[1]))
    a("v_add_u32 v%d, s%d, v%d" % (V_T[0], S_SOFF, V_T[0]))
    for half in range(2):
        lab = a.newlabel("stskip")
        a("s_bitcmp1_b32 s%d, %d" % (S_TYPE, half))
        a("s_cbranch_scc0 %s" % lab)
        for t in range(3 * half, 3 * half + 3):
            for gp in range(2):
                o = V_O + 16 * t + 8 * gp
                d = POOL + 4 * ((2 * t + gp) % 12)
                a("v_cvt_pk_bf16_f32 v%d, v%d, v%d" % (d, o, o + 1))
                a("v_cvt_pk_bf16_f32 v%d, v%d, v%d" % (d + 1, o + 2, o + 3))
                a("v_cvt_pk_bf16_f32 v%d, v%d, v%d" % (d + 2, o + 4, o + 5))
                a("v_cvt_pk_bf16_f32 v%d, v%d, v%d" % (d + 3, o + 6, o + 7))
                a("s_nop 1")
                a("v_permlane32_swap_b32 v%d, v%d" % (d, d + 2))
                a("v_permlane32_swap_b32 v%d, v%d" % (d + 1, d + 3))
                a("s_nop 1")
                a("buffer_store_dwordx4 %s, v%d, %s, 0 offen offset:%d" % (
                    vr(d, 4), V_T[0], sr(SRD_O, 4), 64 * t + 32 * gp))
        a.label(lab)
    a("s_endpgm")
    a.label("L_idle_epi")
    a("s_barrier")
    a.label("L_end")
    a("s_endpgm")

    a.label("L_maxupd")
    mx, t2 = V_T[0], V_T[1]
    a("v_max3_f32 v%d, v%d, v%d, v%d" % (mx, V_S, V_S + 1, V_S + 2))
    for i in range(3, 15, 2):
        a("v_max3_f32 v%d, v%d, v%d, v%d" % (mx, mx, V_S + i, V_S + i + 1))
    a("v_max_f32 v%d, v%d, v%d" % (mx, mx, V_S + 15))
    a("v_mov_b32 v%d, v%d" % (t2, mx))
    a("s_nop 1")
    a("v_permlane32_swap_b32 v%d, v%d" % (t2, mx))
    a("s_nop 1")
    a("v_max_f32 v%d, v%d, v%d" % (mx, mx, t2))
    a("s_cmp_eq_u32 s%d, 0" % S_FIRST)
    a("s_cbranch_scc0 L_mu_first")
    a("v_max_f32 v%d, 0, v%d" % (mx, mx))
    a("v_mul_f32 v%d, s%d, v%d" % (t2, S_NEGC, mx))
    a("v_exp_f32 v%d, v%d" % (t2, t2))
    a("s_nop 0")
    a("v_mul_f32 v%d, v%d, v%d" % (V_L, V_L, t2))
    for i in range(96):
        a("v_mul_f32 v%d, v%d, v%d" % (V_O + i, V_O + i, t2))
    a.label("L_mu_first")
    a("s_mov_b32 s%d, 0" % S_FIRST)
    a("v_add_f32 v%d, v%d, v%d" % (V_M, V_M, mx))
    for i in range(16):
        a("v_sub_f32 v%d, v%d, v%d" % (V_S + i, V_S + i, mx))
        a("v_sub_f32 v%d, v%d, v%d" % (V_C + i, V_C + i, mx))
    a("s_branch L_exp")

    hdr = open("cdna_kernels/%s.s.ref" % NAME).read().split("\n")
    out = []
    for ln in hdr:
        if ln.startswith("; @launch"):
            out.append("; @launch grid=(256,1,1) block=(512,1,1) lds=%d" % LDS_TOTAL)
        elif ln.startswith(";"):
            out.append(ln)
        else:
            break
    out += [
        '.amdgcn_target "amdgcn-amd-amdhsa--gfx950"',
        ".text",
        ".globl %s_kernel" % NAME,
        ".p2align 8",
        ".type %s_kernel,@function" % NAME,
    ]
    out += a.lines
    out += [
        '.section .rodata,"a"',
        ".p2align 6",
        ".amdhsa_kernel %s_kernel" % NAME,
        "  .amdhsa_next_free_vgpr 256",
        "  .amdhsa_next_free_sgpr 64",
        "  .amdhsa_accum_offset 256",
        "  .amdhsa_group_segment_fixed_size 0",
        "  .amdhsa_kernarg_size 56",
        "  .amdhsa_user_sgpr_count 2",
        "  .amdhsa_user_sgpr_kernarg_segment_ptr 1",
        "  .amdhsa_system_sgpr_workgroup_id_x 1",
        ".end_amdhsa_kernel",
        "",
    ]
    return "\n".join(out)


if __name__ == "__main__":
    dst = sys.argv[1] if len(sys.argv) > 1 else "cdna_kernels/%s.s" % NAME
    open(dst, "w").write(gen())
    print("wrote", dst)
```

```python
import math
import struct
import sys

NAME = "standalone__varlen_attn_packed__ragged"
CU = [0, 238, 376, 669, 835, 1320, 1545, 1865, 2058]
T, H, D = 2058, 16, 192
RS = H * D * 2
HB = 12288
BLK = 2 * HB
NSLOT = 6
LDS_TOTAL = 163840
CSCALE = (D ** -0.5) * math.log2(math.e)
THR = 1024.0


def f32(x):
    return struct.unpack("<I", struct.pack("<f", x))[0]


RING = NSLOT * BLK
NKB = [(CU[i + 1] - CU[i] + 31) // 32 for i in range(8)]

DEFAULT_PLAN = [(4, [4, 4, 4, 4], 0, 2, 0), (7, [7], 0, 2, 0), (3, [6], 1, 3, 0),
                (6, [4, 4, 2], 1, 2, 0), (2, [4, 4, 2], 1, 2, 0), (1, [5], 1, 3, 0), (0, [4, 4], 1, 2, 0),
                (5, [4, 4], 1, 2, 0)]


def make_wgs(plan):
    wgs = []
    for seq, parts, win, npre, rot in plan:
        nf = NKB[seq] - 1
        t0 = 0
        assert sum(parts) == NKB[seq]
        for r, nt in enumerate(parts):
            rr = ((r * nf) // len(parts)) if rot else 0
            if nt == 2:
                wgs.append(dict(seq=seq, t0=t0, nt=4, dual=True, hb=0, rot=rr, win=win, npre=min(npre, 1)))
            else:
                for hb in range(2):
                    wgs.append(dict(seq=seq, t0=t0, nt=nt, dual=False, hb=hb, rot=rr, win=win,
                                    npre=min(npre, 5 - (nt - 1) // 2)))
            t0 += nt
    assert len(wgs) == 32, len(wgs)
    return wgs


def prefetch_list(spec):
    items = []
    for ten, seq, b0, b1 in spec:
        for b in range(b0, b1 + 1):
            for rg in range(4):
                row = CU[seq] + 32 * b + 8 * rg
                if row < CU[seq + 1]:
                    items.append((ten, row))
    return items


def default_pf():
    spec = []
    for b in range(0, 6):
        spec += [("K", 4, b + 1, b + 1), ("V", 4, b, b)]
        if b < 3:
            spec += [("K", 7, b + 1, b + 1), ("V", 7, b, b)]
    return spec


def wave_desc(wg, w, pf):
    seq, nt, dual = wg["seq"], wg["nt"], wg["dual"]
    s0, s1 = CU[seq], CU[seq + 1]
    nkb = NKB[seq]
    nval = (s1 - s0) - 32 * (nkb - 1)
    step = 2 * BLK if dual else BLK
    ns = RING // step
    compute = w < nt
    if dual:
        hb = (w >> 1) & 1
        tile = wg["t0"] + (w & 1)
        so = hb * BLK
        qlds = [12 * HB, 9 * HB, 11 * HB, 7 * HB][w & 3]
        if w >= 4:
            isk, nrg, rg0 = 1 - (w & 1), 4, 0
        else:
            isk, nrg, rg0 = 0, 0, 0
    else:
        hb = wg["hb"]
        tile = wg["t0"] + w
        so = 0
        qlds = (12 - w - (1 if w >= 2 else 0)) * HB
        if nt > 4:
            isk, nrg, rg0 = (1 if w < 4 else 0), 1, w & 3
        elif w >= 4:
            isk, nrg, rg0 = (1 if w < 6 else 0), 2, 2 * (w & 1)
        else:
            isk, nrg, rg0 = 0, 0, 0
    role = (3 if nrg else 2) if compute else (1 if nrg else 0)
    d0 = role | (isk << 2) | (nrg << 3) | ((rg0 & 1) << 6) | (wg["win"] << 8) | (nkb << 10) | (nval << 16) | \
        (wg["rot"] << 22) | (len(pf) << 26)
    k0 = RING - step + so
    ldst0 = (k0 if isk else so + HB) + rg0 * 1024
    d = [d0, s1 * RS, (s0 + 32 * tile) * RS + hb * 384, qlds, (s0 + 8 * rg0) * RS + hb * 384, ldst0, step,
         wg["npre"] + isk, ns - 1 + isk, so, k0, step - so + w * HB]
    for ten, row in pf:
        d.append(row * RS | ((1 << 31) if ten == "V" else 0))
    d += [0] * (16 - len(d))
    return d


def make_table(plan, pfspec, npf):
    wgs = make_wgs(plan)
    items = prefetch_list(pfspec)
    slots = [(j, w) for w in range(8) for j, wg in enumerate(wgs) if wg["win"] > 0 and w < wg["nt"]]
    assign = {}
    for k, it in enumerate(items):
        key = slots[k % len(slots)]
        if len(assign.setdefault(key, [])) < npf:
            assign[key].append(it)
    tab = []
    for j, wg in enumerate(wgs):
        for w in range(8):
            tab.append(wave_desc(wg, w, assign.get((j, w), [])))
    return wgs, tab


class Asm:
    def __init__(self):
        self.lines = []
        self.nlabel = 0

    def __call__(self, s):
        self.lines.append("    " + s)

    def label(self, name):
        self.lines.append(name + ":")

    def newlabel(self, base):
        self.nlabel += 1
        return "L_%s_%d" % (base, self.nlabel)


def vr(lo, n):
    return "v[%d:%d]" % (lo, lo + n - 1)


def sr(lo, n):
    return "s[%d:%d]" % (lo, lo + n - 1)


class Item:
    def __init__(self, lines, cost, early, late, kind, writes=None, half=None):
        self.lines = lines if isinstance(lines, list) else [lines]
        self.cost, self.early, self.late, self.kind = cost, early, late, kind
        self.writes = writes
        self.half = half
        self.gap = None


def gen(stamps=False, qf="nt", kvf="nt", stf="", plan=None, BG=14, rot=False, abl="", SM0=14, SM1=35, RAMP=1, NIMM=1, pfspec=None, NPF=2, PFWAIT=1, RAMPD=2):
    a = Asm()
    WGS, TABLE = make_table(plan or DEFAULT_PLAN, default_pf() if pfspec is None else pfspec, NPF)
    NST = 8
    S_ST = 64

    V_LANE = 0
    V_T = list(range(1, 9))
    V_KA0, V_VA0 = 9, 10
    V_KB = [11, 12, 13, 14]
    V_VB = [15, 16]
    V_DE, V_DO = 17, 18
    V_L, V_M, V_BS, V_NMC = 20, 21, 22, 23
    POOL = 24
    V_P = 72
    V_S = [80, 96]
    V_Q = 112
    V_O = 160
    S_Q, S_K, S_V, S_OUT = 4, 6, 8, 12
    S_WIN, S_XB = 14, 15
    SRD_Q, SRD_KV, SRD_O = 16, 20, 24
    S_W = 28
    S_TMP, S_TMP2, S_TMP3, S_LIM = 29, 30, 31, 91
    S_CF = 32
    S_FL, S_NREC, S_QOFF, S_QLDS, S_GOFF, S_LDST, S_STEP, S_NPRE, S_DEPTH, S_SLOT, S_K0, S_SCR = range(32, 44)
    S_PF = 44
    S_NKB, S_NF, S_NVAL, S_J = 48, 49, 50, 51
    S_LN, S_LB, S_ISK, S_NP, S_REM, S_NEED = 52, 53, 54, 55, 62, 63
    S_C, S_THR = 56, 57
    S_RET = 58
    S_RET2 = 60
    S_PC = 92
    WINS = [0, 4, 2, 1]

    def stamp(i, real=False):
        if stamps:
            a(("s_memrealtime %s" if real else "s_memtime %s") % sr(S_ST + 2 * i, 2))
            a("s_waitcnt lgkmcnt(0)")

    def stamp_flush(iters=False):
        if not stamps:
            return
        a("s_waitcnt vmcnt(0)")
        stamp(1, True)
        stamp(7)
        a("s_load_dwordx2 s[80:81], s[0:1], 48")
        a("s_waitcnt lgkmcnt(0)")
        a("s_mov_b32 s84, s80")
        a("s_mov_b32 s85, s81")
        a("s_mov_b32 s86, 0x100000")
        a("s_mov_b32 s87, 0x00020000")
        a("s_lshl_b32 s82, s2, 3")
        a("s_add_u32 s82, s82, s%d" % S_W)
        a("s_mul_i32 s83, s82, %d" % (NST * 8))
        a("v_mov_b32 v1, s83")
        a("s_mov_b64 exec, 1")
        for i in range(NST):
            a("v_mov_b32 v2, s%d" % (S_ST + 2 * i))
            a("v_mov_b32 v3, s%d" % (S_ST + 2 * i + 1))
            a("buffer_store_dwordx2 v[2:3], v1, s[84:87], 0 offen offset:%d" % (8 * i))
            a("s_nop 1")
        if iters:
            a("s_mov_b64 exec, -1")
            a("s_lshl_b32 s82, s82, 8")
            a("s_add_u32 s82, s82, 0x80000")
            a("v_lshlrev_b32 v1, 2, v0")
            a("v_add_u32 v1, s82, v1")
            a("buffer_store_dword v90, v1, s[84:87], 0 offen")

    a.label(NAME + "_kernel")
    a("s_cmp_ge_u32 s2, 256")
    a("s_cbranch_scc1 L_end")
    stamp(0, True)
    stamp(2)
    a("s_load_dwordx8 s[4:11], s[0:1], 0")
    a("s_load_dwordx2 s[12:13], s[0:1], 32")
    a("v_lshrrev_b32 v1, 6, v0")
    a("s_getpc_b64 %s" % sr(S_PC, 2))
    a.label("L_pc")
    a("v_readfirstlane_b32 s%d, v1" % S_W)
    a("s_and_b32 s%d, s2, 0xf8" % S_TMP)
    a("s_add_u32 s%d, s%d, L_table-L_pc" % (S_PC, S_PC))
    a("s_addc_u32 s%d, s%d, 0" % (S_PC + 1, S_PC + 1))
    a("s_add_u32 s%d, s%d, s%d" % (S_TMP, S_TMP, S_W))
    a("s_lshl_b32 s%d, s%d, 6" % (S_TMP, S_TMP))
    a("s_load_dwordx16 %s, %s, s%d" % (sr(S_CF, 16), sr(S_PC, 2), S_TMP))
    a("v_and_b32 v0, 63, v0")
    a("s_and_b32 s%d, s2, 7" % S_XB)
    a("s_mul_i32 s%d, s%d, 768" % (S_XB, S_XB))
    a("v_lshrrev_b32 v1, 3, v0")
    a("v_and_b32 v2, 7, v0")
    a("v_bfe_u32 v3, v0, 4, 2")
    a("v_bfe_u32 v4, v0, 4, 1")
    a("v_mul_u32_u24 v1, %d, v1" % RS)
    a("v_xor_b32 v3, v2, v3")
    a("v_lshlrev_b32 v4, 2, v4")
    a("v_xor_b32 v4, v2, v4")
    a("v_min_u32 v2, 5, v2")
    a("v_lshl_add_u32 v5, v3, 4, v1")
    a("v_lshl_add_u32 v7, v4, 4, v1")
    a("v_xor_b32 v6, 64, v5")
    a("v_lshl_add_u32 v8, v2, 7, v1")
    a("s_mov_b32 s%d, 0x00020000" % (SRD_Q + 3))
    a("s_mov_b32 s%d, 0x00020000" % (SRD_KV + 3))
    a("s_mov_b32 s%d, 0x00020000" % (SRD_O + 3))
    a("s_mov_b32 s%d, %d" % (SRD_KV + 2, T * RS))
    a("s_mov_b32 s%d, 0x%x" % (S_C, f32(CSCALE)))
    a("s_mov_b32 s%d, 0x%x" % (S_THR, f32(THR)))
    a("s_mov_b32 s%d, 0" % S_LN)
    a("s_waitcnt lgkmcnt(0)")
    stamp(3)
    a("s_mov_b32 s%d, s%d" % (SRD_Q, S_Q))
    a("s_mov_b32 s%d, s%d" % (SRD_Q + 1, S_Q + 1))
    a("s_mov_b32 s%d, s%d" % (SRD_Q + 2, S_NREC))
    a("s_add_u32 s%d, s%d, s%d" % (S_QOFF, S_QOFF, S_XB))
    a("s_bfe_u32 s%d, s%d, 0x20008" % (S_WIN, S_FL))
    a("s_bitcmp1_b32 s%d, 1" % S_FL)
    a("s_cbranch_scc0 L_noq")
    a("s_cmp_lg_u32 s%d, 0" % S_WIN)
    a("s_cbranch_scc1 L_qthr")

    def q_loads(win):
        for rg in range(4):
            a("s_add_u32 s%d, s%d, %d" % (S_TMP, S_QOFF, rg * 8 * RS))
            for lc in range(3):
                a("s_add_u32 m0, s%d, %d" % (S_QLDS, lc * 4096 + rg * 1024 - lc * 128))
                if win and 3 * rg + lc >= win:
                    a("s_waitcnt vmcnt(%d)" % (win - 1))
                else:
                    a("s_nop 0")
                a("buffer_load_dwordx4 v%d, %s, s%d offen offset:%d %s lds" % (5 + (rg & 1), sr(SRD_Q, 4), S_TMP, lc * 128, qf))
    q_loads(0)
    a("s_branch L_noq")
    a.label("L_qthr")
    a("s_bfe_u32 s%d, s%d, 0x3001a" % (S_TMP3, S_FL))
    for i in range(NPF):
        a("s_cmp_le_u32 s%d, %d" % (S_TMP3, i))
        a("s_cbranch_scc1 L_pfdone")
        a("s_bitcmp1_b32 s%d, 31" % (S_PF + i))
        a("s_cselect_b32 s%d, s%d, s%d" % (SRD_KV, S_V, S_K))
        a("s_cselect_b32 s%d, s%d, s%d" % (SRD_KV + 1, S_V + 1, S_K + 1))
        a("s_and_b32 s%d, s%d, 0xffffff" % (S_TMP, S_PF + i))
        a("s_add_u32 s%d, s%d, s%d" % (S_TMP, S_TMP, S_XB))
        a("buffer_load_dword v19, v8, %s, s%d offen %s" % (sr(SRD_KV, 4), S_TMP, kvf))
    a.label("L_pfdone")
    if PFWAIT:
        a("s_waitcnt vmcnt(0)")
    for wc in range(2, 4):
        a("s_cmp_eq_u32 s%d, %d" % (S_WIN, wc))
        a("s_cbranch_scc1 L_q%d" % wc)
    for wc in range(1, 4):
        a.label("L_q%d" % wc)
        q_loads(WINS[wc])
        if wc < 3:
            a("s_branch L_noq")
    a.label("L_noq")
    a("s_bfe_u32 s%d, s%d, 0x6000a" % (S_NKB, S_FL))
    a("s_bfe_u32 s%d, s%d, 0x60010" % (S_NVAL, S_FL))
    a("s_bfe_u32 s%d, s%d, 0x40016" % (S_LB, S_FL))
    a("s_bfe_u32 s%d, s%d, 0x10002" % (S_ISK, S_FL))
    a("s_bfe_u32 s%d, s%d, 0x30003" % (S_NP, S_FL))
    a("s_mul_i32 s%d, s%d, 3" % (S_NP, S_NP))
    a("s_sub_u32 s%d, s%d, 1" % (S_NF, S_NKB))
    a("s_mov_b32 s%d, s%d" % (SRD_KV + 2, S_NREC))
    a("s_mov_b32 s%d, s%d" % (SRD_O + 2, S_NREC))
    a("s_mov_b32 s%d, s%d" % (SRD_O, S_OUT))
    a("s_mov_b32 s%d, s%d" % (SRD_O + 1, S_OUT + 1))
    a("s_add_u32 s%d, s%d, s%d" % (S_GOFF, S_GOFF, S_XB))
    a("s_bitcmp1_b32 s%d, 6" % S_FL)
    a("s_cselect_b64 vcc, -1, 0")
    a("v_cndmask_b32 v%d, v5, v6, vcc" % V_DE)
    a("v_mov_b32 v%d, v6" % V_DO)
    a("s_cmp_eq_u32 s%d, 0" % S_ISK)
    a("s_cselect_b64 vcc, -1, 0")
    a("s_cselect_b32 s%d, s%d, s%d" % (SRD_KV, S_V, S_K))
    a("s_cselect_b32 s%d, s%d, s%d" % (SRD_KV + 1, S_V + 1, S_K + 1))
    a("v_cndmask_b32 v%d, v%d, v7, vcc" % (V_DE, V_DE))
    a("v_cndmask_b32 v%d, v%d, v7, vcc" % (V_DO, V_DO))
    a("s_mov_b32 s%d, s%d" % (S_NEED, S_ISK))

    def load_body(np_static, win=0, first=False):
        nop = ("s_waitcnt vmcnt(%d)" % (win - 1)) if win else "s_nop 0"
        a("s_cmp_eq_u32 s%d, s%d" % (S_LN, S_NF))
        a("s_cselect_b32 s%d, s%d, s%d" % (S_TMP, S_NF, S_LB))
        a("s_mul_i32 s%d, s%d, %d" % (S_TMP, S_TMP, 32 * RS))
        a("s_add_u32 s%d, s%d, s%d" % (S_TMP, S_TMP, S_GOFF))
        labd = a.newlabel("ldd")
        for rg in range(1 if np_static else 4):
            if rg:
                if rg != 3:
                    a("s_cmp_eq_u32 s%d, %d" % (S_NP, 3 * rg))
                    a("s_cbranch_scc1 %s" % labd)
                a("s_add_u32 s%d, s%d, %d" % (S_TMP, S_TMP, 8 * RS))
            for lc in range(3):
                a("s_add_u32 m0, s%d, %d" % (S_LDST, rg * 1024 + lc * 4096 - lc * 128))
                a(nop)
                a("buffer_load_dwordx4 v%d, %s, s%d offen offset:%d %s lds" % (
                    V_DO if rg & 1 else V_DE, sr(SRD_KV, 4), S_TMP, lc * 128, kvf))
                if first and rg == 0 and lc == 0:
                    lab = a.newlabel("fv")
                    a("s_cmp_lg_u32 s%d, 0" % S_ISK)
                    a("s_cbranch_scc1 %s" % lab)
                    a("s_waitcnt vmcnt(0)")
                    a.label(lab)
        a.label(labd)
        if first:
            lab = a.newlabel("fk")
            a("s_cmp_eq_u32 s%d, 0" % S_ISK)
            a("s_cbranch_scc1 %s" % lab)
            a("s_waitcnt vmcnt(2)")
            a.label(lab)
        a("s_add_u32 s%d, s%d, 1" % (S_LN, S_LN))
        a("s_add_u32 s%d, s%d, 1" % (S_LB, S_LB))
        a("s_cmp_ge_u32 s%d, s%d" % (S_LB, S_NF))
        a("s_cselect_b32 s%d, 0, s%d" % (S_LB, S_LB))
        a("s_add_u32 s%d, s%d, s%d" % (S_LDST, S_LDST, S_STEP))
        a("s_sub_u32 s%d, s%d, %d" % (S_TMP2, S_LDST, RING))
        a("s_cmp_ge_u32 s%d, %d" % (S_LDST, RING))
        a("s_cselect_b32 s%d, s%d, s%d" % (S_LDST, S_TMP2, S_LDST))

    def load_upto(limit_sgpr, np_static, win=0):
        top, done = a.newlabel("lu"), a.newlabel("lud")
        a("s_min_u32 s%d, s%d, s%d" % (limit_sgpr, limit_sgpr, S_NKB))
        a("s_cmp_ge_u32 s%d, s%d" % (S_LN, limit_sgpr))
        a("s_cbranch_scc1 %s" % done)
        a.label(top)
        load_body(np_static, win)
        a("s_cmp_lt_u32 s%d, s%d" % (S_LN, limit_sgpr))
        a("s_cbranch_scc1 %s" % top)
        a.label(done)

    def pre_loads(np_static):
        labs = [a.newlabel("pl") for _ in range(4)]
        done = a.newlabel("pld")
        for wc in range(1, 4):
            a("s_cmp_eq_u32 s%d, %d" % (S_WIN, wc))
            a("s_cbranch_scc1 %s" % labs[wc])
        if np_static is None:
            load_body(None, 0, True)
        load_upto(S_NPRE, np_static)
        a("s_branch %s" % done)
        for wc in range(1, 4):
            a.label(labs[wc])
            load_upto(S_NPRE, np_static, WINS[wc])
            if wc < 3:
                a("s_branch %s" % done)
        a.label(done)

    def wait_cascade(np_static):
        done = a.newlabel("wc")
        a("s_min_u32 s%d, s%d, s%d" % (S_REM, S_NEED, S_LN))
        a("s_sub_u32 s%d, s%d, s%d" % (S_REM, S_LN, S_REM))
        if np_static is None:
            a("s_mul_i32 s%d, s%d, s%d" % (S_REM, S_REM, S_NP))
            vals = sorted(set([3 * r for r in range(6)] + [6 * r for r in range(6)]), reverse=True)
            cmpv = vals
        else:
            vals = [np_static * r for r in range(5, -1, -1)]
            cmpv = list(range(5, -1, -1))
        for v, c in zip(vals[:-1], cmpv[:-1]):
            a("s_waitcnt vmcnt(%d)" % v)
            a("s_cmp_ge_u32 s%d, %d" % (S_REM, c))
            a("s_cbranch_scc1 %s" % done)
        a("s_waitcnt vmcnt(0)")
        a.label(done)

    a("s_bitcmp1_b32 s%d, 1" % S_FL)
    a("s_cbranch_scc1 L_compute")

    a("s_cmp_eq_u32 s%d, 0" % S_NP)
    a("s_cbranch_scc1 L_idle")
    pre_loads(None)
    wait_cascade(None)
    a("s_barrier")
    stamp(4)
    a("s_mov_b32 s%d, s%d" % (S_TMP3, S_DEPTH))
    a("s_mov_b32 s%d, 0" % S_J)
    if stamps:
        a("v_mov_b32 v90, 0")
    a.label("L_ld_loop")
    a("s_add_u32 s%d, s%d, %d" % (S_LIM, S_LN, RAMP))
    a("s_min_u32 s%d, s%d, s%d" % (S_LIM, S_LIM, S_TMP3))
    load_upto(S_LIM, None)
    a("s_add_u32 s%d, s%d, 1" % (S_NEED, S_NEED))
    wait_cascade(None)
    if stamps:
        a("s_memtime s[88:89]")
        a("s_waitcnt lgkmcnt(0)")
        a("s_add_u32 m0, s%d, 32" % S_J)
        a("s_nop 0")
        a("v_writelane_b32 v90, s88, m0")
    a("s_barrier")
    if stamps:
        a("s_memtime s[88:89]")
        a("s_waitcnt lgkmcnt(0)")
        a("s_mov_b32 m0, s%d" % S_J)
        a("s_nop 0")
        a("v_writelane_b32 v90, s88, m0")
    a("s_add_u32 s%d, s%d, 1" % (S_TMP3, S_TMP3))
    a("s_add_u32 s%d, s%d, 1" % (S_J, S_J))
    a("s_cmp_lt_u32 s%d, s%d" % (S_J, S_NKB))
    a("s_cbranch_scc1 L_ld_loop")
    stamp(5)
    stamp(6)
    stamp_flush(True)
    a("s_endpgm")
    a.label("L_idle")
    a("s_add_u32 s%d, s%d, 1" % (S_J, S_NKB))
    a.label("L_idle_loop")
    a("s_barrier")
    a("s_sub_u32 s%d, s%d, 1" % (S_J, S_J))
    a("s_cmp_lg_u32 s%d, 0" % S_J)
    a("s_cbranch_scc1 L_idle_loop")
    a.label("L_end")
    a("s_endpgm")

    a.label("L_compute")
    lab_nl = a.newlabel("nl")
    a("s_cmp_eq_u32 s%d, 0" % S_NP)
    a("s_cbranch_scc1 %s" % lab_nl)
    pre_loads(3)
    a.label(lab_nl)
    r, h, f, h4 = V_T[0], V_T[1], V_T[2], V_T[7]
    a("v_and_b32 v%d, 31, v%d" % (r, V_LANE))
    a("v_lshrrev_b32 v%d, 5, v%d" % (h, V_LANE))
    a("v_lshlrev_b32 v%d, 2, v%d" % (h4, h))
    a("v_bfe_u32 v%d, v%d, 1, 3" % (f, r))
    a("v_xor_b32 v%d, v%d, v%d" % (f, f, h))
    a("v_lshlrev_b32 v%d, 4, v%d" % (f, f))
    a("v_lshl_add_u32 v%d, v%d, 7, v%d" % (V_KA0, r, f))
    rr, c, dh, b = V_T[3], V_T[4], V_T[5], V_T[6]
    a("v_bfe_u32 v%d, v%d, 2, 2" % (rr, V_LANE))
    a("v_and_b32 v%d, 3, v%d" % (c, V_LANE))
    a("v_bfe_u32 v%d, v%d, 4, 1" % (dh, V_LANE))
    a("v_bfe_u32 v%d, v%d, 3, 1" % (b, V_LANE))
    a("v_add_u32 v%d, v%d, v%d" % (rr, rr, h4))
    a("v_lshlrev_b32 v%d, 7, v%d" % (V_VA0, rr))
    a("v_lshl_add_u32 v%d, v%d, 6, v%d" % (V_VA0, b, V_VA0))
    a("v_lshl_add_u32 v%d, v%d, 5, v%d" % (V_VA0, dh, V_VA0))
    a("v_lshl_add_u32 v%d, v%d, 3, v%d" % (V_VA0, c, V_VA0))
    for i in range(48):
        a("v_pk_mov_b32 %s, 0, 0" % vr(V_O + 2 * i, 2)) if False else None
    for i in range(96):
        a("v_mov_b32 v%d, 0" % (V_O + i))
    a("v_mov_b32 v%d, 0" % V_L)
    a("v_add_u32 v%d, s%d, v%d" % (V_KB[0], S_QLDS, V_KA0))
    for j in range(1, 4):
        a("v_xor_b32 v%d, %d, v%d" % (V_KB[j], 32 * j, V_KB[0]))
    wait_cascade(3)
    for ks in range(12):
        a("ds_read_b128 %s, v%d offset:%d" % (vr(V_Q + 4 * ks, 4), V_KB[ks & 3], (ks >> 2) * 4096))
    a("v_add_u32 v%d, s%d, v%d" % (V_KB[0], S_K0, V_KA0))
    for j in range(1, 4):
        a("v_xor_b32 v%d, %d, v%d" % (V_KB[j], 32 * j, V_KB[0]))
    a("s_waitcnt lgkmcnt(0)")
    a("s_barrier")
    stamp(4)
    for ks in range(12):
        a("ds_read_b128 %s, v%d offset:%d" % (vr(POOL + 4 * ks, 4), V_KB[ks & 3], (ks >> 2) * 4096))
    a("s_mov_b32 s%d, 0" % S_J)
    for ks in range(12):
        a("s_waitcnt lgkmcnt(%d)" % (11 - ks))
        a("v_mfma_f32_32x32x16_bf16 %s, %s, %s, %s" % (
            vr(V_S[0], 16), vr(POOL + 4 * ks, 4), vr(V_Q + 4 * ks, 4), "0" if ks == 0 else vr(V_S[0], 16)))

    def block_max(S, mx, t2):
        a("v_max3_f32 v%d, v%d, v%d, v%d" % (mx, S, S + 1, S + 2))
        for i in range(3, 15, 2):
            a("v_max3_f32 v%d, v%d, v%d, v%d" % (mx, mx, S + i, S + i + 1))
        a("v_max_f32 v%d, v%d, v%d" % (mx, mx, S + 15))
        a("v_mov_b32 v%d, v%d" % (t2, mx))
        a("s_nop 1")
        a("v_permlane32_swap_b32 v%d, v%d" % (t2, mx))
        a("s_nop 1")
        a("v_max_f32 v%d, v%d, v%d" % (mx, mx, t2))

    stubs = []

    def sm_seq(par):
        S = V_S[par]
        tm = V_T
        out = []

        def fma(k):
            return ("v_fma_f32 v%d, v%d, s%d, v%d" % (tm[k % 8], S + k, S_C, V_NMC), 1, k // 8, 0)

        def ex(k):
            return ("v_exp_f32 v%d, v%d" % (tm[k % 8], tm[k % 8]), 2, k // 8, 0)

        def cvt(p):
            return ("v_cvt_pk_bf16_f32 v%d, v%d, v%d" % (V_P + p, tm[(2 * p) % 8], tm[(2 * p + 1) % 8]), 1, p // 4,
                    17 if p < 4 else 23)

        def add(k):
            if k == 1:
                return ("v_add_f32 v%d, v%d, v%d" % (V_BS, tm[0], tm[1]), 1, 0, 0)
            return ("ADD %d" % k, 1, k // 8, 0)
        for hf in range(2):
            o = 8 * hf
            p = 4 * hf
            out += [fma(o), fma(o + 1), ex(o), fma(o + 2), ex(o + 1), fma(o + 3), ex(o + 2), fma(o + 4), ex(o + 3)]
            if hf:
                out += [add(o)]
            out += [add(o + 1), fma(o + 5), ex(o + 4), cvt(p), add(o + 2), fma(o + 6), ex(o + 5), cvt(p + 1), add(o + 3),
                    fma(o + 7), ex(o + 6), add(o + 4), ex(o + 7), cvt(p + 2), add(o + 5), add(o + 6), cvt(p + 3),
                    add(o + 7)]
        return out

    def schedule(par, duty):
        gaps = {g: [] for g in range(BG, BG + 26)}
        load = {g: 0.0 for g in range(24)}
        load[BG % 24] += 2
        load[(BG - 2) % 24] += 4
        load[(BG - 1) % 24] += 6
        load[23] += 2

        def put(it, g):
            it.gap = g
            gaps[g].append(it)
            load[g % 24] += it.cost
        put(Item(["MASK %d" % par], 2, 0, 0, "mask"), max(SM0, BG))
        if duty:
            put(Item(["DUTYLD"], 2, 0, 0, "duty"), BG + 2)
            put(Item(["DUTYWAIT"], 6, 0, 0, "duty"), BG + 24 - 4)
        kg = []
        g = BG
        for i in range(12):
            g = max(g, 12 + i)
            while kg.count(g) >= (2 if g < BG + 2 else 1):
                g += 1
            kg.append(g)
            put(Item("ds_read_b128 %s, v%d offset:%d" % (vr(POOL + 4 * i, 4), V_KB[i & 3], (i >> 2) * 4096),
                     1, 0, 0, "K", ("F", i)), g)
            assert g <= 24 + i - 4
        for idx in range(12):
            s, t = divmod(idx, 6)
            for u in range(2):
                put(Item("ds_read_b64_tr_b16 %s, v%d offset:%d" % (
                    vr(POOL + 4 * idx + 2 * u, 2), V_VB[t & 1], HB + (16 * s + 8 * u) * 128 + (t >> 1) * 4096),
                    1, 0, 0, "V%d" % s, ("F", idx)), 24 + idx)
        e, l = max(SM0, BG), SM1
        its = [Item(txt, cost, max(mg, 24 if hf else 0), l, "sm", half=hf) for txt, cost, hf, mg in sm_seq(par)]
        its.append(Item(["CHECK %d 2" % par], 3, 0, l, "chk"))
        tot = sum(v.cost for v in its) + sum(load[g % 24] for g in range(e, l + 1))
        target = tot / (l - e + 1)
        g = e
        exc = 0.0
        for it in its:
            while g < l and (load[g % 24] + it.cost / 2.0 > target + exc or g < it.early):
                exc += target - load[g % 24]
                g += 1
            put(it, g)
        return gaps, load

    def mfma_for(slot, par):
        if slot < 12:
            Sn = V_S[par ^ 1]
            txt = "v_mfma_f32_32x32x16_bf16 %s, %s, %s, %s" % (
                vr(Sn, 16), vr(POOL + 4 * slot, 4), vr(V_Q + 4 * slot, 4), "0" if slot == 0 else vr(Sn, 16))
            return txt, ("F", slot), "qk"
        idx = slot - 12
        s, t = divmod(idx, 6)
        txt = "v_mfma_f32_32x32x16_bf16 %s, %s, %s, %s" % (
            vr(V_O + 16 * t, 16), vr(POOL + 4 * idx, 4), vr(V_P + 4 * s, 4), vr(V_O + 16 * t, 16))
        return txt, ("F", idx), "pv%d" % s

    def emit_lines(lines, tailmode=False):
        for ln in lines:
            if ln.startswith("CHECK"):
                _, par, mode = ln.split()
                stub, back = a.newlabel("slow"), a.newlabel("back")
                a("v_cmp_lt_f32 vcc, s%d, v%d" % (S_THR, V_BS))
                a("s_cbranch_vccnz %s" % stub)
                a.label(back)
                a("v_add_f32 v%d, v%d, v%d" % (V_L, V_L, V_BS))
                stubs.append((stub, "L_slow_%s_%s" % (par, mode), back))
            elif ln.startswith("MASK"):
                _, par = ln.split()
                stub, back = a.newlabel("mstub"), a.newlabel("mback")
                a("s_cmp_eq_u32 s%d, s%d" % (S_J, S_NF))
                a("s_cbranch_scc1 %s" % stub)
                a.label(back)
                stubs.append((stub, "L_mask_%s" % par, back))
            elif ln.startswith("ADD"):
                k = int(ln.split()[1])
                if tailmode and k == 8:
                    a("v_mov_b32 v%d, v%d" % (V_BS, V_T[0]))
                else:
                    a("v_add_f32 v%d, v%d, v%d" % (V_BS, V_BS, V_T[k % 8]))
            elif ln == "DUTYLD":
                stub, back = a.newlabel("dl"), a.newlabel("dlb")
                a("s_cmp_lt_u32 s%d, s%d" % (S_LN, S_NKB))
                a("s_cbranch_scc1 %s" % stub)
                a.label(back)
                stubs.append((stub, "L_dutyld", back))
            elif ln == "DUTYWAIT":
                a("s_add_u32 s%d, s%d, 1" % (S_NEED, S_NEED))
                wait_cascade(3)
            else:
                a(ln)

    def skip_item(it):
        return ("L" in abl and it.writes is not None) or ("S" in abl and it.kind in ("sm", "chk"))

    def emit_stream(seq, outstanding, tailmode=False):
        issued = list(outstanding)
        done = 0
        for idx, e in enumerate(seq):
            if e[0] == "m":
                frag = e[2]
                need = max([k for k, fr in enumerate(issued) if fr == frag], default=-1) + 1
                if need > done:
                    tgt = need
                    cnt = 0
                    for e2 in seq[idx + 1:]:
                        if e2[0] == "m":
                            n2 = max([k for k, fr in enumerate(issued) if fr == e2[2]], default=-1) + 1
                            if n2 > tgt and n2 <= len(issued) - 6 and cnt < 5:
                                tgt = n2
                                cnt += 1
                            else:
                                break
                    n = len(issued) - tgt
                    a("s_waitcnt lgkmcnt(%d)" % min(15, n))
                    done = len(issued) - min(15, n)
                a(e[1])
            elif e[0] == "i":
                it = e[1]
                if skip_item(it):
                    continue
                emit_lines(it.lines, tailmode)
                if it.writes is not None:
                    issued.append(it.writes)
            elif e[0] == "bar":
                a("s_waitcnt lgkmcnt(0)")
                a("s_barrier")
                issued, done = [], 0
            elif e[0] == "raw":
                emit_lines([e[1]], tailmode)
            elif e[0] == "label":
                a.label(e[1])

    def addr_lines():
        return (["v_add_u32 v%d, s%d, v%d" % (V_KB[0], S_SLOT, V_KA0), "v_add_u32 v%d, s%d, v%d" % (V_VB[0], S_SLOT, V_VA0)] +
                ["v_xor_b32 v%d, %d, v%d" % (V_KB[j], 32 * j, V_KB[0]) for j in range(1, 4)] +
                ["v_xor_b32 v%d, 64, v%d" % (V_VB[1], V_VB[0])])

    def compute_path(duty):
        sfx = "d" if duty else "n"
        scheds = [schedule(0, duty), schedule(1, duty)]
        sys.stderr.write("gap loads (%s): %s\n" % (sfx, " ".join("%.0f" % scheds[0][1][g] for g in range(24))))

        def next_items(par):
            return [it for g in range(BG, 24) for it in scheds[par][0][g]]

        def nfr(par):
            return [it.writes for it in next_items(par) if it.writes is not None and not skip_item(it)]

        def body(par):
            cur, nxt = scheds[par][0], scheds[par ^ 1][0]
            seq = []
            for slot in range(24):
                txt, frag, kind = mfma_for(slot, par)
                seq.append(("m", txt, frag))
                for it in cur.get(slot + 24, []):
                    seq.append(("i", it))
                if slot == BG - 2:
                    seq += [("raw", "s_add_u32 s%d, s%d, s%d" % (S_SLOT, S_SLOT, S_STEP)),
                            ("raw", "s_sub_u32 s%d, s%d, %d" % (S_TMP3, S_SLOT, RING)),
                            ("raw", "s_cselect_b32 s%d, s%d, s%d" % (S_SLOT, S_SLOT, S_TMP3)),
                            ("raw", "s_add_u32 s%d, s%d, 1" % (S_J, S_J))]
                if slot == BG - 1:
                    seq += [("raw", x) for x in addr_lines()]
                if slot == BG:
                    seq.append(("bar",))
                if slot >= BG:
                    for it in nxt.get(slot, []):
                        seq.append(("i", it))
            return seq

        def tail(par):
            cur = scheds[par][0]
            rest = [it for g in range(24, BG + 26) for it in cur[g]]
            assert all(it.half != 1 for it in next_items(par)), "second half started too early"
            vreads = [it for it in rest if it.kind in ("V0", "V1")]
            h0 = [it for it in rest if it.kind == "sm" and it.half == 0]
            h1 = [it for it in rest if it.kind == "sm" and it.half == 1]
            seq = []
            v0 = [it for it in vreads if it.kind == "V0"]
            v1 = [it for it in vreads if it.kind == "V1"]
            k = 0
            for it in v0:
                seq.append(("i", it))
                if k < len(h0):
                    seq.append(("i", h0[k]))
                    k += 1
            for it in h0[k:]:
                seq.append(("i", it))
            seq.append(("raw", "CHECK %d 0" % par))
            seq.append(("raw", "s_cmp_le_u32 s%d, 16" % S_NVAL))
            seq.append(("raw", "s_cbranch_scc1 L_short_%s%d" % (sfx, par)))
            k = 0
            kv = 0
            per = (len(h1) + 5) // 6
            for t in range(6):
                txt, frag, kind = mfma_for(12 + t, par)
                seq.append(("m", txt, frag))
                for it in v1[2 * t:2 * t + 2]:
                    seq.append(("i", it))
                for it in h1[k:k + per]:
                    seq.append(("i", it))
                k += per
            seq.append(("raw", "CHECK %d 1" % par))
            for t in range(6):
                txt, frag, kind = mfma_for(18 + t, par)
                seq.append(("m", txt, frag))
            seq.append(("raw", "s_branch L_epi"))
            short = [("label", "L_short_%s%d" % (sfx, par)), ("raw", "s_waitcnt lgkmcnt(0)")]
            for t in range(6):
                txt, frag, kind = mfma_for(12 + t, par)
                short.append(("raw", txt))
            short.append(("raw", "s_branch L_epi"))
            return seq, short

        if duty:
            a("s_add_u32 s%d, s%d, %d" % (S_LIM, S_LN, RAMPD))
            a("s_min_u32 s%d, s%d, s%d" % (S_LIM, S_LIM, S_DEPTH))
            load_upto(S_LIM, 3)
            a("s_add_u32 s%d, s%d, 1" % (S_NEED, S_NEED))
            wait_cascade(3)
        for x in addr_lines():
            a(x)
        a("s_nop 6")
        block_max(V_S[0], V_M, V_T[1])
        a("v_mul_f32 v%d, s%d, v%d" % (V_NMC, S_C, V_M))
        a("v_sub_f32 v%d, 0, v%d" % (V_NMC, V_NMC))
        emit_stream([("bar",)] + [("i", it) for it in next_items(0)], [])
        a.label("L_loop_" + sfx)
        emit_stream(body(0), nfr(0))
        a("s_cmp_eq_u32 s%d, s%d" % (S_J, S_NF))
        a("s_cbranch_scc1 L_tail1_" + sfx)
        emit_stream(body(1), nfr(1))
        a("s_cmp_lg_u32 s%d, s%d" % (S_J, S_NF))
        a("s_cbranch_scc1 L_loop_" + sfx)
        t0, s0 = tail(0)
        t1, s1 = tail(1)
        emit_stream(t0, nfr(0), True)
        a.label("L_tail1_" + sfx)
        emit_stream(t1, nfr(1), True)
        emit_stream(s0, [], True)
        emit_stream(s1, [], True)

    a("s_cmp_lg_u32 s%d, 0" % S_NP)
    a("s_cbranch_scc1 L_duty_path")
    compute_path(False)
    a.label("L_duty_path")
    compute_path(True)

    a.label("L_epi")
    stamp(5)
    a("s_add_u32 s%d, s%d, s%d" % (S_TMP, S_SLOT, S_SCR))
    a("s_sub_u32 s%d, s%d, %d" % (S_TMP2, S_TMP, RING))
    a("s_cselect_b32 s%d, s%d, s%d" % (S_TMP, S_TMP, S_TMP2))
    a("v_mov_b32 v%d, v%d" % (V_T[0], V_L))
    q, hh = V_T[1], V_T[2]
    a("v_and_b32 v%d, 31, v%d" % (q, V_LANE))
    a("v_lshrrev_b32 v%d, 5, v%d" % (hh, V_LANE))
    a("v_permlane32_swap_b32 v%d, v%d" % (V_T[0], V_L))
    a("v_lshlrev_b32 v%d, 7, v%d" % (V_T[3], q))
    a("v_add_f32 v%d, v%d, v%d" % (V_L, V_L, V_T[0]))
    a("v_and_b32 v%d, 7, v%d" % (q, q))
    a("v_rcp_f32 v%d, v%d" % (V_L, V_L))
    a("v_lshl_add_u32 v%d, v%d, 4, v%d" % (V_T[3], q, V_T[3]))
    a("v_lshl_add_u32 v%d, v%d, 3, v%d" % (V_T[3], hh, V_T[3]))
    a("v_mov_b32 v%d, v%d" % (V_M, V_L))
    a("v_add_u32 v%d, s%d, v%d" % (POOL, S_TMP, V_T[3]))
    for c in range(1, 8):
        a("v_xor_b32 v%d, %d, v%d" % (POOL + c, 16 * c, POOL))
    for t in range(6):
        for g in range(4):
            o = V_O + 16 * t + 4 * g
            d = V_P + 2 * ((4 * t + g) % 4)
            a("v_pk_mul_f32 %s, %s, %s" % (vr(o, 2), vr(o, 2), vr(V_L, 2)))
            a("v_pk_mul_f32 %s, %s, %s" % (vr(o + 2, 2), vr(o + 2, 2), vr(V_L, 2)))
            a("v_cvt_pk_bf16_f32 v%d, v%d, v%d" % (d, o, o + 1))
            a("v_cvt_pk_bf16_f32 v%d, v%d, v%d" % (d + 1, o + 2, o + 3))
            c = 4 * t + g
            a("ds_write_b64 v%d, %s offset:%d" % (POOL + (c & 7), vr(d, 2), (c >> 3) * 4096))
    a("v_lshlrev_b32 v%d, 4, v%d" % (V_T[4], V_LANE))
    a("v_add_u32 v%d, s%d, v%d" % (POOL + 8, S_TMP, V_T[4]))
    a("v_lshrrev_b32 v%d, 3, v%d" % (V_T[0], V_LANE))
    a("v_and_b32 v%d, 7, v%d" % (V_T[1], V_LANE))
    a("v_xor_b32 v%d, v%d, v%d" % (V_T[1], V_T[1], V_T[0]))
    a("v_mul_u32_u24 v%d, %d, v%d" % (V_T[0], RS, V_T[0]))
    a("v_lshl_add_u32 v%d, v%d, 4, v%d" % (V_T[0], V_T[1], V_T[0]))
    a("v_add_u32 v%d, s%d, v%d" % (POOL + 9, S_QOFF, V_T[0]))
    for rg in range(1, 4):
        a("v_add_u32 v%d, %d, v%d" % (POOL + 9 + rg, rg * 8 * RS, POOL + 9))
    stamp(6)
    a("s_waitcnt lgkmcnt(0)")
    order = [(rg, lc) for rg in range(4) for lc in range(3)]
    for j, (rg, lc) in enumerate(order):
        a("ds_read_b128 %s, v%d offset:%d" % (vr(V_O + 4 * j, 4), POOL + 8, lc * 4096 + rg * 1024))
    for j, (rg, lc) in enumerate(order):
        a("s_waitcnt lgkmcnt(%d)" % (11 - j))
        a("buffer_store_dwordx4 %s, v%d, %s, 0 offen offset:%d %s" % (
            vr(V_O + 4 * j, 4), POOL + 9 + rg, sr(SRD_O, 4), lc * 128, stf))
    stamp_flush()
    a("s_endpgm")

    for stub, target, back in stubs:
        a.label(stub)
        a("s_call_b64 %s, %s" % (sr(S_RET, 2), target))
        a("s_branch %s" % back)
    a.label("L_dutyld")
    load_body(3)
    a("s_setpc_b64 %s" % sr(S_RET, 2))
    for par in range(2):
        S = V_S[par]
        a.label("L_mask_%d" % par)
        a("s_nop 7")
        a("v_lshrrev_b32 v%d, 5, v%d" % (V_T[1], V_LANE))
        a("v_lshlrev_b32 v%d, 2, v%d" % (V_T[1], V_T[1]))
        a("v_mov_b32 v%d, 0xff800000" % V_T[0])
        for g in range(4):
            for i in range(4):
                a("s_sub_u32 s%d, s%d, %d" % (S_TMP2, S_NVAL, 8 * g + i))
                a("v_cmp_gt_i32 vcc, s%d, v%d" % (S_TMP2, V_T[1]))
                a("s_nop 1")
                a("v_cndmask_b32 v%d, v%d, v%d, vcc" % (S + 4 * g + i, V_T[0], S + 4 * g + i))
        a("s_setpc_b64 %s" % sr(S_RET, 2))
    a.label("L_rescale")
    mx, t2 = V_T[0], V_T[1]
    a("v_max_f32 v%d, v%d, v%d" % (mx, mx, V_M))
    a("v_sub_f32 v%d, v%d, v%d" % (t2, V_M, mx))
    a("v_mul_f32 v%d, s%d, v%d" % (t2, S_C, t2))
    a("v_exp_f32 v%d, v%d" % (t2, t2))
    a("v_mov_b32 v%d, v%d" % (V_M, mx))
    a("v_mul_f32 v%d, s%d, v%d" % (V_NMC, S_C, mx))
    a("v_sub_f32 v%d, 0, v%d" % (V_NMC, V_NMC))
    a("v_mul_f32 v%d, v%d, v%d" % (V_L, V_L, t2))
    for i in range(96):
        a("v_mul_f32 v%d, v%d, v%d" % (V_O + i, V_O + i, t2))
    a("s_setpc_b64 %s" % sr(S_RET2, 2))
    for par in range(2):
        for mode in range(3):
            S = V_S[par]
            a.label("L_slow_%d_%d" % (par, mode))
            a("s_nop 15")
            block_max(S, mx, t2)
            a("s_call_b64 %s, L_rescale" % sr(S_RET2, 2))
            first = True
            for hf in ([0, 1] if mode == 2 else [mode]):
                for k in range(8):
                    a("v_fma_f32 v%d, v%d, s%d, v%d" % (V_T[k], S + 8 * hf + k, S_C, V_NMC))
                for k in range(8):
                    a("v_exp_f32 v%d, v%d" % (V_T[k], V_T[k]))
                a("s_nop 0")
                for p in range(4):
                    a("v_cvt_pk_bf16_f32 v%d, v%d, v%d" % (V_P + 4 * hf + p, V_T[2 * p], V_T[2 * p + 1]))
                for k in range(8):
                    if first:
                        a("v_mov_b32 v%d, v%d" % (V_BS, V_T[k]))
                        first = False
                    else:
                        a("v_add_f32 v%d, v%d, v%d" % (V_BS, V_BS, V_T[k]))
            a("s_setpc_b64 %s" % sr(S_RET, 2))
    a.lines.append(".p2align 6")
    a.lines.append(".type L_table,@object")
    a.label("L_table")
    for d in TABLE:
        a(".long " + ", ".join("0x%x" % x for x in d))
    a.lines.append(".size L_table, %d" % (64 * len(TABLE)))

    hdr = open("cdna_kernels/%s.s.ref" % NAME).read().split("\n")
    out = []
    for ln in hdr:
        if ln.startswith("; @launch"):
            out.append("; @launch grid=(256,1,1) block=(512,1,1) lds=%d" % LDS_TOTAL)
        elif ln.startswith(";"):
            out.append(ln)
        else:
            break
    out += [
        '.amdgcn_target "amdgcn-amd-amdhsa--gfx950"',
        ".text",
        ".globl %s_kernel" % NAME,
        ".p2align 8",
        ".type %s_kernel,@function" % NAME,
    ]
    out += a.lines
    out += [
        '.section .rodata,"a"',
        ".p2align 6",
        ".amdhsa_kernel %s_kernel" % NAME,
        "  .amdhsa_next_free_vgpr 256",
        "  .amdhsa_next_free_sgpr 96",
        "  .amdhsa_accum_offset 256",
        "  .amdhsa_group_segment_fixed_size 0",
        "  .amdhsa_kernarg_size 56",
        "  .amdhsa_user_sgpr_count 2",
        "  .amdhsa_user_sgpr_kernarg_segment_ptr 1",
        "  .amdhsa_system_sgpr_workgroup_id_x 1",
        ".end_amdhsa_kernel",
        "",
    ]
    return "\n".join(out)


def parse_plan(s):
    out = []
    for (seq, parts, _, _, _), x in zip(DEFAULT_PLAN, s.split(",")):
        qg, npre, thr = x.split(".")
        out.append((seq, parts, int(qg), int(npre), int(thr)))
    return out


if __name__ == "__main__":
    dst = sys.argv[1] if len(sys.argv) > 1 and not sys.argv[1].startswith("--") else "cdna_kernels/%s.s" % NAME

    def opt(n, d):
        for x in sys.argv:
            if x.startswith("--" + n + "="):
                return x.split("=", 1)[1].replace("+", " ")
        return d
    plan = parse_plan(opt("plan", "")) if opt("plan", "") else None
    open(dst, "w").write(gen(stamps="--stamps" in sys.argv, qf=opt("qf", "nt"), kvf=opt("kvf", "nt"),
                             stf=opt("stf", ""), BG=int(opt("bg", "14")), rot="--rot" in sys.argv, abl=opt("abl", ""),
                             plan=plan, SM0=int(opt("sm0", "14")), SM1=int(opt("sm1", "35")),
                             RAMP=int(opt("ramp", "1")), NPF=int(opt("npf", "2")),
                             PFWAIT=int(opt("pfwait", "1")), RAMPD=int(opt("rampd", "2")),
                             pfspec=([] if "--nopf" in sys.argv else None)))
    print("wrote", dst)
```

```python
import math
import struct
import sys

NAME = "standalone__varlen_attn_packed__ragged"
CU = [0, 238, 376, 669, 835, 1320, 1545, 1865, 2058]
T, H, D = 2058, 16, 192
RS = H * D * 2
HB = 12288
BLK = 2 * HB
NSLOT = 6
LDS_TOTAL = 163840
CSCALE = (D ** -0.5) * math.log2(math.e)
THR = 1024.0


def f32(x):
    return struct.unpack("<I", struct.pack("<f", x))[0]


RING = NSLOT * BLK
NKB = [(CU[i + 1] - CU[i] + 31) // 32 for i in range(8)]

DEFAULT_PLAN = [(4, [4, 4, 4, 4], 0, 2, 0), (7, [7], 0, 2, 0), (3, [6], 1, 3, 0),
                (6, [4, 4, 2], 1, 2, 0), (2, [4, 4, 2], 1, 2, 0), (1, [5], 1, 3, 0), (0, [4, 4], 1, 2, 0),
                (5, [4, 4], 1, 2, 0)]


def make_wgs(plan):
    wgs = []
    for seq, parts, win, npre, rot in plan:
        nf = NKB[seq] - 1
        t0 = 0
        assert sum(parts) == NKB[seq]
        for r, nt in enumerate(parts):
            rr = ((r * nf) // len(parts)) if rot else 0
            if nt == 2:
                wgs.append(dict(seq=seq, t0=t0, nt=4, dual=True, hb=0, rot=rr, win=win, npre=min(npre, 1)))
            else:
                for hb in range(2):
                    wgs.append(dict(seq=seq, t0=t0, nt=nt, dual=False, hb=hb, rot=rr, win=win,
                                    npre=min(npre, 5 - (nt - 1) // 2)))
            t0 += nt
    assert len(wgs) == 32, len(wgs)
    return wgs


def prefetch_list(spec):
    items = []
    for ten, seq, b0, b1 in spec:
        for b in range(b0, b1 + 1):
            for rg in range(4):
                row = CU[seq] + 32 * b + 8 * rg
                if row < CU[seq + 1]:
                    items.append((ten, row))
    return items


def default_pf():
    spec = []
    for b in range(0, 6):
        spec += [("K", 4, b + 1, b + 1), ("V", 4, b, b)]
        if b < 3:
            spec += [("K", 7, b + 1, b + 1), ("V", 7, b, b)]
    return spec


def wave_desc(wg, w, pf):
    seq, nt, dual = wg["seq"], wg["nt"], wg["dual"]
    s0, s1 = CU[seq], CU[seq + 1]
    nkb = NKB[seq]
    nval = (s1 - s0) - 32 * (nkb - 1)
    step = 2 * BLK if dual else BLK
    ns = RING // step
    compute = w < nt
    if dual:
        hb = (w >> 1) & 1
        tile = wg["t0"] + (w & 1)
        so = hb * BLK
        qlds = [12 * HB, 9 * HB, 11 * HB, 7 * HB][w & 3]
        if w >= 4:
            isk, nrg, rg0 = 1 - (w & 1), 4, 0
        else:
            isk, nrg, rg0 = 0, 0, 0
    else:
        hb = wg["hb"]
        tile = wg["t0"] + w
        so = 0
        qlds = (12 - w - (1 if w >= 2 else 0)) * HB
        if nt > 4:
            isk, nrg, rg0 = (1 if w < 4 else 0), 1, w & 3
        elif w >= 4:
            isk, nrg, rg0 = (1 if w < 6 else 0), 2, 2 * (w & 1)
        else:
            isk, nrg, rg0 = 0, 0, 0
    role = (3 if nrg else 2) if compute else (1 if nrg else 0)
    d0 = role | (isk << 2) | (nrg << 3) | ((rg0 & 1) << 6) | (wg["win"] << 8) | (nkb << 10) | (nval << 16) | \
        (wg["rot"] << 22) | (len(pf) << 26)
    k0 = RING - step + so
    ldst0 = (k0 if isk else so + HB) + rg0 * 1024
    d = [d0, s1 * RS, (s0 + 32 * tile) * RS + hb * 384, qlds, (s0 + 8 * rg0) * RS + hb * 384, ldst0, step,
         wg["npre"] + isk, ns - 1 + isk, so, k0, step - so + w * HB]
    for ten, row in pf:
        d.append(row * RS | ((1 << 31) if ten == "V" else 0))
    d += [0] * (16 - len(d))
    return d


def make_table(plan, pfspec, npf):
    wgs = make_wgs(plan)
    items = prefetch_list(pfspec)
    slots = [(j, w) for w in range(8) for j, wg in enumerate(wgs) if wg["win"] > 0 and w < wg["nt"]]
    assign = {}
    for k, it in enumerate(items):
        key = slots[k % len(slots)]
        if len(assign.setdefault(key, [])) < npf:
            assign[key].append(it)
    tab = []
    for j, wg in enumerate(wgs):
        for w in range(8):
            tab.append(wave_desc(wg, w, assign.get((j, w), [])))
    return wgs, tab


class Asm:
    def __init__(self):
        self.lines = []
        self.nlabel = 0

    def __call__(self, s):
        self.lines.append("    " + s)

    def label(self, name):
        self.lines.append(name + ":")

    def newlabel(self, base):
        self.nlabel += 1
        return "L_%s_%d" % (base, self.nlabel)


def vr(lo, n):
    return "v[%d:%d]" % (lo, lo + n - 1)


def sr(lo, n):
    return "s[%d:%d]" % (lo, lo + n - 1)


class Item:
    def __init__(self, lines, cost, early, late, kind, writes=None, half=None):
        self.lines = lines if isinstance(lines, list) else [lines]
        self.cost, self.early, self.late, self.kind = cost, early, late, kind
        self.writes = writes
        self.half = half
        self.gap = None


def gen(stamps=False, qf="nt", kvf="nt", stf="", plan=None, BG=14, rot=False, abl="", SM0=14, SM1=35, RAMP=1, NIMM=1, pfspec=None, NPF=2, PFWAIT=1, RAMPD=2):
    a = Asm()
    WGS, TABLE = make_table(plan or DEFAULT_PLAN, default_pf() if pfspec is None else pfspec, NPF)
    NST = 8
    S_ST = 64

    V_LANE = 0
    V_T = list(range(1, 9))
    V_KA0, V_VA0 = 9, 10
    V_KB = [11, 12, 13, 14]
    V_VB = [15, 16]
    V_DE, V_DO = 17, 18
    V_L, V_M, V_BS, V_NMC = 20, 21, 22, 23
    POOL = 24
    V_P = 72
    V_S = [80, 96]
    V_Q = 112
    V_O = 160
    S_Q, S_K, S_V, S_OUT = 4, 6, 8, 12
    S_WIN, S_XB = 14, 15
    SRD_Q, SRD_KV, SRD_O = 16, 20, 24
    S_W = 28
    S_TMP, S_TMP2, S_TMP3, S_LIM = 29, 30, 31, 91
    S_CF = 32
    S_FL, S_NREC, S_QOFF, S_QLDS, S_GOFF, S_LDST, S_STEP, S_NPRE, S_DEPTH, S_SLOT, S_K0, S_SCR = range(32, 44)
    S_PF = 44
    S_NKB, S_NF, S_NVAL, S_J = 48, 49, 50, 51
    S_LN, S_LB, S_ISK, S_NP, S_REM, S_NEED = 52, 53, 54, 55, 62, 63
    S_C, S_THR = 56, 57
    S_RET = 58
    S_RET2 = 60
    S_PC = 92
    WINS = [0, 4, 2, 1]

    def stamp(i, real=False):
        if stamps:
            a(("s_memrealtime %s" if real else "s_memtime %s") % sr(S_ST + 2 * i, 2))
            a("s_waitcnt lgkmcnt(0)")

    def stamp_flush(iters=False):
        if not stamps:
            return
        a("s_waitcnt vmcnt(0)")
        stamp(1, True)
        stamp(7)
        if stamps == 2:
            lab = a.newlabel("dbg")
            a("s_load_dwordx2 s[80:81], s[0:1], 40")
            a("s_waitcnt lgkmcnt(0)")
            a("s_mov_b32 s84, s80")
            a("s_mov_b32 s85, s81")
            a("s_mov_b32 s86, 256")
            a("s_mov_b32 s87, 0x00020000")
            a("s_mov_b64 exec, 1")
            a("v_mov_b32 v1, 0")
            a("v_mov_b32 v2, s%d" % (S_ST + 2))
            a("s_not_b32 s82, s%d" % S_ST)
            a("v_mov_b32 v3, s82")
            a("v_mov_b32 v4, s%d" % S_ST)
            a("buffer_atomic_umax v2, v1, s[84:87], 0 offen")
            a("buffer_atomic_umax v3, v1, s[84:87], 0 offen offset:4")
            a("buffer_atomic_umax v4, v1, s[84:87], 0 offen offset:8")
            for i in range(3, 8):
                a("s_sub_u32 s82, s%d, s%d" % (S_ST + 2 * i, S_ST + 2 * (i - 1)))
                a("v_mov_b32 v5, s82")
                a("buffer_atomic_umax v5, v1, s[84:87], 0 offen offset:%d" % (4 * i))
                a("s_nop 1")
            a("s_lshl_b32 s82, s2, 3")
            a("s_add_u32 s82, s82, s%d" % S_W)
            a("s_cmp_lg_u32 s82, 0")
            a("s_cbranch_scc1 %s" % lab)
            for i in range(3, 8):
                a("s_sub_u32 s82, s%d, s%d" % (S_ST + 2 * i, S_ST + 2 * (i - 1)))
                a("v_mov_b32 v5, s82")
                a("buffer_store_dword v5, v1, s[84:87], 0 offen offset:%d" % (4 * (i + 6)))
                a("s_nop 1")
            a("s_sub_u32 s82, s%d, s%d" % (S_ST + 2, S_ST))
            a("v_mov_b32 v5, s82")
            a("buffer_store_dword v5, v1, s[84:87], 0 offen offset:%d" % (4 * 14))
            a.label(lab)
            return
        a("s_load_dwordx2 s[80:81], s[0:1], 48")
        a("s_waitcnt lgkmcnt(0)")
        a("s_mov_b32 s84, s80")
        a("s_mov_b32 s85, s81")
        a("s_mov_b32 s86, 0x100000")
        a("s_mov_b32 s87, 0x00020000")
        a("s_lshl_b32 s82, s2, 3")
        a("s_add_u32 s82, s82, s%d" % S_W)
        a("s_mul_i32 s83, s82, %d" % (NST * 8))
        a("v_mov_b32 v1, s83")
        a("s_mov_b64 exec, 1")
        for i in range(NST):
            a("v_mov_b32 v2, s%d" % (S_ST + 2 * i))
            a("v_mov_b32 v3, s%d" % (S_ST + 2 * i + 1))
            a("buffer_store_dwordx2 v[2:3], v1, s[84:87], 0 offen offset:%d" % (8 * i))
            a("s_nop 1")
        if iters:
            a("s_mov_b64 exec, -1")
            a("s_lshl_b32 s82, s82, 8")
            a("s_add_u32 s82, s82, 0x80000")
            a("v_lshlrev_b32 v1, 2, v0")
            a("v_add_u32 v1, s82, v1")
            a("buffer_store_dword v90, v1, s[84:87], 0 offen")

    a.label(NAME + "_kernel")
    a("s_cmp_ge_u32 s2, 256")
    a("s_cbranch_scc1 L_end")
    stamp(0, True)
    stamp(2)
    a("s_load_dwordx8 s[4:11], s[0:1], 0")
    a("s_load_dwordx2 s[12:13], s[0:1], 32")
    a("v_lshrrev_b32 v1, 6, v0")
    a("s_getpc_b64 %s" % sr(S_PC, 2))
    a.label("L_pc")
    a("v_readfirstlane_b32 s%d, v1" % S_W)
    a("s_and_b32 s%d, s2, 0xf8" % S_TMP)
    a("s_add_u32 s%d, s%d, L_table-L_pc" % (S_PC, S_PC))
    a("s_addc_u32 s%d, s%d, 0" % (S_PC + 1, S_PC + 1))
    a("s_add_u32 s%d, s%d, s%d" % (S_TMP, S_TMP, S_W))
    a("s_lshl_b32 s%d, s%d, 6" % (S_TMP, S_TMP))
    a("s_load_dwordx16 %s, %s, s%d" % (sr(S_CF, 16), sr(S_PC, 2), S_TMP))
    a("v_and_b32 v0, 63, v0")
    a("s_and_b32 s%d, s2, 7" % S_XB)
    a("s_mul_i32 s%d, s%d, 768" % (S_XB, S_XB))
    a("v_lshrrev_b32 v1, 3, v0")
    a("v_and_b32 v2, 7, v0")
    a("v_bfe_u32 v3, v0, 4, 2")
    a("v_bfe_u32 v4, v0, 4, 1")
    a("v_mul_u32_u24 v1, %d, v1" % RS)
    a("v_xor_b32 v3, v2, v3")
    a("v_lshlrev_b32 v4, 2, v4")
    a("v_xor_b32 v4, v2, v4")
    a("v_min_u32 v2, 5, v2")
    a("v_lshl_add_u32 v5, v3, 4, v1")
    a("v_lshl_add_u32 v7, v4, 4, v1")
    a("v_xor_b32 v6, 64, v5")
    a("v_lshl_add_u32 v8, v2, 7, v1")
    a("s_mov_b32 s%d, 0x00020000" % (SRD_Q + 3))
    a("s_mov_b32 s%d, 0x00020000" % (SRD_KV + 3))
    a("s_mov_b32 s%d, 0x00020000" % (SRD_O + 3))
    a("s_mov_b32 s%d, %d" % (SRD_KV + 2, T * RS))
    a("s_mov_b32 s%d, 0x%x" % (S_C, f32(CSCALE)))
    a("s_mov_b32 s%d, 0x%x" % (S_THR, f32(THR)))
    a("s_mov_b32 s%d, 0" % S_LN)
    a("s_waitcnt lgkmcnt(0)")
    stamp(3)
    a("s_mov_b32 s%d, s%d" % (SRD_Q, S_Q))
    a("s_mov_b32 s%d, s%d" % (SRD_Q + 1, S_Q + 1))
    a("s_mov_b32 s%d, s%d" % (SRD_Q + 2, S_NREC))
    a("s_add_u32 s%d, s%d, s%d" % (S_QOFF, S_QOFF, S_XB))
    a("s_bfe_u32 s%d, s%d, 0x20008" % (S_WIN, S_FL))
    a("s_bitcmp1_b32 s%d, 1" % S_FL)
    a("s_cbranch_scc0 L_noq")
    a("s_cmp_lg_u32 s%d, 0" % S_WIN)
    a("s_cbranch_scc1 L_qthr")

    def q_loads(win):
        for rg in range(4):
            a("s_add_u32 s%d, s%d, %d" % (S_TMP, S_QOFF, rg * 8 * RS))
            for lc in range(3):
                a("s_add_u32 m0, s%d, %d" % (S_QLDS, lc * 4096 + rg * 1024 - lc * 128))
                if win and 3 * rg + lc >= win:
                    a("s_waitcnt vmcnt(%d)" % (win - 1))
                else:
                    a("s_nop 0")
                a("buffer_load_dwordx4 v%d, %s, s%d offen offset:%d %s lds" % (5 + (rg & 1), sr(SRD_Q, 4), S_TMP, lc * 128, qf))
    q_loads(0)
    a("s_branch L_noq")
    a.label("L_qthr")
    a("s_bfe_u32 s%d, s%d, 0x3001a" % (S_TMP3, S_FL))
    for i in range(NPF):
        a("s_cmp_le_u32 s%d, %d" % (S_TMP3, i))
        a("s_cbranch_scc1 L_pfdone")
        a("s_bitcmp1_b32 s%d, 31" % (S_PF + i))
        a("s_cselect_b32 s%d, s%d, s%d" % (SRD_KV, S_V, S_K))
        a("s_cselect_b32 s%d, s%d, s%d" % (SRD_KV + 1, S_V + 1, S_K + 1))
        a("s_and_b32 s%d, s%d, 0xffffff" % (S_TMP, S_PF + i))
        a("s_add_u32 s%d, s%d, s%d" % (S_TMP, S_TMP, S_XB))
        a("buffer_load_dword v19, v8, %s, s%d offen %s" % (sr(SRD_KV, 4), S_TMP, kvf))
    a.label("L_pfdone")
    if PFWAIT:
        a("s_waitcnt vmcnt(0)")
    for wc in range(2, 4):
        a("s_cmp_eq_u32 s%d, %d" % (S_WIN, wc))
        a("s_cbranch_scc1 L_q%d" % wc)
    for wc in range(1, 4):
        a.label("L_q%d" % wc)
        q_loads(WINS[wc])
        if wc < 3:
            a("s_branch L_noq")
    a.label("L_noq")
    a("s_bfe_u32 s%d, s%d, 0x6000a" % (S_NKB, S_FL))
    a("s_bfe_u32 s%d, s%d, 0x60010" % (S_NVAL, S_FL))
    a("s_bfe_u32 s%d, s%d, 0x40016" % (S_LB, S_FL))
    a("s_bfe_u32 s%d, s%d, 0x10002" % (S_ISK, S_FL))
    a("s_bfe_u32 s%d, s%d, 0x30003" % (S_NP, S_FL))
    a("s_mul_i32 s%d, s%d, 3" % (S_NP, S_NP))
    a("s_sub_u32 s%d, s%d, 1" % (S_NF, S_NKB))
    a("s_mov_b32 s%d, s%d" % (SRD_KV + 2, S_NREC))
    a("s_mov_b32 s%d, s%d" % (SRD_O + 2, S_NREC))
    a("s_mov_b32 s%d, s%d" % (SRD_O, S_OUT))
    a("s_mov_b32 s%d, s%d" % (SRD_O + 1, S_OUT + 1))
    a("s_add_u32 s%d, s%d, s%d" % (S_GOFF, S_GOFF, S_XB))
    a("s_bitcmp1_b32 s%d, 6" % S_FL)
    a("s_cselect_b64 vcc, -1, 0")
    a("v_cndmask_b32 v%d, v5, v6, vcc" % V_DE)
    a("v_mov_b32 v%d, v6" % V_DO)
    a("s_cmp_eq_u32 s%d, 0" % S_ISK)
    a("s_cselect_b64 vcc, -1, 0")
    a("s_cselect_b32 s%d, s%d, s%d" % (SRD_KV, S_V, S_K))
    a("s_cselect_b32 s%d, s%d, s%d" % (SRD_KV + 1, S_V + 1, S_K + 1))
    a("v_cndmask_b32 v%d, v%d, v7, vcc" % (V_DE, V_DE))
    a("v_cndmask_b32 v%d, v%d, v7, vcc" % (V_DO, V_DO))
    a("s_mov_b32 s%d, s%d" % (S_NEED, S_ISK))

    def load_body(np_static, win=0, first=False):
        nop = ("s_waitcnt vmcnt(%d)" % (win - 1)) if win else "s_nop 0"
        a("s_cmp_eq_u32 s%d, s%d" % (S_LN, S_NF))
        a("s_cselect_b32 s%d, s%d, s%d" % (S_TMP, S_NF, S_LB))
        a("s_mul_i32 s%d, s%d, %d" % (S_TMP, S_TMP, 32 * RS))
        a("s_add_u32 s%d, s%d, s%d" % (S_TMP, S_TMP, S_GOFF))
        labd = a.newlabel("ldd")
        for rg in range(1 if np_static else 4):
            if rg:
                if rg != 3:
                    a("s_cmp_eq_u32 s%d, %d" % (S_NP, 3 * rg))
                    a("s_cbranch_scc1 %s" % labd)
                a("s_add_u32 s%d, s%d, %d" % (S_TMP, S_TMP, 8 * RS))
            for lc in range(3):
                a("s_add_u32 m0, s%d, %d" % (S_LDST, rg * 1024 + lc * 4096 - lc * 128))
                a(nop)
                a("buffer_load_dwordx4 v%d, %s, s%d offen offset:%d %s lds" % (
                    V_DO if rg & 1 else V_DE, sr(SRD_KV, 4), S_TMP, lc * 128, kvf))
                if first and rg == 0 and lc == 0:
                    lab = a.newlabel("fv")
                    a("s_cmp_lg_u32 s%d, 0" % S_ISK)
                    a("s_cbranch_scc1 %s" % lab)
                    a("s_waitcnt vmcnt(0)")
                    a.label(lab)
        a.label(labd)
        if first:
            lab = a.newlabel("fk")
            a("s_cmp_eq_u32 s%d, 0" % S_ISK)
            a("s_cbranch_scc1 %s" % lab)
            a("s_waitcnt vmcnt(2)")
            a.label(lab)
        a("s_add_u32 s%d, s%d, 1" % (S_LN, S_LN))
        a("s_add_u32 s%d, s%d, 1" % (S_LB, S_LB))
        a("s_cmp_ge_u32 s%d, s%d" % (S_LB, S_NF))
        a("s_cselect_b32 s%d, 0, s%d" % (S_LB, S_LB))
        a("s_add_u32 s%d, s%d, s%d" % (S_LDST, S_LDST, S_STEP))
        a("s_sub_u32 s%d, s%d, %d" % (S_TMP2, S_LDST, RING))
        a("s_cmp_ge_u32 s%d, %d" % (S_LDST, RING))
        a("s_cselect_b32 s%d, s%d, s%d" % (S_LDST, S_TMP2, S_LDST))

    def load_upto(limit_sgpr, np_static, win=0):
        top, done = a.newlabel("lu"), a.newlabel("lud")
        a("s_min_u32 s%d, s%d, s%d" % (limit_sgpr, limit_sgpr, S_NKB))
        a("s_cmp_ge_u32 s%d, s%d" % (S_LN, limit_sgpr))
        a("s_cbranch_scc1 %s" % done)
        a.label(top)
        load_body(np_static, win)
        a("s_cmp_lt_u32 s%d, s%d" % (S_LN, limit_sgpr))
        a("s_cbranch_scc1 %s" % top)
        a.label(done)

    def pre_loads(np_static):
        labs = [a.newlabel("pl") for _ in range(4)]
        done = a.newlabel("pld")
        for wc in range(1, 4):
            a("s_cmp_eq_u32 s%d, %d" % (S_WIN, wc))
            a("s_cbranch_scc1 %s" % labs[wc])
        if np_static is None:
            load_body(None, 0, True)
        load_upto(S_NPRE, np_static)
        a("s_branch %s" % done)
        for wc in range(1, 4):
            a.label(labs[wc])
            load_upto(S_NPRE, np_static, WINS[wc])
            if wc < 3:
                a("s_branch %s" % done)
        a.label(done)

    def wait_cascade(np_static):
        done = a.newlabel("wc")
        a("s_min_u32 s%d, s%d, s%d" % (S_REM, S_NEED, S_LN))
        a("s_sub_u32 s%d, s%d, s%d" % (S_REM, S_LN, S_REM))
        if np_static is None:
            a("s_mul_i32 s%d, s%d, s%d" % (S_REM, S_REM, S_NP))
            vals = sorted(set([3 * r for r in range(6)] + [6 * r for r in range(6)]), reverse=True)
            cmpv = vals
        else:
            vals = [np_static * r for r in range(5, -1, -1)]
            cmpv = list(range(5, -1, -1))
        for v, c in zip(vals[:-1], cmpv[:-1]):
            a("s_waitcnt vmcnt(%d)" % v)
            a("s_cmp_ge_u32 s%d, %d" % (S_REM, c))
            a("s_cbranch_scc1 %s" % done)
        a("s_waitcnt vmcnt(0)")
        a.label(done)

    a("s_bitcmp1_b32 s%d, 1" % S_FL)
    a("s_cbranch_scc1 L_compute")

    a("s_cmp_eq_u32 s%d, 0" % S_NP)
    a("s_cbranch_scc1 L_idle")
    pre_loads(None)
    wait_cascade(None)
    a("s_barrier")
    stamp(4)
    a("s_mov_b32 s%d, s%d" % (S_TMP3, S_DEPTH))
    a("s_mov_b32 s%d, 0" % S_J)
    if stamps:
        a("v_mov_b32 v90, 0")
    a.label("L_ld_loop")
    a("s_add_u32 s%d, s%d, %d" % (S_LIM, S_LN, RAMP))
    a("s_min_u32 s%d, s%d, s%d" % (S_LIM, S_LIM, S_TMP3))
    load_upto(S_LIM, None)
    a("s_add_u32 s%d, s%d, 1" % (S_NEED, S_NEED))
    wait_cascade(None)
    if stamps:
        a("s_memtime s[88:89]")
        a("s_waitcnt lgkmcnt(0)")
        a("s_add_u32 m0, s%d, 32" % S_J)
        a("s_nop 0")
        a("v_writelane_b32 v90, s88, m0")
    a("s_barrier")
    if stamps:
        a("s_memtime s[88:89]")
        a("s_waitcnt lgkmcnt(0)")
        a("s_mov_b32 m0, s%d" % S_J)
        a("s_nop 0")
        a("v_writelane_b32 v90, s88, m0")
    a("s_add_u32 s%d, s%d, 1" % (S_TMP3, S_TMP3))
    a("s_add_u32 s%d, s%d, 1" % (S_J, S_J))
    a("s_cmp_lt_u32 s%d, s%d" % (S_J, S_NKB))
    a("s_cbranch_scc1 L_ld_loop")
    stamp(5)
    stamp(6)
    stamp_flush(True)
    a("s_endpgm")
    a.label("L_idle")
    a("s_add_u32 s%d, s%d, 1" % (S_J, S_NKB))
    a.label("L_idle_loop")
    a("s_barrier")
    a("s_sub_u32 s%d, s%d, 1" % (S_J, S_J))
    a("s_cmp_lg_u32 s%d, 0" % S_J)
    a("s_cbranch_scc1 L_idle_loop")
    a.label("L_end")
    a("s_endpgm")

    a.label("L_compute")
    lab_nl = a.newlabel("nl")
    a("s_cmp_eq_u32 s%d, 0" % S_NP)
    a("s_cbranch_scc1 %s" % lab_nl)
    pre_loads(3)
    a.label(lab_nl)
    r, h, f, h4 = V_T[0], V_T[1], V_T[2], V_T[7]
    a("v_and_b32 v%d, 31, v%d" % (r, V_LANE))
    a("v_lshrrev_b32 v%d, 5, v%d" % (h, V_LANE))
    a("v_lshlrev_b32 v%d, 2, v%d" % (h4, h))
    a("v_bfe_u32 v%d, v%d, 1, 3" % (f, r))
    a("v_xor_b32 v%d, v%d, v%d" % (f, f, h))
    a("v_lshlrev_b32 v%d, 4, v%d" % (f, f))
    a("v_lshl_add_u32 v%d, v%d, 7, v%d" % (V_KA0, r, f))
    rr, c, dh, b = V_T[3], V_T[4], V_T[5], V_T[6]
    a("v_bfe_u32 v%d, v%d, 2, 2" % (rr, V_LANE))
    a("v_and_b32 v%d, 3, v%d" % (c, V_LANE))
    a("v_bfe_u32 v%d, v%d, 4, 1" % (dh, V_LANE))
    a("v_bfe_u32 v%d, v%d, 3, 1" % (b, V_LANE))
    a("v_add_u32 v%d, v%d, v%d" % (rr, rr, h4))
    a("v_lshlrev_b32 v%d, 7, v%d" % (V_VA0, rr))
    a("v_lshl_add_u32 v%d, v%d, 6, v%d" % (V_VA0, b, V_VA0))
    a("v_lshl_add_u32 v%d, v%d, 5, v%d" % (V_VA0, dh, V_VA0))
    a("v_lshl_add_u32 v%d, v%d, 3, v%d" % (V_VA0, c, V_VA0))
    for i in range(48):
        a("v_pk_mov_b32 %s, 0, 0" % vr(V_O + 2 * i, 2)) if False else None
    for i in range(96):
        a("v_mov_b32 v%d, 0" % (V_O + i))
    a("v_mov_b32 v%d, 0" % V_L)
    a("v_add_u32 v%d, s%d, v%d" % (V_KB[0], S_QLDS, V_KA0))
    for j in range(1, 4):
        a("v_xor_b32 v%d, %d, v%d" % (V_KB[j], 32 * j, V_KB[0]))
    wait_cascade(3)
    for ks in range(12):
        a("ds_read_b128 %s, v%d offset:%d" % (vr(V_Q + 4 * ks, 4), V_KB[ks & 3], (ks >> 2) * 4096))
    a("v_add_u32 v%d, s%d, v%d" % (V_KB[0], S_K0, V_KA0))
    for j in range(1, 4):
        a("v_xor_b32 v%d, %d, v%d" % (V_KB[j], 32 * j, V_KB[0]))
    a("s_waitcnt lgkmcnt(0)")
    a("s_barrier")
    stamp(4)
    for ks in range(12):
        a("ds_read_b128 %s, v%d offset:%d" % (vr(POOL + 4 * ks, 4), V_KB[ks & 3], (ks >> 2) * 4096))
    a("s_mov_b32 s%d, 0" % S_J)
    for ks in range(12):
        a("s_waitcnt lgkmcnt(%d)" % (11 - ks))
        a("v_mfma_f32_32x32x16_bf16 %s, %s, %s, %s" % (
            vr(V_S[0], 16), vr(POOL + 4 * ks, 4), vr(V_Q + 4 * ks, 4), "0" if ks == 0 else vr(V_S[0], 16)))

    def block_max(S, mx, t2):
        a("v_max3_f32 v%d, v%d, v%d, v%d" % (mx, S, S + 1, S + 2))
        for i in range(3, 15, 2):
            a("v_max3_f32 v%d, v%d, v%d, v%d" % (mx, mx, S + i, S + i + 1))
        a("v_max_f32 v%d, v%d, v%d" % (mx, mx, S + 15))
        a("v_mov_b32 v%d, v%d" % (t2, mx))
        a("s_nop 1")
        a("v_permlane32_swap_b32 v%d, v%d" % (t2, mx))
        a("s_nop 1")
        a("v_max_f32 v%d, v%d, v%d" % (mx, mx, t2))

    stubs = []

    def sm_seq(par):
        S = V_S[par]
        tm = V_T
        out = []

        def fma(k):
            return ("v_fma_f32 v%d, v%d, s%d, v%d" % (tm[k % 8], S + k, S_C, V_NMC), 1, k // 8, 0)

        def ex(k):
            return ("v_exp_f32 v%d, v%d" % (tm[k % 8], tm[k % 8]), 2, k // 8, 0)

        def cvt(p):
            return ("v_cvt_pk_bf16_f32 v%d, v%d, v%d" % (V_P + p, tm[(2 * p) % 8], tm[(2 * p + 1) % 8]), 1, p // 4,
                    17 if p < 4 else 23)

        def add(k):
            if k == 1:
                return ("v_add_f32 v%d, v%d, v%d" % (V_BS, tm[0], tm[1]), 1, 0, 0)
            return ("ADD %d" % k, 1, k // 8, 0)
        for hf in range(2):
            o = 8 * hf
            p = 4 * hf
            out += [fma(o), fma(o + 1), ex(o), fma(o + 2), ex(o + 1), fma(o + 3), ex(o + 2), fma(o + 4), ex(o + 3)]
            if hf:
                out += [add(o)]
            out += [add(o + 1), fma(o + 5), ex(o + 4), cvt(p), add(o + 2), fma(o + 6), ex(o + 5), cvt(p + 1), add(o + 3),
                    fma(o + 7), ex(o + 6), add(o + 4), ex(o + 7), cvt(p + 2), add(o + 5), add(o + 6), cvt(p + 3),
                    add(o + 7)]
        return out

    def schedule(par, duty):
        gaps = {g: [] for g in range(BG, BG + 26)}
        load = {g: 0.0 for g in range(24)}
        load[BG % 24] += 2
        load[(BG - 2) % 24] += 4
        load[(BG - 1) % 24] += 6
        load[23] += 2

        def put(it, g):
            it.gap = g
            gaps[g].append(it)
            load[g % 24] += it.cost
        put(Item(["MASK %d" % par], 2, 0, 0, "mask"), max(SM0, BG))
        if duty:
            put(Item(["DUTYLD"], 2, 0, 0, "duty"), BG + 2)
            put(Item(["DUTYWAIT"], 6, 0, 0, "duty"), BG + 24 - 4)
        kg = []
        g = BG
        for i in range(12):
            g = max(g, 12 + i)
            while kg.count(g) >= (2 if g < BG + 2 else 1):
                g += 1
            kg.append(g)
            put(Item("ds_read_b128 %s, v%d offset:%d" % (vr(POOL + 4 * i, 4), V_KB[i & 3], (i >> 2) * 4096),
                     1, 0, 0, "K", ("F", i)), g)
            assert g <= 24 + i - 4
        for idx in range(12):
            s, t = divmod(idx, 6)
            for u in range(2):
                put(Item("ds_read_b64_tr_b16 %s, v%d offset:%d" % (
                    vr(POOL + 4 * idx + 2 * u, 2), V_VB[t & 1], HB + (16 * s + 8 * u) * 128 + (t >> 1) * 4096),
                    1, 0, 0, "V%d" % s, ("F", idx)), 24 + idx)
        e, l = max(SM0, BG), SM1
        its = [Item(txt, cost, max(mg, 24 if hf else 0), l, "sm", half=hf) for txt, cost, hf, mg in sm_seq(par)]
        its.append(Item(["CHECK %d 2" % par], 3, 0, l, "chk"))
        tot = sum(v.cost for v in its) + sum(load[g % 24] for g in range(e, l + 1))
        target = tot / (l - e + 1)
        g = e
        exc = 0.0
        for it in its:
            while g < l and (load[g % 24] + it.cost / 2.0 > target + exc or g < it.early):
                exc += target - load[g % 24]
                g += 1
            put(it, g)
        return gaps, load

    def mfma_for(slot, par):
        if slot < 12:
            Sn = V_S[par ^ 1]
            txt = "v_mfma_f32_32x32x16_bf16 %s, %s, %s, %s" % (
                vr(Sn, 16), vr(POOL + 4 * slot, 4), vr(V_Q + 4 * slot, 4), "0" if slot == 0 else vr(Sn, 16))
            return txt, ("F", slot), "qk"
        idx = slot - 12
        s, t = divmod(idx, 6)
        txt = "v_mfma_f32_32x32x16_bf16 %s, %s, %s, %s" % (
            vr(V_O + 16 * t, 16), vr(POOL + 4 * idx, 4), vr(V_P + 4 * s, 4), vr(V_O + 16 * t, 16))
        return txt, ("F", idx), "pv%d" % s

    def emit_lines(lines, tailmode=False):
        for ln in lines:
            if ln.startswith("CHECK"):
                _, par, mode = ln.split()
                stub, back = a.newlabel("slow"), a.newlabel("back")
                a("v_cmp_lt_f32 vcc, s%d, v%d" % (S_THR, V_BS))
                a("s_cbranch_vccnz %s" % stub)
                a.label(back)
                a("v_add_f32 v%d, v%d, v%d" % (V_L, V_L, V_BS))
                stubs.append((stub, "L_slow_%s_%s" % (par, mode), back))
            elif ln.startswith("MASK"):
                _, par = ln.split()
                stub, back = a.newlabel("mstub"), a.newlabel("mback")
                a("s_cmp_eq_u32 s%d, s%d" % (S_J, S_NF))
                a("s_cbranch_scc1 %s" % stub)
                a.label(back)
                stubs.append((stub, "L_mask_%s" % par, back))
            elif ln.startswith("ADD"):
                k = int(ln.split()[1])
                if tailmode and k == 8:
                    a("v_mov_b32 v%d, v%d" % (V_BS, V_T[0]))
                else:
                    a("v_add_f32 v%d, v%d, v%d" % (V_BS, V_BS, V_T[k % 8]))
            elif ln == "DUTYLD":
                stub, back = a.newlabel("dl"), a.newlabel("dlb")
                a("s_cmp_lt_u32 s%d, s%d" % (S_LN, S_NKB))
                a("s_cbranch_scc1 %s" % stub)
                a.label(back)
                stubs.append((stub, "L_dutyld", back))
            elif ln == "DUTYWAIT":
                a("s_add_u32 s%d, s%d, 1" % (S_NEED, S_NEED))
                wait_cascade(3)
            else:
                a(ln)

    def skip_item(it):
        return ("L" in abl and it.writes is not None) or ("S" in abl and it.kind in ("sm", "chk"))

    def emit_stream(seq, outstanding, tailmode=False):
        issued = list(outstanding)
        done = 0
        for idx, e in enumerate(seq):
            if e[0] == "m":
                frag = e[2]
                need = max([k for k, fr in enumerate(issued) if fr == frag], default=-1) + 1
                if need > done:
                    tgt = need
                    cnt = 0
                    for e2 in seq[idx + 1:]:
                        if e2[0] == "m":
                            n2 = max([k for k, fr in enumerate(issued) if fr == e2[2]], default=-1) + 1
                            if n2 > tgt and n2 <= len(issued) - 6 and cnt < 5:
                                tgt = n2
                                cnt += 1
                            else:
                                break
                    n = len(issued) - tgt
                    a("s_waitcnt lgkmcnt(%d)" % min(15, n))
                    done = len(issued) - min(15, n)
                a(e[1])
            elif e[0] == "i":
                it = e[1]
                if skip_item(it):
                    continue
                emit_lines(it.lines, tailmode)
                if it.writes is not None:
                    issued.append(it.writes)
            elif e[0] == "bar":
                a("s_waitcnt lgkmcnt(0)")
                a("s_barrier")
                issued, done = [], 0
            elif e[0] == "raw":
                emit_lines([e[1]], tailmode)
            elif e[0] == "label":
                a.label(e[1])

    def addr_lines():
        return (["v_add_u32 v%d, s%d, v%d" % (V_KB[0], S_SLOT, V_KA0), "v_add_u32 v%d, s%d, v%d" % (V_VB[0], S_SLOT, V_VA0)] +
                ["v_xor_b32 v%d, %d, v%d" % (V_KB[j], 32 * j, V_KB[0]) for j in range(1, 4)] +
                ["v_xor_b32 v%d, 64, v%d" % (V_VB[1], V_VB[0])])

    def compute_path(duty):
        sfx = "d" if duty else "n"
        scheds = [schedule(0, duty), schedule(1, duty)]
        sys.stderr.write("gap loads (%s): %s\n" % (sfx, " ".join("%.0f" % scheds[0][1][g] for g in range(24))))

        def next_items(par):
            return [it for g in range(BG, 24) for it in scheds[par][0][g]]

        def nfr(par):
            return [it.writes for it in next_items(par) if it.writes is not None and not skip_item(it)]

        def body(par):
            cur, nxt = scheds[par][0], scheds[par ^ 1][0]
            seq = []
            for slot in range(24):
                txt, frag, kind = mfma_for(slot, par)
                seq.append(("m", txt, frag))
                for it in cur.get(slot + 24, []):
                    seq.append(("i", it))
                if slot == BG - 2:
                    seq += [("raw", "s_add_u32 s%d, s%d, s%d" % (S_SLOT, S_SLOT, S_STEP)),
                            ("raw", "s_sub_u32 s%d, s%d, %d" % (S_TMP3, S_SLOT, RING)),
                            ("raw", "s_cselect_b32 s%d, s%d, s%d" % (S_SLOT, S_SLOT, S_TMP3)),
                            ("raw", "s_add_u32 s%d, s%d, 1" % (S_J, S_J))]
                if slot == BG - 1:
                    seq += [("raw", x) for x in addr_lines()]
                if slot == BG:
                    seq.append(("bar",))
                if slot >= BG:
                    for it in nxt.get(slot, []):
                        seq.append(("i", it))
            return seq

        def tail(par):
            cur = scheds[par][0]
            rest = [it for g in range(24, BG + 26) for it in cur[g]]
            assert all(it.half != 1 for it in next_items(par)), "second half started too early"
            vreads = [it for it in rest if it.kind in ("V0", "V1")]
            h0 = [it for it in rest if it.kind == "sm" and it.half == 0]
            h1 = [it for it in rest if it.kind == "sm" and it.half == 1]
            seq = []
            v0 = [it for it in vreads if it.kind == "V0"]
            v1 = [it for it in vreads if it.kind == "V1"]
            k = 0
            for it in v0:
                seq.append(("i", it))
                if k < len(h0):
                    seq.append(("i", h0[k]))
                    k += 1
            for it in h0[k:]:
                seq.append(("i", it))
            seq.append(("raw", "CHECK %d 0" % par))
            seq.append(("raw", "s_cmp_le_u32 s%d, 16" % S_NVAL))
            seq.append(("raw", "s_cbranch_scc1 L_short_%s%d" % (sfx, par)))
            k = 0
            kv = 0
            per = (len(h1) + 5) // 6
            for t in range(6):
                txt, frag, kind = mfma_for(12 + t, par)
                seq.append(("m", txt, frag))
                for it in v1[2 * t:2 * t + 2]:
                    seq.append(("i", it))
                for it in h1[k:k + per]:
                    seq.append(("i", it))
                k += per
            seq.append(("raw", "CHECK %d 1" % par))
            for t in range(6):
                txt, frag, kind = mfma_for(18 + t, par)
                seq.append(("m", txt, frag))
            seq.append(("raw", "s_branch L_epi"))
            short = [("label", "L_short_%s%d" % (sfx, par)), ("raw", "s_waitcnt lgkmcnt(0)")]
            for t in range(6):
                txt, frag, kind = mfma_for(12 + t, par)
                short.append(("raw", txt))
            short.append(("raw", "s_branch L_epi"))
            return seq, short

        if duty:
            a("s_add_u32 s%d, s%d, %d" % (S_LIM, S_LN, RAMPD))
            a("s_min_u32 s%d, s%d, s%d" % (S_LIM, S_LIM, S_DEPTH))
            load_upto(S_LIM, 3)
            a("s_add_u32 s%d, s%d, 1" % (S_NEED, S_NEED))
            wait_cascade(3)
        for x in addr_lines():
            a(x)
        a("s_nop 6")
        block_max(V_S[0], V_M, V_T[1])
        a("v_mul_f32 v%d, s%d, v%d" % (V_NMC, S_C, V_M))
        a("v_sub_f32 v%d, 0, v%d" % (V_NMC, V_NMC))
        emit_stream([("bar",)] + [("i", it) for it in next_items(0)], [])
        a.label("L_loop_" + sfx)
        emit_stream(body(0), nfr(0))
        a("s_cmp_eq_u32 s%d, s%d" % (S_J, S_NF))
        a("s_cbranch_scc1 L_tail1_" + sfx)
        emit_stream(body(1), nfr(1))
        a("s_cmp_lg_u32 s%d, s%d" % (S_J, S_NF))
        a("s_cbranch_scc1 L_loop_" + sfx)
        t0, s0 = tail(0)
        t1, s1 = tail(1)
        emit_stream(t0, nfr(0), True)
        a.label("L_tail1_" + sfx)
        emit_stream(t1, nfr(1), True)
        emit_stream(s0, [], True)
        emit_stream(s1, [], True)

    a("s_cmp_lg_u32 s%d, 0" % S_NP)
    a("s_cbranch_scc1 L_duty_path")
    compute_path(False)
    a.label("L_duty_path")
    compute_path(True)

    a.label("L_epi")
    stamp(5)
    a("s_add_u32 s%d, s%d, s%d" % (S_TMP, S_SLOT, S_SCR))
    a("s_sub_u32 s%d, s%d, %d" % (S_TMP2, S_TMP, RING))
    a("s_cselect_b32 s%d, s%d, s%d" % (S_TMP, S_TMP, S_TMP2))
    a("v_mov_b32 v%d, v%d" % (V_T[0], V_L))
    q, hh = V_T[1], V_T[2]
    a("v_and_b32 v%d, 31, v%d" % (q, V_LANE))
    a("v_lshrrev_b32 v%d, 5, v%d" % (hh, V_LANE))
    a("v_permlane32_swap_b32 v%d, v%d" % (V_T[0], V_L))
    a("v_lshlrev_b32 v%d, 7, v%d" % (V_T[3], q))
    a("v_add_f32 v%d, v%d, v%d" % (V_L, V_L, V_T[0]))
    a("v_and_b32 v%d, 7, v%d" % (q, q))
    a("v_rcp_f32 v%d, v%d" % (V_L, V_L))
    a("v_lshl_add_u32 v%d, v%d, 4, v%d" % (V_T[3], q, V_T[3]))
    a("v_lshl_add_u32 v%d, v%d, 3, v%d" % (V_T[3], hh, V_T[3]))
    a("v_mov_b32 v%d, v%d" % (V_M, V_L))
    a("v_add_u32 v%d, s%d, v%d" % (POOL, S_TMP, V_T[3]))
    for c in range(1, 8):
        a("v_xor_b32 v%d, %d, v%d" % (POOL + c, 16 * c, POOL))
    for t in range(6):
        for g in range(4):
            o = V_O + 16 * t + 4 * g
            d = V_P + 2 * ((4 * t + g) % 4)
            a("v_pk_mul_f32 %s, %s, %s" % (vr(o, 2), vr(o, 2), vr(V_L, 2)))
            a("v_pk_mul_f32 %s, %s, %s" % (vr(o + 2, 2), vr(o + 2, 2), vr(V_L, 2)))
            a("v_cvt_pk_bf16_f32 v%d, v%d, v%d" % (d, o, o + 1))
            a("v_cvt_pk_bf16_f32 v%d, v%d, v%d" % (d + 1, o + 2, o + 3))
            c = 4 * t + g
            a("ds_write_b64 v%d, %s offset:%d" % (POOL + (c & 7), vr(d, 2), (c >> 3) * 4096))
    a("v_lshlrev_b32 v%d, 4, v%d" % (V_T[4], V_LANE))
    a("v_add_u32 v%d, s%d, v%d" % (POOL + 8, S_TMP, V_T[4]))
    a("v_lshrrev_b32 v%d, 3, v%d" % (V_T[0], V_LANE))
    a("v_and_b32 v%d, 7, v%d" % (V_T[1], V_LANE))
    a("v_xor_b32 v%d, v%d, v%d" % (V_T[1], V_T[1], V_T[0]))
    a("v_mul_u32_u24 v%d, %d, v%d" % (V_T[0], RS, V_T[0]))
    a("v_lshl_add_u32 v%d, v%d, 4, v%d" % (V_T[0], V_T[1], V_T[0]))
    a("v_add_u32 v%d, s%d, v%d" % (POOL + 9, S_QOFF, V_T[0]))
    for rg in range(1, 4):
        a("v_add_u32 v%d, %d, v%d" % (POOL + 9 + rg, rg * 8 * RS, POOL + 9))
    stamp(6)
    a("s_waitcnt lgkmcnt(0)")
    order = [(rg, lc) for rg in range(4) for lc in range(3)]
    for j, (rg, lc) in enumerate(order):
        a("ds_read_b128 %s, v%d offset:%d" % (vr(V_O + 4 * j, 4), POOL + 8, lc * 4096 + rg * 1024))
    for j, (rg, lc) in enumerate(order):
        a("s_waitcnt lgkmcnt(%d)" % (11 - j))
        a("buffer_store_dwordx4 %s, v%d, %s, 0 offen offset:%d %s" % (
            vr(V_O + 4 * j, 4), POOL + 9 + rg, sr(SRD_O, 4), lc * 128, stf))
    stamp_flush()
    a("s_endpgm")

    for stub, target, back in stubs:
        a.label(stub)
        a("s_call_b64 %s, %s" % (sr(S_RET, 2), target))
        a("s_branch %s" % back)
    a.label("L_dutyld")
    load_body(3)
    a("s_setpc_b64 %s" % sr(S_RET, 2))
    for par in range(2):
        S = V_S[par]
        a.label("L_mask_%d" % par)
        a("s_nop 7")
        a("v_lshrrev_b32 v%d, 5, v%d" % (V_T[1], V_LANE))
        a("v_lshlrev_b32 v%d, 2, v%d" % (V_T[1], V_T[1]))
        a("v_mov_b32 v%d, 0xff800000" % V_T[0])
        for g in range(4):
            for i in range(4):
                a("s_sub_u32 s%d, s%d, %d" % (S_TMP2, S_NVAL, 8 * g + i))
                a("v_cmp_gt_i32 vcc, s%d, v%d" % (S_TMP2, V_T[1]))
                a("s_nop 1")
                a("v_cndmask_b32 v%d, v%d, v%d, vcc" % (S + 4 * g + i, V_T[0], S + 4 * g + i))
        a("s_setpc_b64 %s" % sr(S_RET, 2))
    a.label("L_rescale")
    mx, t2 = V_T[0], V_T[1]
    a("v_max_f32 v%d, v%d, v%d" % (mx, mx, V_M))
    a("v_sub_f32 v%d, v%d, v%d" % (t2, V_M, mx))
    a("v_mul_f32 v%d, s%d, v%d" % (t2, S_C, t2))
    a("v_exp_f32 v%d, v%d" % (t2, t2))
    a("v_mov_b32 v%d, v%d" % (V_M, mx))
    a("v_mul_f32 v%d, s%d, v%d" % (V_NMC, S_C, mx))
    a("v_sub_f32 v%d, 0, v%d" % (V_NMC, V_NMC))
    a("v_mul_f32 v%d, v%d, v%d" % (V_L, V_L, t2))
    for i in range(96):
        a("v_mul_f32 v%d, v%d, v%d" % (V_O + i, V_O + i, t2))
    a("s_setpc_b64 %s" % sr(S_RET2, 2))
    for par in range(2):
        for mode in range(3):
            S = V_S[par]
            a.label("L_slow_%d_%d" % (par, mode))
            a("s_nop 15")
            block_max(S, mx, t2)
            a("s_call_b64 %s, L_rescale" % sr(S_RET2, 2))
            first = True
            for hf in ([0, 1] if mode == 2 else [mode]):
                for k in range(8):
                    a("v_fma_f32 v%d, v%d, s%d, v%d" % (V_T[k], S + 8 * hf + k, S_C, V_NMC))
                for k in range(8):
                    a("v_exp_f32 v%d, v%d" % (V_T[k], V_T[k]))
                a("s_nop 0")
                for p in range(4):
                    a("v_cvt_pk_bf16_f32 v%d, v%d, v%d" % (V_P + 4 * hf + p, V_T[2 * p], V_T[2 * p + 1]))
                for k in range(8):
                    if first:
                        a("v_mov_b32 v%d, v%d" % (V_BS, V_T[k]))
                        first = False
                    else:
                        a("v_add_f32 v%d, v%d, v%d" % (V_BS, V_BS, V_T[k]))
            a("s_setpc_b64 %s" % sr(S_RET, 2))
    a.lines.append(".p2align 6")
    a.lines.append(".type L_table,@object")
    a.label("L_table")
    for d in TABLE:
        a(".long " + ", ".join("0x%x" % x for x in d))
    a.lines.append(".size L_table, %d" % (64 * len(TABLE)))

    hdr = open("cdna_kernels/%s.s.ref" % NAME).read().split("\n")
    out = []
    for ln in hdr:
        if ln.startswith("; @launch"):
            out.append("; @launch grid=(256,1,1) block=(512,1,1) lds=%d" % LDS_TOTAL)
        elif ln.startswith(";"):
            out.append(ln)
        else:
            break
    out += [
        '.amdgcn_target "amdgcn-amd-amdhsa--gfx950"',
        ".text",
        ".globl %s_kernel" % NAME,
        ".p2align 8",
        ".type %s_kernel,@function" % NAME,
    ]
    out += a.lines
    out += [
        '.section .rodata,"a"',
        ".p2align 6",
        ".amdhsa_kernel %s_kernel" % NAME,
        "  .amdhsa_next_free_vgpr 256",
        "  .amdhsa_next_free_sgpr 96",
        "  .amdhsa_accum_offset 256",
        "  .amdhsa_group_segment_fixed_size 0",
        "  .amdhsa_kernarg_size 56",
        "  .amdhsa_user_sgpr_count 2",
        "  .amdhsa_user_sgpr_kernarg_segment_ptr 1",
        "  .amdhsa_system_sgpr_workgroup_id_x 1",
        ".end_amdhsa_kernel",
        "",
    ]
    return "\n".join(out)


def parse_plan(s):
    out = []
    for (seq, parts, _, _, _), x in zip(DEFAULT_PLAN, s.split(",")):
        qg, npre, thr = x.split(".")
        out.append((seq, parts, int(qg), int(npre), int(thr)))
    return out


if __name__ == "__main__":
    dst = sys.argv[1] if len(sys.argv) > 1 and not sys.argv[1].startswith("--") else "cdna_kernels/%s.s" % NAME

    def opt(n, d):
        for x in sys.argv:
            if x.startswith("--" + n + "="):
                return x.split("=", 1)[1].replace("+", " ")
        return d
    plan = parse_plan(opt("plan", "")) if opt("plan", "") else None
    open(dst, "w").write(gen(stamps=(2 if "--dbg" in sys.argv else 1 if "--stamps" in sys.argv else 0), qf=opt("qf", "nt"), kvf=opt("kvf", "nt"),
                             stf=opt("stf", ""), BG=int(opt("bg", "14")), rot="--rot" in sys.argv, abl=opt("abl", ""),
                             plan=plan, SM0=int(opt("sm0", "14")), SM1=int(opt("sm1", "35")),
                             RAMP=int(opt("ramp", "1")), NPF=int(opt("npf", "2")),
                             PFWAIT=int(opt("pfwait", "1")), RAMPD=int(opt("rampd", "2")),
                             pfspec=([] if "--nopf" in sys.argv else None)))
    print("wrote", dst)
```

```python
import math
import struct
import sys

NAME = "standalone__varlen_attn_packed__ragged"
CU = [0, 238, 376, 669, 835, 1320, 1545, 1865, 2058]
T, H, D = 2058, 16, 192
RS = H * D * 2
HB = 12288
BLK = 2 * HB
NSLOT = 6
LDS_TOTAL = 163840
CSCALE = (D ** -0.5) * math.log2(math.e)
THR = 1024.0


def f32(x):
    return struct.unpack("<I", struct.pack("<f", x))[0]


RING = NSLOT * BLK
NKB = [(CU[i + 1] - CU[i] + 31) // 32 for i in range(8)]

DEFAULT_PLAN = [(4, [4, 4, 4, 4], 0, 2, 0), (7, [7], 0, 2, 0), (3, [6], 1, 3, 0),
                (6, [4, 4, 2], 1, 2, 0), (2, [4, 4, 2], 1, 2, 0), (1, [5], 1, 3, 0), (0, [4, 4], 1, 2, 0),
                (5, [4, 4], 1, 2, 0)]


def make_wgs(plan):
    wgs = []
    for seq, parts, win, npre, rot in plan:
        nf = NKB[seq] - 1
        t0 = 0
        assert sum(parts) == NKB[seq]
        for r, nt in enumerate(parts):
            rr = ((r * nf) // len(parts)) if rot else 0
            if nt == 2:
                wgs.append(dict(seq=seq, t0=t0, nt=4, dual=True, hb=0, rot=rr, win=win, npre=min(npre, 1)))
            else:
                for hb in range(2):
                    wgs.append(dict(seq=seq, t0=t0, nt=nt, dual=False, hb=hb, rot=rr, win=win,
                                    npre=min(npre, 5 - (nt - 1) // 2)))
            t0 += nt
    assert len(wgs) == 32, len(wgs)
    return wgs


def prefetch_list(spec):
    items = []
    for ten, seq, b0, b1 in spec:
        for b in range(b0, b1 + 1):
            for rg in range(4):
                row = CU[seq] + 32 * b + 8 * rg
                if row < CU[seq + 1]:
                    items.append((ten, row))
    return items


def default_pf():
    spec = []
    for b in range(0, 6):
        spec += [("K", 4, b + 1, b + 1), ("V", 4, b, b)]
        if b < 3:
            spec += [("K", 7, b + 1, b + 1), ("V", 7, b, b)]
    return spec


def wave_desc(wg, w, pf):
    seq, nt, dual = wg["seq"], wg["nt"], wg["dual"]
    s0, s1 = CU[seq], CU[seq + 1]
    nkb = NKB[seq]
    nval = (s1 - s0) - 32 * (nkb - 1)
    step = 2 * BLK if dual else BLK
    ns = RING // step
    compute = w < nt
    if dual:
        hb = (w >> 1) & 1
        tile = wg["t0"] + (w & 1)
        so = hb * BLK
        qlds = [12 * HB, 9 * HB, 11 * HB, 7 * HB][w & 3]
        if w >= 4:
            isk, nrg, rg0 = 1 - (w & 1), 4, 0
        else:
            isk, nrg, rg0 = 0, 0, 0
    else:
        hb = wg["hb"]
        tile = wg["t0"] + w
        so = 0
        qlds = (12 - w - (1 if w >= 2 else 0)) * HB
        if nt > 4:
            isk, nrg, rg0 = (1 if w < 4 else 0), 1, w & 3
        elif w >= 4:
            isk, nrg, rg0 = (1 if w < 6 else 0), 2, 2 * (w & 1)
        else:
            isk, nrg, rg0 = 0, 0, 0
    role = (3 if nrg else 2) if compute else (1 if nrg else 0)
    d0 = role | (isk << 2) | (nrg << 3) | ((rg0 & 1) << 6) | (wg["win"] << 8) | (nkb << 10) | (nval << 16) | \
        (wg["rot"] << 22) | (len(pf) << 26)
    k0 = RING - step + so
    ldst0 = (k0 if isk else so + HB) + rg0 * 1024
    d = [d0, s1 * RS, (s0 + 32 * tile) * RS + hb * 384, qlds, (s0 + 8 * rg0) * RS + hb * 384, ldst0, step,
         wg["npre"] + isk, ns - 1 + isk, so, k0, step - so + w * HB]
    for ten, row in pf:
        d.append(row * RS | ((1 << 31) if ten == "V" else 0))
    d += [0] * (16 - len(d))
    return d


def make_table(plan, pfspec, npf):
    wgs = make_wgs(plan)
    items = prefetch_list(pfspec)
    slots = [(j, w) for w in range(8) for j, wg in enumerate(wgs) if wg["win"] > 0 and w < wg["nt"]]
    assign = {}
    for k, it in enumerate(items):
        key = slots[k % len(slots)]
        if len(assign.setdefault(key, [])) < npf:
            assign[key].append(it)
    tab = []
    for j, wg in enumerate(wgs):
        for w in range(8):
            tab.append(wave_desc(wg, w, assign.get((j, w), [])))
    return wgs, tab


class Asm:
    def __init__(self):
        self.lines = []
        self.nlabel = 0

    def __call__(self, s):
        self.lines.append("    " + s)

    def label(self, name):
        self.lines.append(name + ":")

    def newlabel(self, base):
        self.nlabel += 1
        return "L_%s_%d" % (base, self.nlabel)


def vr(lo, n):
    return "v[%d:%d]" % (lo, lo + n - 1)


def sr(lo, n):
    return "s[%d:%d]" % (lo, lo + n - 1)


class Item:
    def __init__(self, lines, cost, early, late, kind, writes=None, half=None):
        self.lines = lines if isinstance(lines, list) else [lines]
        self.cost, self.early, self.late, self.kind = cost, early, late, kind
        self.writes = writes
        self.half = half
        self.gap = None


def gen(stamps=False, qf="nt", kvf="nt", stf="", plan=None, BG=14, rot=False, abl="", SM0=14, SM1=35, RAMP=1, NIMM=1, pfspec=None, NPF=2, PFWAIT=1, RAMPD=2):
    a = Asm()
    WGS, TABLE = make_table(plan or DEFAULT_PLAN, default_pf() if pfspec is None else pfspec, NPF)
    NST = 8
    DBGWG = [0, 70, 133, 255]
    S_ST = 64

    V_LANE = 0
    V_T = list(range(1, 9))
    V_KA0, V_VA0 = 9, 10
    V_KB = [11, 12, 13, 14]
    V_VB = [15, 16]
    V_DE, V_DO = 17, 18
    V_L, V_M, V_BS, V_NMC = 20, 21, 22, 23
    POOL = 24
    V_P = 72
    V_S = [80, 96]
    V_Q = 112
    V_O = 160
    S_Q, S_K, S_V, S_OUT = 4, 6, 8, 12
    S_WIN, S_XB = 14, 15
    SRD_Q, SRD_KV, SRD_O = 16, 20, 24
    S_W = 28
    S_TMP, S_TMP2, S_TMP3, S_LIM = 29, 30, 31, 91
    S_CF = 32
    S_FL, S_NREC, S_QOFF, S_QLDS, S_GOFF, S_LDST, S_STEP, S_NPRE, S_DEPTH, S_SLOT, S_K0, S_SCR = range(32, 44)
    S_PF = 44
    S_NKB, S_NF, S_NVAL, S_J = 48, 49, 50, 51
    S_LN, S_LB, S_ISK, S_NP, S_REM, S_NEED = 52, 53, 54, 55, 62, 63
    S_C, S_THR = 56, 57
    S_RET = 58
    S_RET2 = 60
    S_PC = 92
    WINS = [0, 4, 2, 1]

    def stamp(i, real=False):
        if stamps:
            a(("s_memrealtime %s" if real else "s_memtime %s") % sr(S_ST + 2 * i, 2))
            a("s_waitcnt lgkmcnt(0)")

    def stamp_flush(iters=False):
        if not stamps:
            return
        a("s_waitcnt vmcnt(0)")
        stamp(1, True)
        stamp(7)
        if stamps == 2:
            lab = a.newlabel("dbg")
            a("s_cmp_lg_u32 s%d, 0" % S_W)
            a("s_cbranch_scc1 %s" % lab)
            a("s_mov_b32 s83, 99")
            for k, wg in enumerate(DBGWG):
                a("s_cmp_eq_u32 s2, %d" % wg)
                a("s_cselect_b32 s83, %d, s83" % k)
            a("s_cmp_eq_u32 s83, 99")
            a("s_cbranch_scc1 %s" % lab)
            a("s_load_dwordx2 s[80:81], s[0:1], 40")
            a("s_waitcnt lgkmcnt(0)")
            a("s_mov_b32 s84, s80")
            a("s_mov_b32 s85, s81")
            a("s_mov_b32 s86, 256")
            a("s_mov_b32 s87, 0x00020000")
            a("s_mov_b64 exec, 1")
            a("s_lshl_b32 s83, s83, 4")
            a("v_mov_b32 v1, s83")
            a("v_mov_b32 v4, s%d" % S_ST)
            a("v_mov_b32 v5, s%d" % (S_ST + 2))
            a("s_sub_u32 s82, s%d, s%d" % (S_ST + 8, S_ST + 4))
            a("v_mov_b32 v6, s82")
            a("s_sub_u32 s82, s%d, s%d" % (S_ST + 14, S_ST + 4))
            a("v_mov_b32 v7, s82")
            a("buffer_store_dwordx4 v[4:7], v1, s[84:87], 0 offen")
            a.label(lab)
            return
        a("s_load_dwordx2 s[80:81], s[0:1], 48")
        a("s_waitcnt lgkmcnt(0)")
        a("s_mov_b32 s84, s80")
        a("s_mov_b32 s85, s81")
        a("s_mov_b32 s86, 0x100000")
        a("s_mov_b32 s87, 0x00020000")
        a("s_lshl_b32 s82, s2, 3")
        a("s_add_u32 s82, s82, s%d" % S_W)
        a("s_mul_i32 s83, s82, %d" % (NST * 8))
        a("v_mov_b32 v1, s83")
        a("s_mov_b64 exec, 1")
        for i in range(NST):
            a("v_mov_b32 v2, s%d" % (S_ST + 2 * i))
            a("v_mov_b32 v3, s%d" % (S_ST + 2 * i + 1))
            a("buffer_store_dwordx2 v[2:3], v1, s[84:87], 0 offen offset:%d" % (8 * i))
            a("s_nop 1")
        if iters:
            a("s_mov_b64 exec, -1")
            a("s_lshl_b32 s82, s82, 8")
            a("s_add_u32 s82, s82, 0x80000")
            a("v_lshlrev_b32 v1, 2, v0")
            a("v_add_u32 v1, s82, v1")
            a("buffer_store_dword v90, v1, s[84:87], 0 offen")

    a.label(NAME + "_kernel")
    a("s_cmp_ge_u32 s2, 256")
    a("s_cbranch_scc1 L_end")
    stamp(0, True)
    stamp(2)
    a("s_load_dwordx8 s[4:11], s[0:1], 0")
    a("s_load_dwordx2 s[12:13], s[0:1], 32")
    a("v_lshrrev_b32 v1, 6, v0")
    a("s_getpc_b64 %s" % sr(S_PC, 2))
    a.label("L_pc")
    a("v_readfirstlane_b32 s%d, v1" % S_W)
    a("s_and_b32 s%d, s2, 0xf8" % S_TMP)
    a("s_add_u32 s%d, s%d, L_table-L_pc" % (S_PC, S_PC))
    a("s_addc_u32 s%d, s%d, 0" % (S_PC + 1, S_PC + 1))
    a("s_add_u32 s%d, s%d, s%d" % (S_TMP, S_TMP, S_W))
    a("s_lshl_b32 s%d, s%d, 6" % (S_TMP, S_TMP))
    a("s_load_dwordx16 %s, %s, s%d" % (sr(S_CF, 16), sr(S_PC, 2), S_TMP))
    a("v_and_b32 v0, 63, v0")
    a("s_and_b32 s%d, s2, 7" % S_XB)
    a("s_mul_i32 s%d, s%d, 768" % (S_XB, S_XB))
    a("v_lshrrev_b32 v1, 3, v0")
    a("v_and_b32 v2, 7, v0")
    a("v_bfe_u32 v3, v0, 4, 2")
    a("v_bfe_u32 v4, v0, 4, 1")
    a("v_mul_u32_u24 v1, %d, v1" % RS)
    a("v_xor_b32 v3, v2, v3")
    a("v_lshlrev_b32 v4, 2, v4")
    a("v_xor_b32 v4, v2, v4")
    a("v_min_u32 v2, 5, v2")
    a("v_lshl_add_u32 v5, v3, 4, v1")
    a("v_lshl_add_u32 v7, v4, 4, v1")
    a("v_xor_b32 v6, 64, v5")
    a("v_lshl_add_u32 v8, v2, 7, v1")
    a("s_mov_b32 s%d, 0x00020000" % (SRD_Q + 3))
    a("s_mov_b32 s%d, 0x00020000" % (SRD_KV + 3))
    a("s_mov_b32 s%d, 0x00020000" % (SRD_O + 3))
    a("s_mov_b32 s%d, %d" % (SRD_KV + 2, T * RS))
    a("s_mov_b32 s%d, 0x%x" % (S_C, f32(CSCALE)))
    a("s_mov_b32 s%d, 0x%x" % (S_THR, f32(THR)))
    a("s_mov_b32 s%d, 0" % S_LN)
    a("s_waitcnt lgkmcnt(0)")
    stamp(3)
    a("s_mov_b32 s%d, s%d" % (SRD_Q, S_Q))
    a("s_mov_b32 s%d, s%d" % (SRD_Q + 1, S_Q + 1))
    a("s_mov_b32 s%d, s%d" % (SRD_Q + 2, S_NREC))
    a("s_add_u32 s%d, s%d, s%d" % (S_QOFF, S_QOFF, S_XB))
    a("s_bfe_u32 s%d, s%d, 0x20008" % (S_WIN, S_FL))
    a("s_bitcmp1_b32 s%d, 1" % S_FL)
    a("s_cbranch_scc0 L_noq")
    a("s_cmp_lg_u32 s%d, 0" % S_WIN)
    a("s_cbranch_scc1 L_qthr")

    def q_loads(win):
        for rg in range(4):
            a("s_add_u32 s%d, s%d, %d" % (S_TMP, S_QOFF, rg * 8 * RS))
            for lc in range(3):
                a("s_add_u32 m0, s%d, %d" % (S_QLDS, lc * 4096 + rg * 1024 - lc * 128))
                if win and 3 * rg + lc >= win:
                    a("s_waitcnt vmcnt(%d)" % (win - 1))
                else:
                    a("s_nop 0")
                a("buffer_load_dwordx4 v%d, %s, s%d offen offset:%d %s lds" % (5 + (rg & 1), sr(SRD_Q, 4), S_TMP, lc * 128, qf))
    q_loads(0)
    a("s_branch L_noq")
    a.label("L_qthr")
    a("s_bfe_u32 s%d, s%d, 0x3001a" % (S_TMP3, S_FL))
    for i in range(NPF):
        a("s_cmp_le_u32 s%d, %d" % (S_TMP3, i))
        a("s_cbranch_scc1 L_pfdone")
        a("s_bitcmp1_b32 s%d, 31" % (S_PF + i))
        a("s_cselect_b32 s%d, s%d, s%d" % (SRD_KV, S_V, S_K))
        a("s_cselect_b32 s%d, s%d, s%d" % (SRD_KV + 1, S_V + 1, S_K + 1))
        a("s_and_b32 s%d, s%d, 0xffffff" % (S_TMP, S_PF + i))
        a("s_add_u32 s%d, s%d, s%d" % (S_TMP, S_TMP, S_XB))
        a("buffer_load_dword v19, v8, %s, s%d offen %s" % (sr(SRD_KV, 4), S_TMP, kvf))
    a.label("L_pfdone")
    if PFWAIT:
        a("s_waitcnt vmcnt(0)")
    for wc in range(2, 4):
        a("s_cmp_eq_u32 s%d, %d" % (S_WIN, wc))
        a("s_cbranch_scc1 L_q%d" % wc)
    for wc in range(1, 4):
        a.label("L_q%d" % wc)
        q_loads(WINS[wc])
        if wc < 3:
            a("s_branch L_noq")
    a.label("L_noq")
    a("s_bfe_u32 s%d, s%d, 0x6000a" % (S_NKB, S_FL))
    a("s_bfe_u32 s%d, s%d, 0x60010" % (S_NVAL, S_FL))
    a("s_bfe_u32 s%d, s%d, 0x40016" % (S_LB, S_FL))
    a("s_bfe_u32 s%d, s%d, 0x10002" % (S_ISK, S_FL))
    a("s_bfe_u32 s%d, s%d, 0x30003" % (S_NP, S_FL))
    a("s_mul_i32 s%d, s%d, 3" % (S_NP, S_NP))
    a("s_sub_u32 s%d, s%d, 1" % (S_NF, S_NKB))
    a("s_mov_b32 s%d, s%d" % (SRD_KV + 2, S_NREC))
    a("s_mov_b32 s%d, s%d" % (SRD_O + 2, S_NREC))
    a("s_mov_b32 s%d, s%d" % (SRD_O, S_OUT))
    a("s_mov_b32 s%d, s%d" % (SRD_O + 1, S_OUT + 1))
    a("s_add_u32 s%d, s%d, s%d" % (S_GOFF, S_GOFF, S_XB))
    a("s_bitcmp1_b32 s%d, 6" % S_FL)
    a("s_cselect_b64 vcc, -1, 0")
    a("v_cndmask_b32 v%d, v5, v6, vcc" % V_DE)
    a("v_mov_b32 v%d, v6" % V_DO)
    a("s_cmp_eq_u32 s%d, 0" % S_ISK)
    a("s_cselect_b64 vcc, -1, 0")
    a("s_cselect_b32 s%d, s%d, s%d" % (SRD_KV, S_V, S_K))
    a("s_cselect_b32 s%d, s%d, s%d" % (SRD_KV + 1, S_V + 1, S_K + 1))
    a("v_cndmask_b32 v%d, v%d, v7, vcc" % (V_DE, V_DE))
    a("v_cndmask_b32 v%d, v%d, v7, vcc" % (V_DO, V_DO))
    a("s_mov_b32 s%d, s%d" % (S_NEED, S_ISK))

    def load_body(np_static, win=0, first=False):
        nop = ("s_waitcnt vmcnt(%d)" % (win - 1)) if win else "s_nop 0"
        a("s_cmp_eq_u32 s%d, s%d" % (S_LN, S_NF))
        a("s_cselect_b32 s%d, s%d, s%d" % (S_TMP, S_NF, S_LB))
        a("s_mul_i32 s%d, s%d, %d" % (S_TMP, S_TMP, 32 * RS))
        a("s_add_u32 s%d, s%d, s%d" % (S_TMP, S_TMP, S_GOFF))
        labd = a.newlabel("ldd")
        for rg in range(1 if np_static else 4):
            if rg:
                if rg != 3:
                    a("s_cmp_eq_u32 s%d, %d" % (S_NP, 3 * rg))
                    a("s_cbranch_scc1 %s" % labd)
                a("s_add_u32 s%d, s%d, %d" % (S_TMP, S_TMP, 8 * RS))
            for lc in range(3):
                a("s_add_u32 m0, s%d, %d" % (S_LDST, rg * 1024 + lc * 4096 - lc * 128))
                a(nop)
                a("buffer_load_dwordx4 v%d, %s, s%d offen offset:%d %s lds" % (
                    V_DO if rg & 1 else V_DE, sr(SRD_KV, 4), S_TMP, lc * 128, kvf))
                if first and rg == 0 and lc == 0:
                    lab = a.newlabel("fv")
                    a("s_cmp_lg_u32 s%d, 0" % S_ISK)
                    a("s_cbranch_scc1 %s" % lab)
                    a("s_waitcnt vmcnt(0)")
                    a.label(lab)
        a.label(labd)
        if first:
            lab = a.newlabel("fk")
            a("s_cmp_eq_u32 s%d, 0" % S_ISK)
            a("s_cbranch_scc1 %s" % lab)
            a("s_waitcnt vmcnt(2)")
            a.label(lab)
        a("s_add_u32 s%d, s%d, 1" % (S_LN, S_LN))
        a("s_add_u32 s%d, s%d, 1" % (S_LB, S_LB))
        a("s_cmp_ge_u32 s%d, s%d" % (S_LB, S_NF))
        a("s_cselect_b32 s%d, 0, s%d" % (S_LB, S_LB))
        a("s_add_u32 s%d, s%d, s%d" % (S_LDST, S_LDST, S_STEP))
        a("s_sub_u32 s%d, s%d, %d" % (S_TMP2, S_LDST, RING))
        a("s_cmp_ge_u32 s%d, %d" % (S_LDST, RING))
        a("s_cselect_b32 s%d, s%d, s%d" % (S_LDST, S_TMP2, S_LDST))

    def load_upto(limit_sgpr, np_static, win=0):
        top, done = a.newlabel("lu"), a.newlabel("lud")
        a("s_min_u32 s%d, s%d, s%d" % (limit_sgpr, limit_sgpr, S_NKB))
        a("s_cmp_ge_u32 s%d, s%d" % (S_LN, limit_sgpr))
        a("s_cbranch_scc1 %s" % done)
        a.label(top)
        load_body(np_static, win)
        a("s_cmp_lt_u32 s%d, s%d" % (S_LN, limit_sgpr))
        a("s_cbranch_scc1 %s" % top)
        a.label(done)

    def pre_loads(np_static):
        labs = [a.newlabel("pl") for _ in range(4)]
        done = a.newlabel("pld")
        for wc in range(1, 4):
            a("s_cmp_eq_u32 s%d, %d" % (S_WIN, wc))
            a("s_cbranch_scc1 %s" % labs[wc])
        if np_static is None:
            load_body(None, 0, True)
        load_upto(S_NPRE, np_static)
        a("s_branch %s" % done)
        for wc in range(1, 4):
            a.label(labs[wc])
            load_upto(S_NPRE, np_static, WINS[wc])
            if wc < 3:
                a("s_branch %s" % done)
        a.label(done)

    def wait_cascade(np_static):
        done = a.newlabel("wc")
        a("s_min_u32 s%d, s%d, s%d" % (S_REM, S_NEED, S_LN))
        a("s_sub_u32 s%d, s%d, s%d" % (S_REM, S_LN, S_REM))
        if np_static is None:
            a("s_mul_i32 s%d, s%d, s%d" % (S_REM, S_REM, S_NP))
            vals = sorted(set([3 * r for r in range(6)] + [6 * r for r in range(6)]), reverse=True)
            cmpv = vals
        else:
            vals = [np_static * r for r in range(5, -1, -1)]
            cmpv = list(range(5, -1, -1))
        for v, c in zip(vals[:-1], cmpv[:-1]):
            a("s_waitcnt vmcnt(%d)" % v)
            a("s_cmp_ge_u32 s%d, %d" % (S_REM, c))
            a("s_cbranch_scc1 %s" % done)
        a("s_waitcnt vmcnt(0)")
        a.label(done)

    a("s_bitcmp1_b32 s%d, 1" % S_FL)
    a("s_cbranch_scc1 L_compute")

    a("s_cmp_eq_u32 s%d, 0" % S_NP)
    a("s_cbranch_scc1 L_idle")
    pre_loads(None)
    wait_cascade(None)
    a("s_barrier")
    stamp(4)
    a("s_mov_b32 s%d, s%d" % (S_TMP3, S_DEPTH))
    a("s_mov_b32 s%d, 0" % S_J)
    if stamps:
        a("v_mov_b32 v90, 0")
    a.label("L_ld_loop")
    a("s_add_u32 s%d, s%d, %d" % (S_LIM, S_LN, RAMP))
    a("s_min_u32 s%d, s%d, s%d" % (S_LIM, S_LIM, S_TMP3))
    load_upto(S_LIM, None)
    a("s_add_u32 s%d, s%d, 1" % (S_NEED, S_NEED))
    wait_cascade(None)
    if stamps:
        a("s_memtime s[88:89]")
        a("s_waitcnt lgkmcnt(0)")
        a("s_add_u32 m0, s%d, 32" % S_J)
        a("s_nop 0")
        a("v_writelane_b32 v90, s88, m0")
    a("s_barrier")
    if stamps:
        a("s_memtime s[88:89]")
        a("s_waitcnt lgkmcnt(0)")
        a("s_mov_b32 m0, s%d" % S_J)
        a("s_nop 0")
        a("v_writelane_b32 v90, s88, m0")
    a("s_add_u32 s%d, s%d, 1" % (S_TMP3, S_TMP3))
    a("s_add_u32 s%d, s%d, 1" % (S_J, S_J))
    a("s_cmp_lt_u32 s%d, s%d" % (S_J, S_NKB))
    a("s_cbranch_scc1 L_ld_loop")
    stamp(5)
    stamp(6)
    stamp_flush(True)
    a("s_endpgm")
    a.label("L_idle")
    a("s_add_u32 s%d, s%d, 1" % (S_J, S_NKB))
    a.label("L_idle_loop")
    a("s_barrier")
    a("s_sub_u32 s%d, s%d, 1" % (S_J, S_J))
    a("s_cmp_lg_u32 s%d, 0" % S_J)
    a("s_cbranch_scc1 L_idle_loop")
    a.label("L_end")
    a("s_endpgm")

    a.label("L_compute")
    lab_nl = a.newlabel("nl")
    a("s_cmp_eq_u32 s%d, 0" % S_NP)
    a("s_cbranch_scc1 %s" % lab_nl)
    pre_loads(3)
    a.label(lab_nl)
    r, h, f, h4 = V_T[0], V_T[1], V_T[2], V_T[7]
    a("v_and_b32 v%d, 31, v%d" % (r, V_LANE))
    a("v_lshrrev_b32 v%d, 5, v%d" % (h, V_LANE))
    a("v_lshlrev_b32 v%d, 2, v%d" % (h4, h))
    a("v_bfe_u32 v%d, v%d, 1, 3" % (f, r))
    a("v_xor_b32 v%d, v%d, v%d" % (f, f, h))
    a("v_lshlrev_b32 v%d, 4, v%d" % (f, f))
    a("v_lshl_add_u32 v%d, v%d, 7, v%d" % (V_KA0, r, f))
    rr, c, dh, b = V_T[3], V_T[4], V_T[5], V_T[6]
    a("v_bfe_u32 v%d, v%d, 2, 2" % (rr, V_LANE))
    a("v_and_b32 v%d, 3, v%d" % (c, V_LANE))
    a("v_bfe_u32 v%d, v%d, 4, 1" % (dh, V_LANE))
    a("v_bfe_u32 v%d, v%d, 3, 1" % (b, V_LANE))
    a("v_add_u32 v%d, v%d, v%d" % (rr, rr, h4))
    a("v_lshlrev_b32 v%d, 7, v%d" % (V_VA0, rr))
    a("v_lshl_add_u32 v%d, v%d, 6, v%d" % (V_VA0, b, V_VA0))
    a("v_lshl_add_u32 v%d, v%d, 5, v%d" % (V_VA0, dh, V_VA0))
    a("v_lshl_add_u32 v%d, v%d, 3, v%d" % (V_VA0, c, V_VA0))
    for i in range(48):
        a("v_pk_mov_b32 %s, 0, 0" % vr(V_O + 2 * i, 2)) if False else None
    for i in range(96):
        a("v_mov_b32 v%d, 0" % (V_O + i))
    a("v_mov_b32 v%d, 0" % V_L)
    a("v_add_u32 v%d, s%d, v%d" % (V_KB[0], S_QLDS, V_KA0))
    for j in range(1, 4):
        a("v_xor_b32 v%d, %d, v%d" % (V_KB[j], 32 * j, V_KB[0]))
    wait_cascade(3)
    for ks in range(12):
        a("ds_read_b128 %s, v%d offset:%d" % (vr(V_Q + 4 * ks, 4), V_KB[ks & 3], (ks >> 2) * 4096))
    a("v_add_u32 v%d, s%d, v%d" % (V_KB[0], S_K0, V_KA0))
    for j in range(1, 4):
        a("v_xor_b32 v%d, %d, v%d" % (V_KB[j], 32 * j, V_KB[0]))
    a("s_waitcnt lgkmcnt(0)")
    a("s_barrier")
    stamp(4)
    for ks in range(12):
        a("ds_read_b128 %s, v%d offset:%d" % (vr(POOL + 4 * ks, 4), V_KB[ks & 3], (ks >> 2) * 4096))
    a("s_mov_b32 s%d, 0" % S_J)
    for ks in range(12):
        a("s_waitcnt lgkmcnt(%d)" % (11 - ks))
        a("v_mfma_f32_32x32x16_bf16 %s, %s, %s, %s" % (
            vr(V_S[0], 16), vr(POOL + 4 * ks, 4), vr(V_Q + 4 * ks, 4), "0" if ks == 0 else vr(V_S[0], 16)))

    def block_max(S, mx, t2):
        a("v_max3_f32 v%d, v%d, v%d, v%d" % (mx, S, S + 1, S + 2))
        for i in range(3, 15, 2):
            a("v_max3_f32 v%d, v%d, v%d, v%d" % (mx, mx, S + i, S + i + 1))
        a("v_max_f32 v%d, v%d, v%d" % (mx, mx, S + 15))
        a("v_mov_b32 v%d, v%d" % (t2, mx))
        a("s_nop 1")
        a("v_permlane32_swap_b32 v%d, v%d" % (t2, mx))
        a("s_nop 1")
        a("v_max_f32 v%d, v%d, v%d" % (mx, mx, t2))

    stubs = []

    def sm_seq(par):
        S = V_S[par]
        tm = V_T
        out = []

        def fma(k):
            return ("v_fma_f32 v%d, v%d, s%d, v%d" % (tm[k % 8], S + k, S_C, V_NMC), 1, k // 8, 0)

        def ex(k):
            return ("v_exp_f32 v%d, v%d" % (tm[k % 8], tm[k % 8]), 2, k // 8, 0)

        def cvt(p):
            return ("v_cvt_pk_bf16_f32 v%d, v%d, v%d" % (V_P + p, tm[(2 * p) % 8], tm[(2 * p + 1) % 8]), 1, p // 4,
                    17 if p < 4 else 23)

        def add(k):
            if k == 1:
                return ("v_add_f32 v%d, v%d, v%d" % (V_BS, tm[0], tm[1]), 1, 0, 0)
            return ("ADD %d" % k, 1, k // 8, 0)
        for hf in range(2):
            o = 8 * hf
            p = 4 * hf
            out += [fma(o), fma(o + 1), ex(o), fma(o + 2), ex(o + 1), fma(o + 3), ex(o + 2), fma(o + 4), ex(o + 3)]
            if hf:
                out += [add(o)]
            out += [add(o + 1), fma(o + 5), ex(o + 4), cvt(p), add(o + 2), fma(o + 6), ex(o + 5), cvt(p + 1), add(o + 3),
                    fma(o + 7), ex(o + 6), add(o + 4), ex(o + 7), cvt(p + 2), add(o + 5), add(o + 6), cvt(p + 3),
                    add(o + 7)]
        return out

    def schedule(par, duty):
        gaps = {g: [] for g in range(BG, BG + 26)}
        load = {g: 0.0 for g in range(24)}
        load[BG % 24] += 2
        load[(BG - 2) % 24] += 4
        load[(BG - 1) % 24] += 6
        load[23] += 2

        def put(it, g):
            it.gap = g
            gaps[g].append(it)
            load[g % 24] += it.cost
        put(Item(["MASK %d" % par], 2, 0, 0, "mask"), max(SM0, BG))
        if duty:
            put(Item(["DUTYLD"], 2, 0, 0, "duty"), BG + 2)
            put(Item(["DUTYWAIT"], 6, 0, 0, "duty"), BG + 24 - 4)
        kg = []
        g = BG
        for i in range(12):
            g = max(g, 12 + i)
            while kg.count(g) >= (2 if g < BG + 2 else 1):
                g += 1
            kg.append(g)
            put(Item("ds_read_b128 %s, v%d offset:%d" % (vr(POOL + 4 * i, 4), V_KB[i & 3], (i >> 2) * 4096),
                     1, 0, 0, "K", ("F", i)), g)
            assert g <= 24 + i - 4
        for idx in range(12):
            s, t = divmod(idx, 6)
            for u in range(2):
                put(Item("ds_read_b64_tr_b16 %s, v%d offset:%d" % (
                    vr(POOL + 4 * idx + 2 * u, 2), V_VB[t & 1], HB + (16 * s + 8 * u) * 128 + (t >> 1) * 4096),
                    1, 0, 0, "V%d" % s, ("F", idx)), 24 + idx)
        e, l = max(SM0, BG), SM1
        its = [Item(txt, cost, max(mg, 24 if hf else 0), l, "sm", half=hf) for txt, cost, hf, mg in sm_seq(par)]
        its.append(Item(["CHECK %d 2" % par], 3, 0, l, "chk"))
        tot = sum(v.cost for v in its) + sum(load[g % 24] for g in range(e, l + 1))
        target = tot / (l - e + 1)
        g = e
        exc = 0.0
        for it in its:
            while g < l and (load[g % 24] + it.cost / 2.0 > target + exc or g < it.early):
                exc += target - load[g % 24]
                g += 1
            put(it, g)
        return gaps, load

    def mfma_for(slot, par):
        if slot < 12:
            Sn = V_S[par ^ 1]
            txt = "v_mfma_f32_32x32x16_bf16 %s, %s, %s, %s" % (
                vr(Sn, 16), vr(POOL + 4 * slot, 4), vr(V_Q + 4 * slot, 4), "0" if slot == 0 else vr(Sn, 16))
            return txt, ("F", slot), "qk"
        idx = slot - 12
        s, t = divmod(idx, 6)
        txt = "v_mfma_f32_32x32x16_bf16 %s, %s, %s, %s" % (
            vr(V_O + 16 * t, 16), vr(POOL + 4 * idx, 4), vr(V_P + 4 * s, 4), vr(V_O + 16 * t, 16))
        return txt, ("F", idx), "pv%d" % s

    def emit_lines(lines, tailmode=False):
        for ln in lines:
            if ln.startswith("CHECK"):
                _, par, mode = ln.split()
                stub, back = a.newlabel("slow"), a.newlabel("back")
                a("v_cmp_lt_f32 vcc, s%d, v%d" % (S_THR, V_BS))
                a("s_cbranch_vccnz %s" % stub)
                a.label(back)
                a("v_add_f32 v%d, v%d, v%d" % (V_L, V_L, V_BS))
                stubs.append((stub, "L_slow_%s_%s" % (par, mode), back))
            elif ln.startswith("MASK"):
                _, par = ln.split()
                stub, back = a.newlabel("mstub"), a.newlabel("mback")
                a("s_cmp_eq_u32 s%d, s%d" % (S_J, S_NF))
                a("s_cbranch_scc1 %s" % stub)
                a.label(back)
                stubs.append((stub, "L_mask_%s" % par, back))
            elif ln.startswith("ADD"):
                k = int(ln.split()[1])
                if tailmode and k == 8:
                    a("v_mov_b32 v%d, v%d" % (V_BS, V_T[0]))
                else:
                    a("v_add_f32 v%d, v%d, v%d" % (V_BS, V_BS, V_T[k % 8]))
            elif ln == "DUTYLD":
                stub, back = a.newlabel("dl"), a.newlabel("dlb")
                a("s_cmp_lt_u32 s%d, s%d" % (S_LN, S_NKB))
                a("s_cbranch_scc1 %s" % stub)
                a.label(back)
                stubs.append((stub, "L_dutyld", back))
            elif ln == "DUTYWAIT":
                a("s_add_u32 s%d, s%d, 1" % (S_NEED, S_NEED))
                wait_cascade(3)
            else:
                a(ln)

    def skip_item(it):
        return ("L" in abl and it.writes is not None) or ("S" in abl and it.kind in ("sm", "chk"))

    def emit_stream(seq, outstanding, tailmode=False):
        issued = list(outstanding)
        done = 0
        for idx, e in enumerate(seq):
            if e[0] == "m":
                frag = e[2]
                need = max([k for k, fr in enumerate(issued) if fr == frag], default=-1) + 1
                if need > done:
                    tgt = need
                    cnt = 0
                    for e2 in seq[idx + 1:]:
                        if e2[0] == "m":
                            n2 = max([k for k, fr in enumerate(issued) if fr == e2[2]], default=-1) + 1
                            if n2 > tgt and n2 <= len(issued) - 6 and cnt < 5:
                                tgt = n2
                                cnt += 1
                            else:
                                break
                    n = len(issued) - tgt
                    a("s_waitcnt lgkmcnt(%d)" % min(15, n))
                    done = len(issued) - min(15, n)
                a(e[1])
            elif e[0] == "i":
                it = e[1]
                if skip_item(it):
                    continue
                emit_lines(it.lines, tailmode)
                if it.writes is not None:
                    issued.append(it.writes)
            elif e[0] == "bar":
                a("s_waitcnt lgkmcnt(0)")
                a("s_barrier")
                issued, done = [], 0
            elif e[0] == "raw":
                emit_lines([e[1]], tailmode)
            elif e[0] == "label":
                a.label(e[1])

    def addr_lines():
        return (["v_add_u32 v%d, s%d, v%d" % (V_KB[0], S_SLOT, V_KA0), "v_add_u32 v%d, s%d, v%d" % (V_VB[0], S_SLOT, V_VA0)] +
                ["v_xor_b32 v%d, %d, v%d" % (V_KB[j], 32 * j, V_KB[0]) for j in range(1, 4)] +
                ["v_xor_b32 v%d, 64, v%d" % (V_VB[1], V_VB[0])])

    def compute_path(duty):
        sfx = "d" if duty else "n"
        scheds = [schedule(0, duty), schedule(1, duty)]
        sys.stderr.write("gap loads (%s): %s\n" % (sfx, " ".join("%.0f" % scheds[0][1][g] for g in range(24))))

        def next_items(par):
            return [it for g in range(BG, 24) for it in scheds[par][0][g]]

        def nfr(par):
            return [it.writes for it in next_items(par) if it.writes is not None and not skip_item(it)]

        def body(par):
            cur, nxt = scheds[par][0], scheds[par ^ 1][0]
            seq = []
            for slot in range(24):
                txt, frag, kind = mfma_for(slot, par)
                seq.append(("m", txt, frag))
                for it in cur.get(slot + 24, []):
                    seq.append(("i", it))
                if slot == BG - 2:
                    seq += [("raw", "s_add_u32 s%d, s%d, s%d" % (S_SLOT, S_SLOT, S_STEP)),
                            ("raw", "s_sub_u32 s%d, s%d, %d" % (S_TMP3, S_SLOT, RING)),
                            ("raw", "s_cselect_b32 s%d, s%d, s%d" % (S_SLOT, S_SLOT, S_TMP3)),
                            ("raw", "s_add_u32 s%d, s%d, 1" % (S_J, S_J))]
                if slot == BG - 1:
                    seq += [("raw", x) for x in addr_lines()]
                if slot == BG:
                    seq.append(("bar",))
                if slot >= BG:
                    for it in nxt.get(slot, []):
                        seq.append(("i", it))
            return seq

        def tail(par):
            cur = scheds[par][0]
            rest = [it for g in range(24, BG + 26) for it in cur[g]]
            assert all(it.half != 1 for it in next_items(par)), "second half started too early"
            vreads = [it for it in rest if it.kind in ("V0", "V1")]
            h0 = [it for it in rest if it.kind == "sm" and it.half == 0]
            h1 = [it for it in rest if it.kind == "sm" and it.half == 1]
            seq = []
            v0 = [it for it in vreads if it.kind == "V0"]
            v1 = [it for it in vreads if it.kind == "V1"]
            k = 0
            for it in v0:
                seq.append(("i", it))
                if k < len(h0):
                    seq.append(("i", h0[k]))
                    k += 1
            for it in h0[k:]:
                seq.append(("i", it))
            seq.append(("raw", "CHECK %d 0" % par))
            seq.append(("raw", "s_cmp_le_u32 s%d, 16" % S_NVAL))
            seq.append(("raw", "s_cbranch_scc1 L_short_%s%d" % (sfx, par)))
            k = 0
            kv = 0
            per = (len(h1) + 5) // 6
            for t in range(6):
                txt, frag, kind = mfma_for(12 + t, par)
                seq.append(("m", txt, frag))
                for it in v1[2 * t:2 * t + 2]:
                    seq.append(("i", it))
                for it in h1[k:k + per]:
                    seq.append(("i", it))
                k += per
            seq.append(("raw", "CHECK %d 1" % par))
            for t in range(6):
                txt, frag, kind = mfma_for(18 + t, par)
                seq.append(("m", txt, frag))
            seq.append(("raw", "s_branch L_epi"))
            short = [("label", "L_short_%s%d" % (sfx, par)), ("raw", "s_waitcnt lgkmcnt(0)")]
            for t in range(6):
                txt, frag, kind = mfma_for(12 + t, par)
                short.append(("raw", txt))
            short.append(("raw", "s_branch L_epi"))
            return seq, short

        if duty:
            a("s_add_u32 s%d, s%d, %d" % (S_LIM, S_LN, RAMPD))
            a("s_min_u32 s%d, s%d, s%d" % (S_LIM, S_LIM, S_DEPTH))
            load_upto(S_LIM, 3)
            a("s_add_u32 s%d, s%d, 1" % (S_NEED, S_NEED))
            wait_cascade(3)
        for x in addr_lines():
            a(x)
        a("s_nop 6")
        block_max(V_S[0], V_M, V_T[1])
        a("v_mul_f32 v%d, s%d, v%d" % (V_NMC, S_C, V_M))
        a("v_sub_f32 v%d, 0, v%d" % (V_NMC, V_NMC))
        emit_stream([("bar",)] + [("i", it) for it in next_items(0)], [])
        a.label("L_loop_" + sfx)
        emit_stream(body(0), nfr(0))
        a("s_cmp_eq_u32 s%d, s%d" % (S_J, S_NF))
        a("s_cbranch_scc1 L_tail1_" + sfx)
        emit_stream(body(1), nfr(1))
        a("s_cmp_lg_u32 s%d, s%d" % (S_J, S_NF))
        a("s_cbranch_scc1 L_loop_" + sfx)
        t0, s0 = tail(0)
        t1, s1 = tail(1)
        emit_stream(t0, nfr(0), True)
        a.label("L_tail1_" + sfx)
        emit_stream(t1, nfr(1), True)
        emit_stream(s0, [], True)
        emit_stream(s1, [], True)

    a("s_cmp_lg_u32 s%d, 0" % S_NP)
    a("s_cbranch_scc1 L_duty_path")
    compute_path(False)
    a.label("L_duty_path")
    compute_path(True)

    a.label("L_epi")
    stamp(5)
    a("s_add_u32 s%d, s%d, s%d" % (S_TMP, S_SLOT, S_SCR))
    a("s_sub_u32 s%d, s%d, %d" % (S_TMP2, S_TMP, RING))
    a("s_cselect_b32 s%d, s%d, s%d" % (S_TMP, S_TMP, S_TMP2))
    a("v_mov_b32 v%d, v%d" % (V_T[0], V_L))
    q, hh = V_T[1], V_T[2]
    a("v_and_b32 v%d, 31, v%d" % (q, V_LANE))
    a("v_lshrrev_b32 v%d, 5, v%d" % (hh, V_LANE))
    a("v_permlane32_swap_b32 v%d, v%d" % (V_T[0], V_L))
    a("v_lshlrev_b32 v%d, 7, v%d" % (V_T[3], q))
    a("v_add_f32 v%d, v%d, v%d" % (V_L, V_L, V_T[0]))
    a("v_and_b32 v%d, 7, v%d" % (q, q))
    a("v_rcp_f32 v%d, v%d" % (V_L, V_L))
    a("v_lshl_add_u32 v%d, v%d, 4, v%d" % (V_T[3], q, V_T[3]))
    a("v_lshl_add_u32 v%d, v%d, 3, v%d" % (V_T[3], hh, V_T[3]))
    a("v_mov_b32 v%d, v%d" % (V_M, V_L))
    a("v_add_u32 v%d, s%d, v%d" % (POOL, S_TMP, V_T[3]))
    for c in range(1, 8):
        a("v_xor_b32 v%d, %d, v%d" % (POOL + c, 16 * c, POOL))
    for t in range(6):
        for g in range(4):
            o = V_O + 16 * t + 4 * g
            d = V_P + 2 * ((4 * t + g) % 4)
            a("v_pk_mul_f32 %s, %s, %s" % (vr(o, 2), vr(o, 2), vr(V_L, 2)))
            a("v_pk_mul_f32 %s, %s, %s" % (vr(o + 2, 2), vr(o + 2, 2), vr(V_L, 2)))
            a("v_cvt_pk_bf16_f32 v%d, v%d, v%d" % (d, o, o + 1))
            a("v_cvt_pk_bf16_f32 v%d, v%d, v%d" % (d + 1, o + 2, o + 3))
            c = 4 * t + g
            a("ds_write_b64 v%d, %s offset:%d" % (POOL + (c & 7), vr(d, 2), (c >> 3) * 4096))
    a("v_lshlrev_b32 v%d, 4, v%d" % (V_T[4], V_LANE))
    a("v_add_u32 v%d, s%d, v%d" % (POOL + 8, S_TMP, V_T[4]))
    a("v_lshrrev_b32 v%d, 3, v%d" % (V_T[0], V_LANE))
    a("v_and_b32 v%d, 7, v%d" % (V_T[1], V_LANE))
    a("v_xor_b32 v%d, v%d, v%d" % (V_T[1], V_T[1], V_T[0]))
    a("v_mul_u32_u24 v%d, %d, v%d" % (V_T[0], RS, V_T[0]))
    a("v_lshl_add_u32 v%d, v%d, 4, v%d" % (V_T[0], V_T[1], V_T[0]))
    a("v_add_u32 v%d, s%d, v%d" % (POOL + 9, S_QOFF, V_T[0]))
    for rg in range(1, 4):
        a("v_add_u32 v%d, %d, v%d" % (POOL + 9 + rg, rg * 8 * RS, POOL + 9))
    stamp(6)
    a("s_waitcnt lgkmcnt(0)")
    order = [(rg, lc) for rg in range(4) for lc in range(3)]
    for j, (rg, lc) in enumerate(order):
        a("ds_read_b128 %s, v%d offset:%d" % (vr(V_O + 4 * j, 4), POOL + 8, lc * 4096 + rg * 1024))
    for j, (rg, lc) in enumerate(order):
        a("s_waitcnt lgkmcnt(%d)" % (11 - j))
        a("buffer_store_dwordx4 %s, v%d, %s, 0 offen offset:%d %s" % (
            vr(V_O + 4 * j, 4), POOL + 9 + rg, sr(SRD_O, 4), lc * 128, stf))
    stamp_flush()
    a("s_endpgm")

    for stub, target, back in stubs:
        a.label(stub)
        a("s_call_b64 %s, %s" % (sr(S_RET, 2), target))
        a("s_branch %s" % back)
    a.label("L_dutyld")
    load_body(3)
    a("s_setpc_b64 %s" % sr(S_RET, 2))
    for par in range(2):
        S = V_S[par]
        a.label("L_mask_%d" % par)
        a("s_nop 7")
        a("v_lshrrev_b32 v%d, 5, v%d" % (V_T[1], V_LANE))
        a("v_lshlrev_b32 v%d, 2, v%d" % (V_T[1], V_T[1]))
        a("v_mov_b32 v%d, 0xff800000" % V_T[0])
        for g in range(4):
            for i in range(4):
                a("s_sub_u32 s%d, s%d, %d" % (S_TMP2, S_NVAL, 8 * g + i))
                a("v_cmp_gt_i32 vcc, s%d, v%d" % (S_TMP2, V_T[1]))
                a("s_nop 1")
                a("v_cndmask_b32 v%d, v%d, v%d, vcc" % (S + 4 * g + i, V_T[0], S + 4 * g + i))
        a("s_setpc_b64 %s" % sr(S_RET, 2))
    a.label("L_rescale")
    mx, t2 = V_T[0], V_T[1]
    a("v_max_f32 v%d, v%d, v%d" % (mx, mx, V_M))
    a("v_sub_f32 v%d, v%d, v%d" % (t2, V_M, mx))
    a("v_mul_f32 v%d, s%d, v%d" % (t2, S_C, t2))
    a("v_exp_f32 v%d, v%d" % (t2, t2))
    a("v_mov_b32 v%d, v%d" % (V_M, mx))
    a("v_mul_f32 v%d, s%d, v%d" % (V_NMC, S_C, mx))
    a("v_sub_f32 v%d, 0, v%d" % (V_NMC, V_NMC))
    a("v_mul_f32 v%d, v%d, v%d" % (V_L, V_L, t2))
    for i in range(96):
        a("v_mul_f32 v%d, v%d, v%d" % (V_O + i, V_O + i, t2))
    a("s_setpc_b64 %s" % sr(S_RET2, 2))
    for par in range(2):
        for mode in range(3):
            S = V_S[par]
            a.label("L_slow_%d_%d" % (par, mode))
            a("s_nop 15")
            block_max(S, mx, t2)
            a("s_call_b64 %s, L_rescale" % sr(S_RET2, 2))
            first = True
            for hf in ([0, 1] if mode == 2 else [mode]):
                for k in range(8):
                    a("v_fma_f32 v%d, v%d, s%d, v%d" % (V_T[k], S + 8 * hf + k, S_C, V_NMC))
                for k in range(8):
                    a("v_exp_f32 v%d, v%d" % (V_T[k], V_T[k]))
                a("s_nop 0")
                for p in range(4):
                    a("v_cvt_pk_bf16_f32 v%d, v%d, v%d" % (V_P + 4 * hf + p, V_T[2 * p], V_T[2 * p + 1]))
                for k in range(8):
                    if first:
                        a("v_mov_b32 v%d, v%d" % (V_BS, V_T[k]))
                        first = False
                    else:
                        a("v_add_f32 v%d, v%d, v%d" % (V_BS, V_BS, V_T[k]))
            a("s_setpc_b64 %s" % sr(S_RET, 2))
    a.lines.append(".p2align 6")
    a.lines.append(".type L_table,@object")
    a.label("L_table")
    for d in TABLE:
        a(".long " + ", ".join("0x%x" % x for x in d))
    a.lines.append(".size L_table, %d" % (64 * len(TABLE)))

    hdr = open("cdna_kernels/%s.s.ref" % NAME).read().split("\n")
    out = []
    for ln in hdr:
        if ln.startswith("; @launch"):
            out.append("; @launch grid=(256,1,1) block=(512,1,1) lds=%d" % LDS_TOTAL)
        elif ln.startswith(";"):
            out.append(ln)
        else:
            break
    out += [
        '.amdgcn_target "amdgcn-amd-amdhsa--gfx950"',
        ".text",
        ".globl %s_kernel" % NAME,
        ".p2align 8",
        ".type %s_kernel,@function" % NAME,
    ]
    out += a.lines
    out += [
        '.section .rodata,"a"',
        ".p2align 6",
        ".amdhsa_kernel %s_kernel" % NAME,
        "  .amdhsa_next_free_vgpr 256",
        "  .amdhsa_next_free_sgpr 96",
        "  .amdhsa_accum_offset 256",
        "  .amdhsa_group_segment_fixed_size 0",
        "  .amdhsa_kernarg_size 56",
        "  .amdhsa_user_sgpr_count 2",
        "  .amdhsa_user_sgpr_kernarg_segment_ptr 1",
        "  .amdhsa_system_sgpr_workgroup_id_x 1",
        ".end_amdhsa_kernel",
        "",
    ]
    return "\n".join(out)


def parse_plan(s):
    out = []
    for (seq, parts, _, _, _), x in zip(DEFAULT_PLAN, s.split(",")):
        qg, npre, thr = x.split(".")
        out.append((seq, parts, int(qg), int(npre), int(thr)))
    return out


if __name__ == "__main__":
    dst = sys.argv[1] if len(sys.argv) > 1 and not sys.argv[1].startswith("--") else "cdna_kernels/%s.s" % NAME

    def opt(n, d):
        for x in sys.argv:
            if x.startswith("--" + n + "="):
                return x.split("=", 1)[1].replace("+", " ")
        return d
    plan = parse_plan(opt("plan", "")) if opt("plan", "") else None
    open(dst, "w").write(gen(stamps=(2 if "--dbg" in sys.argv else 1 if "--stamps" in sys.argv else 0), qf=opt("qf", "nt"), kvf=opt("kvf", "nt"),
                             stf=opt("stf", ""), BG=int(opt("bg", "14")), rot="--rot" in sys.argv, abl=opt("abl", ""),
                             plan=plan, SM0=int(opt("sm0", "14")), SM1=int(opt("sm1", "35")),
                             RAMP=int(opt("ramp", "1")), NPF=int(opt("npf", "2")),
                             PFWAIT=int(opt("pfwait", "1")), RAMPD=int(opt("rampd", "2")),
                             pfspec=([] if "--nopf" in sys.argv else None)))
    print("wrote", dst)
```

```python
import math
import struct
import sys

NAME = "standalone__varlen_attn_packed__ragged"
CU = [0, 238, 376, 669, 835, 1320, 1545, 1865, 2058]
T, H, D = 2058, 16, 192
RS = H * D * 2
HB = 12288
BLK = 2 * HB
NSLOT = 6
LDS_TOTAL = 163840
CSCALE = (D ** -0.5) * math.log2(math.e)
THR = 1024.0


def f32(x):
    return struct.unpack("<I", struct.pack("<f", x))[0]


RING = NSLOT * BLK
NKB = [(CU[i + 1] - CU[i] + 31) // 32 for i in range(8)]

DEFAULT_PLAN = [(4, [4, 4, 4, 4], 0, 2, 0), (7, [7], 0, 2, 0), (3, [6], 1, 3, 0),
                (6, [4, 4, 2], 1, 2, 0), (2, [4, 4, 2], 1, 2, 0), (1, [5], 1, 3, 0), (0, [4, 4], 1, 2, 0),
                (5, [4, 4], 1, 2, 0)]


def make_wgs(plan):
    wgs = []
    for seq, parts, win, npre, rot in plan:
        nf = NKB[seq] - 1
        t0 = 0
        assert sum(parts) == NKB[seq]
        for r, nt in enumerate(parts):
            rr = ((r * nf) // len(parts)) if rot else 0
            if nt == 2:
                wgs.append(dict(seq=seq, t0=t0, nt=4, dual=True, hb=0, rot=rr, win=win, npre=min(npre, 1)))
            else:
                for hb in range(2):
                    wgs.append(dict(seq=seq, t0=t0, nt=nt, dual=False, hb=hb, rot=rr, win=win,
                                    npre=min(npre, 5 - (nt - 1) // 2)))
            t0 += nt
    assert len(wgs) == 32, len(wgs)
    return wgs


def prefetch_list(spec):
    items = []
    for ten, seq, b0, b1 in spec:
        for b in range(b0, b1 + 1):
            for rg in range(4):
                row = CU[seq] + 32 * b + 8 * rg
                if row < CU[seq + 1]:
                    items.append((ten, row))
    return items


def default_pf():
    spec = []
    for b in range(0, 6):
        spec += [("K", 4, b + 1, b + 1), ("V", 4, b, b)]
        if b < 3:
            spec += [("K", 7, b + 1, b + 1), ("V", 7, b, b)]
    return spec


def wave_desc(wg, w, pf):
    seq, nt, dual = wg["seq"], wg["nt"], wg["dual"]
    s0, s1 = CU[seq], CU[seq + 1]
    nkb = NKB[seq]
    nval = (s1 - s0) - 32 * (nkb - 1)
    step = 2 * BLK if dual else BLK
    ns = RING // step
    compute = w < nt
    if dual:
        hb = (w >> 1) & 1
        tile = wg["t0"] + (w & 1)
        so = hb * BLK
        qlds = [12 * HB, 9 * HB, 11 * HB, 7 * HB][w & 3]
        if w >= 4:
            isk, nrg, rg0 = 1 - (w & 1), 4, 0
        else:
            isk, nrg, rg0 = 0, 0, 0
    else:
        hb = wg["hb"]
        tile = wg["t0"] + w
        so = 0
        qlds = (12 - w - (1 if w >= 2 else 0)) * HB
        if nt > 4:
            isk, nrg, rg0 = (1 if w < 4 else 0), 1, w & 3
        elif w >= 4:
            isk, nrg, rg0 = (1 if w < 6 else 0), 2, 2 * (w & 1)
        else:
            isk, nrg, rg0 = 0, 0, 0
    role = (3 if nrg else 2) if compute else (1 if nrg else 0)
    d0 = role | (isk << 2) | (nrg << 3) | ((rg0 & 1) << 6) | (wg["win"] << 8) | (nkb << 10) | (nval << 16) | \
        (wg["rot"] << 22) | (len(pf) << 26)
    k0 = RING - step + so
    ldst0 = (k0 if isk else so + HB) + rg0 * 1024
    d = [d0, s1 * RS, (s0 + 32 * tile) * RS + hb * 384, qlds, (s0 + 8 * rg0) * RS + hb * 384, ldst0, step,
         wg["npre"] + isk, ns - 1 + isk, so, k0, step - so + w * HB]
    for ten, row in pf:
        d.append(row * RS | ((1 << 31) if ten == "V" else 0))
    d += [0] * (16 - len(d))
    return d


def make_table(plan, pfspec, npf):
    wgs = make_wgs(plan)
    items = prefetch_list(pfspec)
    slots = [(j, w) for w in range(8) for j, wg in enumerate(wgs) if wg["win"] > 0 and w < wg["nt"]]
    assign = {}
    for k, it in enumerate(items):
        key = slots[k % len(slots)]
        if len(assign.setdefault(key, [])) < npf:
            assign[key].append(it)
    tab = []
    for j, wg in enumerate(wgs):
        for w in range(8):
            tab.append(wave_desc(wg, w, assign.get((j, w), [])))
    return wgs, tab


class Asm:
    def __init__(self):
        self.lines = []
        self.nlabel = 0

    def __call__(self, s):
        self.lines.append("    " + s)

    def label(self, name):
        self.lines.append(name + ":")

    def newlabel(self, base):
        self.nlabel += 1
        return "L_%s_%d" % (base, self.nlabel)


def vr(lo, n):
    return "v[%d:%d]" % (lo, lo + n - 1)


def sr(lo, n):
    return "s[%d:%d]" % (lo, lo + n - 1)


class Item:
    def __init__(self, lines, cost, early, late, kind, writes=None, half=None):
        self.lines = lines if isinstance(lines, list) else [lines]
        self.cost, self.early, self.late, self.kind = cost, early, late, kind
        self.writes = writes
        self.half = half
        self.gap = None


def gen(stamps=False, qf="nt", kvf="nt", stf="", plan=None, BG=14, rot=False, abl="", SM0=14, SM1=35, RAMP=1, NIMM=1, pfspec=None, NPF=2, PFWAIT=1, RAMPD=2, XC=0, XM=0, XMS=0x200000):
    a = Asm()
    WGS, TABLE = make_table(plan or DEFAULT_PLAN, default_pf() if pfspec is None else pfspec, NPF)
    NST = 8
    DBGWG = [0, 70, 133, 255]
    S_ST = 64

    V_LANE = 0
    V_T = list(range(1, 9))
    V_KA0, V_VA0 = 9, 10
    V_KB = [11, 12, 13, 14]
    V_VB = [15, 16]
    V_DE, V_DO = 17, 18
    V_L, V_M, V_BS, V_NMC = 20, 21, 22, 23
    POOL = 24
    V_P = 72
    V_S = [80, 96]
    V_Q = 112
    V_O = 160
    S_Q, S_K, S_V, S_OUT = 4, 6, 8, 12
    S_WIN, S_XB = 14, 15
    SRD_Q, SRD_KV, SRD_O = 16, 20, 24
    S_W = 28
    S_TMP, S_TMP2, S_TMP3, S_LIM = 29, 30, 31, 91
    S_CF = 32
    S_FL, S_NREC, S_QOFF, S_QLDS, S_GOFF, S_LDST, S_STEP, S_NPRE, S_DEPTH, S_SLOT, S_K0, S_SCR = range(32, 44)
    S_PF = 44
    S_NKB, S_NF, S_NVAL, S_J = 48, 49, 50, 51
    S_LN, S_LB, S_ISK, S_NP, S_REM, S_NEED = 52, 53, 54, 55, 62, 63
    S_C, S_THR = 56, 57
    S_RET = 58
    S_RET2 = 60
    S_PC = 92
    WINS = [0, 4, 2, 1]

    def stamp(i, real=False):
        if stamps:
            a(("s_memrealtime %s" if real else "s_memtime %s") % sr(S_ST + 2 * i, 2))
            a("s_waitcnt lgkmcnt(0)")

    def stamp_flush(iters=False):
        if not stamps:
            return
        a("s_waitcnt vmcnt(0)")
        stamp(1, True)
        stamp(7)
        if stamps == 2:
            lab = a.newlabel("dbg")
            a("s_cmp_lg_u32 s%d, 0" % S_W)
            a("s_cbranch_scc1 %s" % lab)
            a("s_mov_b32 s83, 99")
            for k, wg in enumerate(DBGWG):
                a("s_cmp_eq_u32 s2, %d" % wg)
                a("s_cselect_b32 s83, %d, s83" % k)
            a("s_cmp_eq_u32 s83, 99")
            a("s_cbranch_scc1 %s" % lab)
            a("s_load_dwordx2 s[80:81], s[0:1], 40")
            a("s_waitcnt lgkmcnt(0)")
            a("s_mov_b32 s84, s80")
            a("s_mov_b32 s85, s81")
            a("s_mov_b32 s86, 256")
            a("s_mov_b32 s87, 0x00020000")
            a("s_mov_b64 exec, 1")
            a("s_lshl_b32 s83, s83, 4")
            a("v_mov_b32 v1, s83")
            a("v_mov_b32 v4, s%d" % S_ST)
            a("v_mov_b32 v5, s%d" % (S_ST + 2))
            a("s_sub_u32 s82, s%d, s%d" % (S_ST + 8, S_ST + 4))
            a("v_mov_b32 v6, s82")
            a("s_sub_u32 s82, s%d, s%d" % (S_ST + 14, S_ST + 4))
            a("v_mov_b32 v7, s82")
            a("buffer_store_dwordx4 v[4:7], v1, s[84:87], 0 offen")
            a.label(lab)
            return
        a("s_load_dwordx2 s[80:81], s[0:1], 48")
        a("s_waitcnt lgkmcnt(0)")
        a("s_mov_b32 s84, s80")
        a("s_mov_b32 s85, s81")
        a("s_mov_b32 s86, 0x100000")
        a("s_mov_b32 s87, 0x00020000")
        a("s_lshl_b32 s82, s2, 3")
        a("s_add_u32 s82, s82, s%d" % S_W)
        a("s_mul_i32 s83, s82, %d" % (NST * 8))
        a("v_mov_b32 v1, s83")
        a("s_mov_b64 exec, 1")
        for i in range(NST):
            a("v_mov_b32 v2, s%d" % (S_ST + 2 * i))
            a("v_mov_b32 v3, s%d" % (S_ST + 2 * i + 1))
            a("buffer_store_dwordx2 v[2:3], v1, s[84:87], 0 offen offset:%d" % (8 * i))
            a("s_nop 1")
        if iters:
            a("s_mov_b64 exec, -1")
            a("s_lshl_b32 s82, s82, 8")
            a("s_add_u32 s82, s82, 0x80000")
            a("v_lshlrev_b32 v1, 2, v0")
            a("v_add_u32 v1, s82, v1")
            a("buffer_store_dword v90, v1, s[84:87], 0 offen")

    a.label(NAME + "_kernel")
    a("s_cmp_ge_u32 s2, 256")
    a("s_cbranch_scc1 L_end")
    stamp(0, True)
    stamp(2)
    a("s_load_dwordx8 s[4:11], s[0:1], 0")
    a("s_load_dwordx2 s[12:13], s[0:1], 32")
    a("v_lshrrev_b32 v1, 6, v0")
    a("s_getpc_b64 %s" % sr(S_PC, 2))
    a.label("L_pc")
    a("v_readfirstlane_b32 s%d, v1" % S_W)
    a("s_and_b32 s%d, s2, 0xf8" % S_TMP)
    a("s_add_u32 s%d, s%d, L_table-L_pc" % (S_PC, S_PC))
    a("s_addc_u32 s%d, s%d, 0" % (S_PC + 1, S_PC + 1))
    a("s_add_u32 s%d, s%d, s%d" % (S_TMP, S_TMP, S_W))
    a("s_lshl_b32 s%d, s%d, 6" % (S_TMP, S_TMP))
    a("s_load_dwordx16 %s, %s, s%d" % (sr(S_CF, 16), sr(S_PC, 2), S_TMP))
    a("v_and_b32 v0, 63, v0")
    a("s_and_b32 s%d, s2, 7" % S_XB)
    a("s_mul_i32 s%d, s%d, 768" % (S_XB, S_XB))
    a("v_lshrrev_b32 v1, 3, v0")
    a("v_and_b32 v2, 7, v0")
    a("v_bfe_u32 v3, v0, 4, 2")
    a("v_bfe_u32 v4, v0, 4, 1")
    a("v_mul_u32_u24 v1, %d, v1" % RS)
    a("v_xor_b32 v3, v2, v3")
    a("v_lshlrev_b32 v4, 2, v4")
    a("v_xor_b32 v4, v2, v4")
    a("v_min_u32 v2, 5, v2")
    a("v_lshl_add_u32 v5, v3, 4, v1")
    a("v_lshl_add_u32 v7, v4, 4, v1")
    a("v_xor_b32 v6, 64, v5")
    a("v_lshl_add_u32 v8, v2, 7, v1")
    a("s_mov_b32 s%d, 0x00020000" % (SRD_Q + 3))
    a("s_mov_b32 s%d, 0x00020000" % (SRD_KV + 3))
    a("s_mov_b32 s%d, 0x00020000" % (SRD_O + 3))
    a("s_mov_b32 s%d, %d" % (SRD_KV + 2, T * RS))
    a("s_mov_b32 s%d, 0x%x" % (S_C, f32(CSCALE)))
    a("s_mov_b32 s%d, 0x%x" % (S_THR, f32(THR)))
    a("s_mov_b32 s%d, 0" % S_LN)
    a("s_waitcnt lgkmcnt(0)")
    stamp(3)
    a("s_mov_b32 s%d, s%d" % (SRD_Q, S_Q))
    a("s_mov_b32 s%d, s%d" % (SRD_Q + 1, S_Q + 1))
    if XC:
        a("s_mov_b32 s90, %d" % XC)
        a.label("L_xc")
        for i in range(32):
            a("v_add_f32 v100, v100, v100")
        a("s_sub_u32 s90, s90, 1")
        a("s_cmp_lg_u32 s90, 0")
        a("s_cbranch_scc1 L_xc")
    if XM:
        a("s_load_dwordx2 s[80:81], s[0:1], 48")
        a("s_waitcnt lgkmcnt(0)")
        a("s_mov_b32 s84, s80")
        a("s_mov_b32 s85, s81")
        a("s_mov_b32 s86, 0x10000000")
        a("s_mov_b32 s87, 0x00020000")
        a("s_lshl_b32 s82, s2, 3")
        a("s_add_u32 s82, s82, s%d" % S_W)
        a("s_lshl_b32 s82, s82, 10")
        a("v_lshlrev_b32 v100, 4, v0")
        for i in range(XM):
            a("s_add_u32 s83, s82, %d" % (i * XMS))
            a("buffer_load_dwordx4 v[104:107], v100, s[84:87], s83 offen nt")
            a("s_waitcnt vmcnt(0)")
    a("s_mov_b32 s%d, s%d" % (SRD_Q + 2, S_NREC))
    a("s_add_u32 s%d, s%d, s%d" % (S_QOFF, S_QOFF, S_XB))
    a("s_bfe_u32 s%d, s%d, 0x20008" % (S_WIN, S_FL))
    a("s_bitcmp1_b32 s%d, 1" % S_FL)
    a("s_cbranch_scc0 L_noq")
    a("s_cmp_lg_u32 s%d, 0" % S_WIN)
    a("s_cbranch_scc1 L_qthr")

    def q_loads(win):
        for rg in range(4):
            a("s_add_u32 s%d, s%d, %d" % (S_TMP, S_QOFF, rg * 8 * RS))
            for lc in range(3):
                a("s_add_u32 m0, s%d, %d" % (S_QLDS, lc * 4096 + rg * 1024 - lc * 128))
                if win and 3 * rg + lc >= win:
                    a("s_waitcnt vmcnt(%d)" % (win - 1))
                else:
                    a("s_nop 0")
                a("buffer_load_dwordx4 v%d, %s, s%d offen offset:%d %s lds" % (5 + (rg & 1), sr(SRD_Q, 4), S_TMP, lc * 128, qf))
    q_loads(0)
    a("s_branch L_noq")
    a.label("L_qthr")
    a("s_bfe_u32 s%d, s%d, 0x3001a" % (S_TMP3, S_FL))
    for i in range(NPF):
        a("s_cmp_le_u32 s%d, %d" % (S_TMP3, i))
        a("s_cbranch_scc1 L_pfdone")
        a("s_bitcmp1_b32 s%d, 31" % (S_PF + i))
        a("s_cselect_b32 s%d, s%d, s%d" % (SRD_KV, S_V, S_K))
        a("s_cselect_b32 s%d, s%d, s%d" % (SRD_KV + 1, S_V + 1, S_K + 1))
        a("s_and_b32 s%d, s%d, 0xffffff" % (S_TMP, S_PF + i))
        a("s_add_u32 s%d, s%d, s%d" % (S_TMP, S_TMP, S_XB))
        a("buffer_load_dword v19, v8, %s, s%d offen %s" % (sr(SRD_KV, 4), S_TMP, kvf))
    a.label("L_pfdone")
    if PFWAIT:
        a("s_waitcnt vmcnt(0)")
    for wc in range(2, 4):
        a("s_cmp_eq_u32 s%d, %d" % (S_WIN, wc))
        a("s_cbranch_scc1 L_q%d" % wc)
    for wc in range(1, 4):
        a.label("L_q%d" % wc)
        q_loads(WINS[wc])
        if wc < 3:
            a("s_branch L_noq")
    a.label("L_noq")
    a("s_bfe_u32 s%d, s%d, 0x6000a" % (S_NKB, S_FL))
    a("s_bfe_u32 s%d, s%d, 0x60010" % (S_NVAL, S_FL))
    a("s_bfe_u32 s%d, s%d, 0x40016" % (S_LB, S_FL))
    a("s_bfe_u32 s%d, s%d, 0x10002" % (S_ISK, S_FL))
    a("s_bfe_u32 s%d, s%d, 0x30003" % (S_NP, S_FL))
    a("s_mul_i32 s%d, s%d, 3" % (S_NP, S_NP))
    a("s_sub_u32 s%d, s%d, 1" % (S_NF, S_NKB))
    a("s_mov_b32 s%d, s%d" % (SRD_KV + 2, S_NREC))
    a("s_mov_b32 s%d, s%d" % (SRD_O + 2, S_NREC))
    a("s_mov_b32 s%d, s%d" % (SRD_O, S_OUT))
    a("s_mov_b32 s%d, s%d" % (SRD_O + 1, S_OUT + 1))
    a("s_add_u32 s%d, s%d, s%d" % (S_GOFF, S_GOFF, S_XB))
    a("s_bitcmp1_b32 s%d, 6" % S_FL)
    a("s_cselect_b64 vcc, -1, 0")
    a("v_cndmask_b32 v%d, v5, v6, vcc" % V_DE)
    a("v_mov_b32 v%d, v6" % V_DO)
    a("s_cmp_eq_u32 s%d, 0" % S_ISK)
    a("s_cselect_b64 vcc, -1, 0")
    a("s_cselect_b32 s%d, s%d, s%d" % (SRD_KV, S_V, S_K))
    a("s_cselect_b32 s%d, s%d, s%d" % (SRD_KV + 1, S_V + 1, S_K + 1))
    a("v_cndmask_b32 v%d, v%d, v7, vcc" % (V_DE, V_DE))
    a("v_cndmask_b32 v%d, v%d, v7, vcc" % (V_DO, V_DO))
    a("s_mov_b32 s%d, s%d" % (S_NEED, S_ISK))

    def load_body(np_static, win=0, first=False):
        nop = ("s_waitcnt vmcnt(%d)" % (win - 1)) if win else "s_nop 0"
        a("s_cmp_eq_u32 s%d, s%d" % (S_LN, S_NF))
        a("s_cselect_b32 s%d, s%d, s%d" % (S_TMP, S_NF, S_LB))
        a("s_mul_i32 s%d, s%d, %d" % (S_TMP, S_TMP, 32 * RS))
        a("s_add_u32 s%d, s%d, s%d" % (S_TMP, S_TMP, S_GOFF))
        labd = a.newlabel("ldd")
        for rg in range(1 if np_static else 4):
            if rg:
                if rg != 3:
                    a("s_cmp_eq_u32 s%d, %d" % (S_NP, 3 * rg))
                    a("s_cbranch_scc1 %s" % labd)
                a("s_add_u32 s%d, s%d, %d" % (S_TMP, S_TMP, 8 * RS))
            for lc in range(3):
                a("s_add_u32 m0, s%d, %d" % (S_LDST, rg * 1024 + lc * 4096 - lc * 128))
                a(nop)
                a("buffer_load_dwordx4 v%d, %s, s%d offen offset:%d %s lds" % (
                    V_DO if rg & 1 else V_DE, sr(SRD_KV, 4), S_TMP, lc * 128, kvf))
                if first and rg == 0 and lc == 0:
                    lab = a.newlabel("fv")
                    a("s_cmp_lg_u32 s%d, 0" % S_ISK)
                    a("s_cbranch_scc1 %s" % lab)
                    a("s_waitcnt vmcnt(0)")
                    a.label(lab)
        a.label(labd)
        if first:
            lab = a.newlabel("fk")
            a("s_cmp_eq_u32 s%d, 0" % S_ISK)
            a("s_cbranch_scc1 %s" % lab)
            a("s_waitcnt vmcnt(2)")
            a.label(lab)
        a("s_add_u32 s%d, s%d, 1" % (S_LN, S_LN))
        a("s_add_u32 s%d, s%d, 1" % (S_LB, S_LB))
        a("s_cmp_ge_u32 s%d, s%d" % (S_LB, S_NF))
        a("s_cselect_b32 s%d, 0, s%d" % (S_LB, S_LB))
        a("s_add_u32 s%d, s%d, s%d" % (S_LDST, S_LDST, S_STEP))
        a("s_sub_u32 s%d, s%d, %d" % (S_TMP2, S_LDST, RING))
        a("s_cmp_ge_u32 s%d, %d" % (S_LDST, RING))
        a("s_cselect_b32 s%d, s%d, s%d" % (S_LDST, S_TMP2, S_LDST))

    def load_upto(limit_sgpr, np_static, win=0):
        top, done = a.newlabel("lu"), a.newlabel("lud")
        a("s_min_u32 s%d, s%d, s%d" % (limit_sgpr, limit_sgpr, S_NKB))
        a("s_cmp_ge_u32 s%d, s%d" % (S_LN, limit_sgpr))
        a("s_cbranch_scc1 %s" % done)
        a.label(top)
        load_body(np_static, win)
        a("s_cmp_lt_u32 s%d, s%d" % (S_LN, limit_sgpr))
        a("s_cbranch_scc1 %s" % top)
        a.label(done)

    def pre_loads(np_static):
        labs = [a.newlabel("pl") for _ in range(4)]
        done = a.newlabel("pld")
        for wc in range(1, 4):
            a("s_cmp_eq_u32 s%d, %d" % (S_WIN, wc))
            a("s_cbranch_scc1 %s" % labs[wc])
        if np_static is None:
            load_body(None, 0, True)
        load_upto(S_NPRE, np_static)
        a("s_branch %s" % done)
        for wc in range(1, 4):
            a.label(labs[wc])
            load_upto(S_NPRE, np_static, WINS[wc])
            if wc < 3:
                a("s_branch %s" % done)
        a.label(done)

    def wait_cascade(np_static):
        done = a.newlabel("wc")
        a("s_min_u32 s%d, s%d, s%d" % (S_REM, S_NEED, S_LN))
        a("s_sub_u32 s%d, s%d, s%d" % (S_REM, S_LN, S_REM))
        if np_static is None:
            a("s_mul_i32 s%d, s%d, s%d" % (S_REM, S_REM, S_NP))
            vals = sorted(set([3 * r for r in range(6)] + [6 * r for r in range(6)]), reverse=True)
            cmpv = vals
        else:
            vals = [np_static * r for r in range(5, -1, -1)]
            cmpv = list(range(5, -1, -1))
        for v, c in zip(vals[:-1], cmpv[:-1]):
            a("s_waitcnt vmcnt(%d)" % v)
            a("s_cmp_ge_u32 s%d, %d" % (S_REM, c))
            a("s_cbranch_scc1 %s" % done)
        a("s_waitcnt vmcnt(0)")
        a.label(done)

    a("s_bitcmp1_b32 s%d, 1" % S_FL)
    a("s_cbranch_scc1 L_compute")

    a("s_cmp_eq_u32 s%d, 0" % S_NP)
    a("s_cbranch_scc1 L_idle")
    pre_loads(None)
    wait_cascade(None)
    a("s_barrier")
    stamp(4)
    a("s_mov_b32 s%d, s%d" % (S_TMP3, S_DEPTH))
    a("s_mov_b32 s%d, 0" % S_J)
    if stamps:
        a("v_mov_b32 v90, 0")
    a.label("L_ld_loop")
    a("s_add_u32 s%d, s%d, %d" % (S_LIM, S_LN, RAMP))
    a("s_min_u32 s%d, s%d, s%d" % (S_LIM, S_LIM, S_TMP3))
    load_upto(S_LIM, None)
    a("s_add_u32 s%d, s%d, 1" % (S_NEED, S_NEED))
    wait_cascade(None)
    if stamps:
        a("s_memtime s[88:89]")
        a("s_waitcnt lgkmcnt(0)")
        a("s_add_u32 m0, s%d, 32" % S_J)
        a("s_nop 0")
        a("v_writelane_b32 v90, s88, m0")
    a("s_barrier")
    if stamps:
        a("s_memtime s[88:89]")
        a("s_waitcnt lgkmcnt(0)")
        a("s_mov_b32 m0, s%d" % S_J)
        a("s_nop 0")
        a("v_writelane_b32 v90, s88, m0")
    a("s_add_u32 s%d, s%d, 1" % (S_TMP3, S_TMP3))
    a("s_add_u32 s%d, s%d, 1" % (S_J, S_J))
    a("s_cmp_lt_u32 s%d, s%d" % (S_J, S_NKB))
    a("s_cbranch_scc1 L_ld_loop")
    stamp(5)
    stamp(6)
    stamp_flush(True)
    a("s_endpgm")
    a.label("L_idle")
    a("s_add_u32 s%d, s%d, 1" % (S_J, S_NKB))
    a.label("L_idle_loop")
    a("s_barrier")
    a("s_sub_u32 s%d, s%d, 1" % (S_J, S_J))
    a("s_cmp_lg_u32 s%d, 0" % S_J)
    a("s_cbranch_scc1 L_idle_loop")
    a.label("L_end")
    a("s_endpgm")

    a.label("L_compute")
    lab_nl = a.newlabel("nl")
    a("s_cmp_eq_u32 s%d, 0" % S_NP)
    a("s_cbranch_scc1 %s" % lab_nl)
    pre_loads(3)
    a.label(lab_nl)
    r, h, f, h4 = V_T[0], V_T[1], V_T[2], V_T[7]
    a("v_and_b32 v%d, 31, v%d" % (r, V_LANE))
    a("v_lshrrev_b32 v%d, 5, v%d" % (h, V_LANE))
    a("v_lshlrev_b32 v%d, 2, v%d" % (h4, h))
    a("v_bfe_u32 v%d, v%d, 1, 3" % (f, r))
    a("v_xor_b32 v%d, v%d, v%d" % (f, f, h))
    a("v_lshlrev_b32 v%d, 4, v%d" % (f, f))
    a("v_lshl_add_u32 v%d, v%d, 7, v%d" % (V_KA0, r, f))
    rr, c, dh, b = V_T[3], V_T[4], V_T[5], V_T[6]
    a("v_bfe_u32 v%d, v%d, 2, 2" % (rr, V_LANE))
    a("v_and_b32 v%d, 3, v%d" % (c, V_LANE))
    a("v_bfe_u32 v%d, v%d, 4, 1" % (dh, V_LANE))
    a("v_bfe_u32 v%d, v%d, 3, 1" % (b, V_LANE))
    a("v_add_u32 v%d, v%d, v%d" % (rr, rr, h4))
    a("v_lshlrev_b32 v%d, 7, v%d" % (V_VA0, rr))
    a("v_lshl_add_u32 v%d, v%d, 6, v%d" % (V_VA0, b, V_VA0))
    a("v_lshl_add_u32 v%d, v%d, 5, v%d" % (V_VA0, dh, V_VA0))
    a("v_lshl_add_u32 v%d, v%d, 3, v%d" % (V_VA0, c, V_VA0))
    for i in range(48):
        a("v_pk_mov_b32 %s, 0, 0" % vr(V_O + 2 * i, 2)) if False else None
    for i in range(96):
        a("v_mov_b32 v%d, 0" % (V_O + i))
    a("v_mov_b32 v%d, 0" % V_L)
    a("v_add_u32 v%d, s%d, v%d" % (V_KB[0], S_QLDS, V_KA0))
    for j in range(1, 4):
        a("v_xor_b32 v%d, %d, v%d" % (V_KB[j], 32 * j, V_KB[0]))
    wait_cascade(3)
    for ks in range(12):
        a("ds_read_b128 %s, v%d offset:%d" % (vr(V_Q + 4 * ks, 4), V_KB[ks & 3], (ks >> 2) * 4096))
    a("v_add_u32 v%d, s%d, v%d" % (V_KB[0], S_K0, V_KA0))
    for j in range(1, 4):
        a("v_xor_b32 v%d, %d, v%d" % (V_KB[j], 32 * j, V_KB[0]))
    a("s_waitcnt lgkmcnt(0)")
    a("s_barrier")
    stamp(4)
    for ks in range(12):
        a("ds_read_b128 %s, v%d offset:%d" % (vr(POOL + 4 * ks, 4), V_KB[ks & 3], (ks >> 2) * 4096))
    a("s_mov_b32 s%d, 0" % S_J)
    for ks in range(12):
        a("s_waitcnt lgkmcnt(%d)" % (11 - ks))
        a("v_mfma_f32_32x32x16_bf16 %s, %s, %s, %s" % (
            vr(V_S[0], 16), vr(POOL + 4 * ks, 4), vr(V_Q + 4 * ks, 4), "0" if ks == 0 else vr(V_S[0], 16)))

    def block_max(S, mx, t2):
        a("v_max3_f32 v%d, v%d, v%d, v%d" % (mx, S, S + 1, S + 2))
        for i in range(3, 15, 2):
            a("v_max3_f32 v%d, v%d, v%d, v%d" % (mx, mx, S + i, S + i + 1))
        a("v_max_f32 v%d, v%d, v%d" % (mx, mx, S + 15))
        a("v_mov_b32 v%d, v%d" % (t2, mx))
        a("s_nop 1")
        a("v_permlane32_swap_b32 v%d, v%d" % (t2, mx))
        a("s_nop 1")
        a("v_max_f32 v%d, v%d, v%d" % (mx, mx, t2))

    stubs = []

    def sm_seq(par):
        S = V_S[par]
        tm = V_T
        out = []

        def fma(k):
            return ("v_fma_f32 v%d, v%d, s%d, v%d" % (tm[k % 8], S + k, S_C, V_NMC), 1, k // 8, 0)

        def ex(k):
            return ("v_exp_f32 v%d, v%d" % (tm[k % 8], tm[k % 8]), 2, k // 8, 0)

        def cvt(p):
            return ("v_cvt_pk_bf16_f32 v%d, v%d, v%d" % (V_P + p, tm[(2 * p) % 8], tm[(2 * p + 1) % 8]), 1, p // 4,
                    17 if p < 4 else 23)

        def add(k):
            if k == 1:
                return ("v_add_f32 v%d, v%d, v%d" % (V_BS, tm[0], tm[1]), 1, 0, 0)
            return ("ADD %d" % k, 1, k // 8, 0)
        for hf in range(2):
            o = 8 * hf
            p = 4 * hf
            out += [fma(o), fma(o + 1), ex(o), fma(o + 2), ex(o + 1), fma(o + 3), ex(o + 2), fma(o + 4), ex(o + 3)]
            if hf:
                out += [add(o)]
            out += [add(o + 1), fma(o + 5), ex(o + 4), cvt(p), add(o + 2), fma(o + 6), ex(o + 5), cvt(p + 1), add(o + 3),
                    fma(o + 7), ex(o + 6), add(o + 4), ex(o + 7), cvt(p + 2), add(o + 5), add(o + 6), cvt(p + 3),
                    add(o + 7)]
        return out

    def schedule(par, duty):
        gaps = {g: [] for g in range(BG, BG + 26)}
        load = {g: 0.0 for g in range(24)}
        load[BG % 24] += 2
        load[(BG - 2) % 24] += 4
        load[(BG - 1) % 24] += 6
        load[23] += 2

        def put(it, g):
            it.gap = g
            gaps[g].append(it)
            load[g % 24] += it.cost
        put(Item(["MASK %d" % par], 2, 0, 0, "mask"), max(SM0, BG))
        if duty:
            put(Item(["DUTYLD"], 2, 0, 0, "duty"), BG + 2)
            put(Item(["DUTYWAIT"], 6, 0, 0, "duty"), BG + 24 - 4)
        kg = []
        g = BG
        for i in range(12):
            g = max(g, 12 + i)
            while kg.count(g) >= (2 if g < BG + 2 else 1):
                g += 1
            kg.append(g)
            put(Item("ds_read_b128 %s, v%d offset:%d" % (vr(POOL + 4 * i, 4), V_KB[i & 3], (i >> 2) * 4096),
                     1, 0, 0, "K", ("F", i)), g)
            assert g <= 24 + i - 4
        for idx in range(12):
            s, t = divmod(idx, 6)
            for u in range(2):
                put(Item("ds_read_b64_tr_b16 %s, v%d offset:%d" % (
                    vr(POOL + 4 * idx + 2 * u, 2), V_VB[t & 1], HB + (16 * s + 8 * u) * 128 + (t >> 1) * 4096),
                    1, 0, 0, "V%d" % s, ("F", idx)), 24 + idx)
        e, l = max(SM0, BG), SM1
        its = [Item(txt, cost, max(mg, 24 if hf else 0), l, "sm", half=hf) for txt, cost, hf, mg in sm_seq(par)]
        its.append(Item(["CHECK %d 2" % par], 3, 0, l, "chk"))
        tot = sum(v.cost for v in its) + sum(load[g % 24] for g in range(e, l + 1))
        target = tot / (l - e + 1)
        g = e
        exc = 0.0
        for it in its:
            while g < l and (load[g % 24] + it.cost / 2.0 > target + exc or g < it.early):
                exc += target - load[g % 24]
                g += 1
            put(it, g)
        return gaps, load

    def mfma_for(slot, par):
        if slot < 12:
            Sn = V_S[par ^ 1]
            txt = "v_mfma_f32_32x32x16_bf16 %s, %s, %s, %s" % (
                vr(Sn, 16), vr(POOL + 4 * slot, 4), vr(V_Q + 4 * slot, 4), "0" if slot == 0 else vr(Sn, 16))
            return txt, ("F", slot), "qk"
        idx = slot - 12
        s, t = divmod(idx, 6)
        txt = "v_mfma_f32_32x32x16_bf16 %s, %s, %s, %s" % (
            vr(V_O + 16 * t, 16), vr(POOL + 4 * idx, 4), vr(V_P + 4 * s, 4), vr(V_O + 16 * t, 16))
        return txt, ("F", idx), "pv%d" % s

    def emit_lines(lines, tailmode=False):
        for ln in lines:
            if ln.startswith("CHECK"):
                _, par, mode = ln.split()
                stub, back = a.newlabel("slow"), a.newlabel("back")
                a("v_cmp_lt_f32 vcc, s%d, v%d" % (S_THR, V_BS))
                a("s_cbranch_vccnz %s" % stub)
                a.label(back)
                a("v_add_f32 v%d, v%d, v%d" % (V_L, V_L, V_BS))
                stubs.append((stub, "L_slow_%s_%s" % (par, mode), back))
            elif ln.startswith("MASK"):
                _, par = ln.split()
                stub, back = a.newlabel("mstub"), a.newlabel("mback")
                a("s_cmp_eq_u32 s%d, s%d" % (S_J, S_NF))
                a("s_cbranch_scc1 %s" % stub)
                a.label(back)
                stubs.append((stub, "L_mask_%s" % par, back))
            elif ln.startswith("ADD"):
                k = int(ln.split()[1])
                if tailmode and k == 8:
                    a("v_mov_b32 v%d, v%d" % (V_BS, V_T[0]))
                else:
                    a("v_add_f32 v%d, v%d, v%d" % (V_BS, V_BS, V_T[k % 8]))
            elif ln == "DUTYLD":
                stub, back = a.newlabel("dl"), a.newlabel("dlb")
                a("s_cmp_lt_u32 s%d, s%d" % (S_LN, S_NKB))
                a("s_cbranch_scc1 %s" % stub)
                a.label(back)
                stubs.append((stub, "L_dutyld", back))
            elif ln == "DUTYWAIT":
                a("s_add_u32 s%d, s%d, 1" % (S_NEED, S_NEED))
                wait_cascade(3)
            else:
                a(ln)

    def skip_item(it):
        return ("L" in abl and it.writes is not None) or ("S" in abl and it.kind in ("sm", "chk"))

    def emit_stream(seq, outstanding, tailmode=False):
        issued = list(outstanding)
        done = 0
        for idx, e in enumerate(seq):
            if e[0] == "m":
                frag = e[2]
                need = max([k for k, fr in enumerate(issued) if fr == frag], default=-1) + 1
                if need > done:
                    tgt = need
                    cnt = 0
                    for e2 in seq[idx + 1:]:
                        if e2[0] == "m":
                            n2 = max([k for k, fr in enumerate(issued) if fr == e2[2]], default=-1) + 1
                            if n2 > tgt and n2 <= len(issued) - 6 and cnt < 5:
                                tgt = n2
                                cnt += 1
                            else:
                                break
                    n = len(issued) - tgt
                    a("s_waitcnt lgkmcnt(%d)" % min(15, n))
                    done = len(issued) - min(15, n)
                a(e[1])
            elif e[0] == "i":
                it = e[1]
                if skip_item(it):
                    continue
                emit_lines(it.lines, tailmode)
                if it.writes is not None:
                    issued.append(it.writes)
            elif e[0] == "bar":
                a("s_waitcnt lgkmcnt(0)")
                a("s_barrier")
                issued, done = [], 0
            elif e[0] == "raw":
                emit_lines([e[1]], tailmode)
            elif e[0] == "label":
                a.label(e[1])

    def addr_lines():
        return (["v_add_u32 v%d, s%d, v%d" % (V_KB[0], S_SLOT, V_KA0), "v_add_u32 v%d, s%d, v%d" % (V_VB[0], S_SLOT, V_VA0)] +
                ["v_xor_b32 v%d, %d, v%d" % (V_KB[j], 32 * j, V_KB[0]) for j in range(1, 4)] +
                ["v_xor_b32 v%d, 64, v%d" % (V_VB[1], V_VB[0])])

    def compute_path(duty):
        sfx = "d" if duty else "n"
        scheds = [schedule(0, duty), schedule(1, duty)]
        sys.stderr.write("gap loads (%s): %s\n" % (sfx, " ".join("%.0f" % scheds[0][1][g] for g in range(24))))

        def next_items(par):
            return [it for g in range(BG, 24) for it in scheds[par][0][g]]

        def nfr(par):
            return [it.writes for it in next_items(par) if it.writes is not None and not skip_item(it)]

        def body(par):
            cur, nxt = scheds[par][0], scheds[par ^ 1][0]
            seq = []
            for slot in range(24):
                txt, frag, kind = mfma_for(slot, par)
                seq.append(("m", txt, frag))
                for it in cur.get(slot + 24, []):
                    seq.append(("i", it))
                if slot == BG - 2:
                    seq += [("raw", "s_add_u32 s%d, s%d, s%d" % (S_SLOT, S_SLOT, S_STEP)),
                            ("raw", "s_sub_u32 s%d, s%d, %d" % (S_TMP3, S_SLOT, RING)),
                            ("raw", "s_cselect_b32 s%d, s%d, s%d" % (S_SLOT, S_SLOT, S_TMP3)),
                            ("raw", "s_add_u32 s%d, s%d, 1" % (S_J, S_J))]
                if slot == BG - 1:
                    seq += [("raw", x) for x in addr_lines()]
                if slot == BG:
                    seq.append(("bar",))
                if slot >= BG:
                    for it in nxt.get(slot, []):
                        seq.append(("i", it))
            return seq

        def tail(par):
            cur = scheds[par][0]
            rest = [it for g in range(24, BG + 26) for it in cur[g]]
            assert all(it.half != 1 for it in next_items(par)), "second half started too early"
            vreads = [it for it in rest if it.kind in ("V0", "V1")]
            h0 = [it for it in rest if it.kind == "sm" and it.half == 0]
            h1 = [it for it in rest if it.kind == "sm" and it.half == 1]
            seq = []
            v0 = [it for it in vreads if it.kind == "V0"]
            v1 = [it for it in vreads if it.kind == "V1"]
            k = 0
            for it in v0:
                seq.append(("i", it))
                if k < len(h0):
                    seq.append(("i", h0[k]))
                    k += 1
            for it in h0[k:]:
                seq.append(("i", it))
            seq.append(("raw", "CHECK %d 0" % par))
            seq.append(("raw", "s_cmp_le_u32 s%d, 16" % S_NVAL))
            seq.append(("raw", "s_cbranch_scc1 L_short_%s%d" % (sfx, par)))
            k = 0
            kv = 0
            per = (len(h1) + 5) // 6
            for t in range(6):
                txt, frag, kind = mfma_for(12 + t, par)
                seq.append(("m", txt, frag))
                for it in v1[2 * t:2 * t + 2]:
                    seq.append(("i", it))
                for it in h1[k:k + per]:
                    seq.append(("i", it))
                k += per
            seq.append(("raw", "CHECK %d 1" % par))
            for t in range(6):
                txt, frag, kind = mfma_for(18 + t, par)
                seq.append(("m", txt, frag))
            seq.append(("raw", "s_branch L_epi"))
            short = [("label", "L_short_%s%d" % (sfx, par)), ("raw", "s_waitcnt lgkmcnt(0)")]
            for t in range(6):
                txt, frag, kind = mfma_for(12 + t, par)
                short.append(("raw", txt))
            short.append(("raw", "s_branch L_epi"))
            return seq, short

        if duty:
            a("s_add_u32 s%d, s%d, %d" % (S_LIM, S_LN, RAMPD))
            a("s_min_u32 s%d, s%d, s%d" % (S_LIM, S_LIM, S_DEPTH))
            load_upto(S_LIM, 3)
            a("s_add_u32 s%d, s%d, 1" % (S_NEED, S_NEED))
            wait_cascade(3)
        for x in addr_lines():
            a(x)
        a("s_nop 6")
        block_max(V_S[0], V_M, V_T[1])
        a("v_mul_f32 v%d, s%d, v%d" % (V_NMC, S_C, V_M))
        a("v_sub_f32 v%d, 0, v%d" % (V_NMC, V_NMC))
        emit_stream([("bar",)] + [("i", it) for it in next_items(0)], [])
        a.label("L_loop_" + sfx)
        emit_stream(body(0), nfr(0))
        a("s_cmp_eq_u32 s%d, s%d" % (S_J, S_NF))
        a("s_cbranch_scc1 L_tail1_" + sfx)
        emit_stream(body(1), nfr(1))
        a("s_cmp_lg_u32 s%d, s%d" % (S_J, S_NF))
        a("s_cbranch_scc1 L_loop_" + sfx)
        t0, s0 = tail(0)
        t1, s1 = tail(1)
        emit_stream(t0, nfr(0), True)
        a.label("L_tail1_" + sfx)
        emit_stream(t1, nfr(1), True)
        emit_stream(s0, [], True)
        emit_stream(s1, [], True)

    a("s_cmp_lg_u32 s%d, 0" % S_NP)
    a("s_cbranch_scc1 L_duty_path")
    compute_path(False)
    a.label("L_duty_path")
    compute_path(True)

    a.label("L_epi")
    stamp(5)
    a("s_add_u32 s%d, s%d, s%d" % (S_TMP, S_SLOT, S_SCR))
    a("s_sub_u32 s%d, s%d, %d" % (S_TMP2, S_TMP, RING))
    a("s_cselect_b32 s%d, s%d, s%d" % (S_TMP, S_TMP, S_TMP2))
    a("v_mov_b32 v%d, v%d" % (V_T[0], V_L))
    q, hh = V_T[1], V_T[2]
    a("v_and_b32 v%d, 31, v%d" % (q, V_LANE))
    a("v_lshrrev_b32 v%d, 5, v%d" % (hh, V_LANE))
    a("v_permlane32_swap_b32 v%d, v%d" % (V_T[0], V_L))
    a("v_lshlrev_b32 v%d, 7, v%d" % (V_T[3], q))
    a("v_add_f32 v%d, v%d, v%d" % (V_L, V_L, V_T[0]))
    a("v_and_b32 v%d, 7, v%d" % (q, q))
    a("v_rcp_f32 v%d, v%d" % (V_L, V_L))
    a("v_lshl_add_u32 v%d, v%d, 4, v%d" % (V_T[3], q, V_T[3]))
    a("v_lshl_add_u32 v%d, v%d, 3, v%d" % (V_T[3], hh, V_T[3]))
    a("v_mov_b32 v%d, v%d" % (V_M, V_L))
    a("v_add_u32 v%d, s%d, v%d" % (POOL, S_TMP, V_T[3]))
    for c in range(1, 8):
        a("v_xor_b32 v%d, %d, v%d" % (POOL + c, 16 * c, POOL))
    for t in range(6):
        for g in range(4):
            o = V_O + 16 * t + 4 * g
            d = V_P + 2 * ((4 * t + g) % 4)
            a("v_pk_mul_f32 %s, %s, %s" % (vr(o, 2), vr(o, 2), vr(V_L, 2)))
            a("v_pk_mul_f32 %s, %s, %s" % (vr(o + 2, 2), vr(o + 2, 2), vr(V_L, 2)))
            a("v_cvt_pk_bf16_f32 v%d, v%d, v%d" % (d, o, o + 1))
            a("v_cvt_pk_bf16_f32 v%d, v%d, v%d" % (d + 1, o + 2, o + 3))
            c = 4 * t + g
            a("ds_write_b64 v%d, %s offset:%d" % (POOL + (c & 7), vr(d, 2), (c >> 3) * 4096))
    a("v_lshlrev_b32 v%d, 4, v%d" % (V_T[4], V_LANE))
    a("v_add_u32 v%d, s%d, v%d" % (POOL + 8, S_TMP, V_T[4]))
    a("v_lshrrev_b32 v%d, 3, v%d" % (V_T[0], V_LANE))
    a("v_and_b32 v%d, 7, v%d" % (V_T[1], V_LANE))
    a("v_xor_b32 v%d, v%d, v%d" % (V_T[1], V_T[1], V_T[0]))
    a("v_mul_u32_u24 v%d, %d, v%d" % (V_T[0], RS, V_T[0]))
    a("v_lshl_add_u32 v%d, v%d, 4, v%d" % (V_T[0], V_T[1], V_T[0]))
    a("v_add_u32 v%d, s%d, v%d" % (POOL + 9, S_QOFF, V_T[0]))
    for rg in range(1, 4):
        a("v_add_u32 v%d, %d, v%d" % (POOL + 9 + rg, rg * 8 * RS, POOL + 9))
    stamp(6)
    a("s_waitcnt lgkmcnt(0)")
    order = [(rg, lc) for rg in range(4) for lc in range(3)]
    for j, (rg, lc) in enumerate(order):
        a("ds_read_b128 %s, v%d offset:%d" % (vr(V_O + 4 * j, 4), POOL + 8, lc * 4096 + rg * 1024))
    for j, (rg, lc) in enumerate(order):
        a("s_waitcnt lgkmcnt(%d)" % (11 - j))
        a("buffer_store_dwordx4 %s, v%d, %s, 0 offen offset:%d %s" % (
            vr(V_O + 4 * j, 4), POOL + 9 + rg, sr(SRD_O, 4), lc * 128, stf))
    stamp_flush()
    a("s_endpgm")

    for stub, target, back in stubs:
        a.label(stub)
        a("s_call_b64 %s, %s" % (sr(S_RET, 2), target))
        a("s_branch %s" % back)
    a.label("L_dutyld")
    load_body(3)
    a("s_setpc_b64 %s" % sr(S_RET, 2))
    for par in range(2):
        S = V_S[par]
        a.label("L_mask_%d" % par)
        a("s_nop 7")
        a("v_lshrrev_b32 v%d, 5, v%d" % (V_T[1], V_LANE))
        a("v_lshlrev_b32 v%d, 2, v%d" % (V_T[1], V_T[1]))
        a("v_mov_b32 v%d, 0xff800000" % V_T[0])
        for g in range(4):
            for i in range(4):
                a("s_sub_u32 s%d, s%d, %d" % (S_TMP2, S_NVAL, 8 * g + i))
                a("v_cmp_gt_i32 vcc, s%d, v%d" % (S_TMP2, V_T[1]))
                a("s_nop 1")
                a("v_cndmask_b32 v%d, v%d, v%d, vcc" % (S + 4 * g + i, V_T[0], S + 4 * g + i))
        a("s_setpc_b64 %s" % sr(S_RET, 2))
    a.label("L_rescale")
    mx, t2 = V_T[0], V_T[1]
    a("v_max_f32 v%d, v%d, v%d" % (mx, mx, V_M))
    a("v_sub_f32 v%d, v%d, v%d" % (t2, V_M, mx))
    a("v_mul_f32 v%d, s%d, v%d" % (t2, S_C, t2))
    a("v_exp_f32 v%d, v%d" % (t2, t2))
    a("v_mov_b32 v%d, v%d" % (V_M, mx))
    a("v_mul_f32 v%d, s%d, v%d" % (V_NMC, S_C, mx))
    a("v_sub_f32 v%d, 0, v%d" % (V_NMC, V_NMC))
    a("v_mul_f32 v%d, v%d, v%d" % (V_L, V_L, t2))
    for i in range(96):
        a("v_mul_f32 v%d, v%d, v%d" % (V_O + i, V_O + i, t2))
    a("s_setpc_b64 %s" % sr(S_RET2, 2))
    for par in range(2):
        for mode in range(3):
            S = V_S[par]
            a.label("L_slow_%d_%d" % (par, mode))
            a("s_nop 15")
            block_max(S, mx, t2)
            a("s_call_b64 %s, L_rescale" % sr(S_RET2, 2))
            first = True
            for hf in ([0, 1] if mode == 2 else [mode]):
                for k in range(8):
                    a("v_fma_f32 v%d, v%d, s%d, v%d" % (V_T[k], S + 8 * hf + k, S_C, V_NMC))
                for k in range(8):
                    a("v_exp_f32 v%d, v%d" % (V_T[k], V_T[k]))
                a("s_nop 0")
                for p in range(4):
                    a("v_cvt_pk_bf16_f32 v%d, v%d, v%d" % (V_P + 4 * hf + p, V_T[2 * p], V_T[2 * p + 1]))
                for k in range(8):
                    if first:
                        a("v_mov_b32 v%d, v%d" % (V_BS, V_T[k]))
                        first = False
                    else:
                        a("v_add_f32 v%d, v%d, v%d" % (V_BS, V_BS, V_T[k]))
            a("s_setpc_b64 %s" % sr(S_RET, 2))
    a.lines.append(".p2align 6")
    a.lines.append(".type L_table,@object")
    a.label("L_table")
    for d in TABLE:
        a(".long " + ", ".join("0x%x" % x for x in d))
    a.lines.append(".size L_table, %d" % (64 * len(TABLE)))

    hdr = open("cdna_kernels/%s.s.ref" % NAME).read().split("\n")
    out = []
    for ln in hdr:
        if ln.startswith("; @launch"):
            out.append("; @launch grid=(256,1,1) block=(512,1,1) lds=%d" % LDS_TOTAL)
        elif ln.startswith(";"):
            out.append(ln)
        else:
            break
    out += [
        '.amdgcn_target "amdgcn-amd-amdhsa--gfx950"',
        ".text",
        ".globl %s_kernel" % NAME,
        ".p2align 8",
        ".type %s_kernel,@function" % NAME,
    ]
    out += a.lines
    out += [
        '.section .rodata,"a"',
        ".p2align 6",
        ".amdhsa_kernel %s_kernel" % NAME,
        "  .amdhsa_next_free_vgpr 256",
        "  .amdhsa_next_free_sgpr 96",
        "  .amdhsa_accum_offset 256",
        "  .amdhsa_group_segment_fixed_size 0",
        "  .amdhsa_kernarg_size 56",
        "  .amdhsa_user_sgpr_count 2",
        "  .amdhsa_user_sgpr_kernarg_segment_ptr 1",
        "  .amdhsa_system_sgpr_workgroup_id_x 1",
        ".end_amdhsa_kernel",
        "",
    ]
    return "\n".join(out)


def parse_plan(s):
    out = []
    for (seq, parts, _, _, _), x in zip(DEFAULT_PLAN, s.split(",")):
        qg, npre, thr = x.split(".")
        out.append((seq, parts, int(qg), int(npre), int(thr)))
    return out


if __name__ == "__main__":
    dst = sys.argv[1] if len(sys.argv) > 1 and not sys.argv[1].startswith("--") else "cdna_kernels/%s.s" % NAME

    def opt(n, d):
        for x in sys.argv:
            if x.startswith("--" + n + "="):
                return x.split("=", 1)[1].replace("+", " ")
        return d
    plan = parse_plan(opt("plan", "")) if opt("plan", "") else None
    open(dst, "w").write(gen(stamps=(2 if "--dbg" in sys.argv else 1 if "--stamps" in sys.argv else 0), qf=opt("qf", "nt"), kvf=opt("kvf", "nt"),
                             stf=opt("stf", ""), BG=int(opt("bg", "14")), rot="--rot" in sys.argv, abl=opt("abl", ""),
                             plan=plan, SM0=int(opt("sm0", "14")), SM1=int(opt("sm1", "35")),
                             RAMP=int(opt("ramp", "1")), NPF=int(opt("npf", "2")),
                             PFWAIT=int(opt("pfwait", "1")), RAMPD=int(opt("rampd", "2")),
                             pfspec=([] if "--nopf" in sys.argv else None),
                             XC=int(opt("xc", "0")), XM=int(opt("xm", "0")), XMS=int(opt("xms", "2097152"))))
    print("wrote", dst)
```

```python
import math
import struct
import sys

NAME = "standalone__varlen_attn_packed__ragged"
CU = [0, 238, 376, 669, 835, 1320, 1545, 1865, 2058]
T, H, D = 2058, 16, 192
RS = H * D * 2
HB = 12288
BLK = 2 * HB
NSLOT = 6
LDS_TOTAL = 163840
CSCALE = (D ** -0.5) * math.log2(math.e)
THR = 1024.0


def f32(x):
    return struct.unpack("<I", struct.pack("<f", x))[0]


RING = NSLOT * BLK
NKB = [(CU[i + 1] - CU[i] + 31) // 32 for i in range(8)]

DEFAULT_PLAN = [(4, [4, 4, 4, 4], 0, 2, 0), (7, [7], 0, 2, 0), (3, [6], 1, 3, 0),
                (6, [4, 4, 2], 1, 2, 0), (2, [4, 4, 2], 1, 2, 0), (1, [5], 1, 3, 0), (0, [4, 4], 1, 2, 0),
                (5, [4, 4], 1, 2, 0)]


def make_wgs(plan):
    wgs = []
    for seq, parts, win, npre, rot in plan:
        nf = NKB[seq] - 1
        t0 = 0
        assert sum(parts) == NKB[seq]
        for r, nt in enumerate(parts):
            rr = ((r * nf) // len(parts)) if rot else 0
            if nt == 2:
                wgs.append(dict(seq=seq, t0=t0, nt=4, dual=True, hb=0, rot=rr, win=win, npre=min(npre, 1)))
            else:
                for hb in range(2):
                    wgs.append(dict(seq=seq, t0=t0, nt=nt, dual=False, hb=hb, rot=rr, win=win,
                                    npre=min(npre, 5 - (nt - 1) // 2)))
            t0 += nt
    assert len(wgs) == 32, len(wgs)
    return wgs


def prefetch_list(spec):
    items = []
    for ten, seq, b0, b1 in spec:
        for b in range(b0, b1 + 1):
            for rg in range(4):
                row = CU[seq] + 32 * b + 8 * rg
                if row < CU[seq + 1]:
                    items.append((ten, row))
    return items


def default_pf():
    spec = []
    for b in range(0, 6):
        spec += [("K", 4, b + 1, b + 1), ("V", 4, b, b)]
        if b < 3:
            spec += [("K", 7, b + 1, b + 1), ("V", 7, b, b)]
    return spec


def wave_desc(wg, w, pf):
    seq, nt, dual = wg["seq"], wg["nt"], wg["dual"]
    s0, s1 = CU[seq], CU[seq + 1]
    nkb = NKB[seq]
    nval = (s1 - s0) - 32 * (nkb - 1)
    step = 2 * BLK if dual else BLK
    ns = RING // step
    compute = w < nt
    if dual:
        hb = (w >> 1) & 1
        tile = wg["t0"] + (w & 1)
        so = hb * BLK
        qlds = [12 * HB, 9 * HB, 11 * HB, 7 * HB][w & 3]
        if w >= 4:
            isk, nrg, rg0 = 1 - (w & 1), 4, 0
        else:
            isk, nrg, rg0 = 0, 0, 0
    else:
        hb = wg["hb"]
        tile = wg["t0"] + w
        so = 0
        qlds = (12 - w - (1 if w >= 2 else 0)) * HB
        if nt > 4:
            isk, nrg, rg0 = (1 if w < 4 else 0), 1, w & 3
        elif w >= 4:
            isk, nrg, rg0 = (1 if w < 6 else 0), 2, 2 * (w & 1)
        else:
            isk, nrg, rg0 = 0, 0, 0
    role = (3 if nrg else 2) if compute else (1 if nrg else 0)
    d0 = role | (isk << 2) | (nrg << 3) | ((rg0 & 1) << 6) | (wg["win"] << 8) | (nkb << 10) | (nval << 16) | \
        (wg["rot"] << 22) | (len(pf) << 26)
    k0 = RING - step + so
    ldst0 = (k0 if isk else so + HB) + rg0 * 1024
    d = [d0, s1 * RS, (s0 + 32 * tile) * RS + hb * 384, qlds, (s0 + 8 * rg0) * RS + hb * 384, ldst0, step,
         wg["npre"] + isk, ns - 1 + isk, so, k0, step - so + w * HB]
    for ten, row in pf:
        d.append(row * RS | ((1 << 31) if ten == "V" else 0))
    d += [0] * (16 - len(d))
    return d


def make_table(plan, pfspec, npf):
    wgs = make_wgs(plan)
    items = prefetch_list(pfspec)
    slots = [(j, w) for w in range(8) for j, wg in enumerate(wgs) if wg["win"] > 0 and w < wg["nt"]]
    assign = {}
    for k, it in enumerate(items):
        key = slots[k % len(slots)]
        if len(assign.setdefault(key, [])) < npf:
            assign[key].append(it)
    tab = []
    for j, wg in enumerate(wgs):
        for w in range(8):
            tab.append(wave_desc(wg, w, assign.get((j, w), [])))
    return wgs, tab


class Asm:
    def __init__(self):
        self.lines = []
        self.nlabel = 0

    def __call__(self, s):
        self.lines.append("    " + s)

    def label(self, name):
        self.lines.append(name + ":")

    def newlabel(self, base):
        self.nlabel += 1
        return "L_%s_%d" % (base, self.nlabel)


def vr(lo, n):
    return "v[%d:%d]" % (lo, lo + n - 1)


def sr(lo, n):
    return "s[%d:%d]" % (lo, lo + n - 1)


class Item:
    def __init__(self, lines, cost, early, late, kind, writes=None, half=None):
        self.lines = lines if isinstance(lines, list) else [lines]
        self.cost, self.early, self.late, self.kind = cost, early, late, kind
        self.writes = writes
        self.half = half
        self.gap = None


def gen(stamps=False, qf="nt", kvf="nt", stf="", plan=None, BG=14, rot=False, abl="", SM0=14, SM1=35, RAMP=1, NIMM=1, pfspec=None, NPF=2, PFWAIT=1, RAMPD=2, XC=0, XM=0, XMS=0x200000, XMP=48):
    a = Asm()
    WGS, TABLE = make_table(plan or DEFAULT_PLAN, default_pf() if pfspec is None else pfspec, NPF)
    NST = 8
    DBGWG = [0, 70, 133, 255]
    S_ST = 64

    V_LANE = 0
    V_T = list(range(1, 9))
    V_KA0, V_VA0 = 9, 10
    V_KB = [11, 12, 13, 14]
    V_VB = [15, 16]
    V_DE, V_DO = 17, 18
    V_L, V_M, V_BS, V_NMC = 20, 21, 22, 23
    POOL = 24
    V_P = 72
    V_S = [80, 96]
    V_Q = 112
    V_O = 160
    S_Q, S_K, S_V, S_OUT = 4, 6, 8, 12
    S_WIN, S_XB = 14, 15
    SRD_Q, SRD_KV, SRD_O = 16, 20, 24
    S_W = 28
    S_TMP, S_TMP2, S_TMP3, S_LIM = 29, 30, 31, 91
    S_CF = 32
    S_FL, S_NREC, S_QOFF, S_QLDS, S_GOFF, S_LDST, S_STEP, S_NPRE, S_DEPTH, S_SLOT, S_K0, S_SCR = range(32, 44)
    S_PF = 44
    S_NKB, S_NF, S_NVAL, S_J = 48, 49, 50, 51
    S_LN, S_LB, S_ISK, S_NP, S_REM, S_NEED = 52, 53, 54, 55, 62, 63
    S_C, S_THR = 56, 57
    S_RET = 58
    S_RET2 = 60
    S_PC = 92
    WINS = [0, 4, 2, 1]

    def stamp(i, real=False):
        if stamps:
            a(("s_memrealtime %s" if real else "s_memtime %s") % sr(S_ST + 2 * i, 2))
            a("s_waitcnt lgkmcnt(0)")

    def stamp_flush(iters=False):
        if not stamps:
            return
        a("s_waitcnt vmcnt(0)")
        stamp(1, True)
        stamp(7)
        if stamps == 2:
            lab = a.newlabel("dbg")
            a("s_cmp_lg_u32 s%d, 0" % S_W)
            a("s_cbranch_scc1 %s" % lab)
            a("s_mov_b32 s83, 99")
            for k, wg in enumerate(DBGWG):
                a("s_cmp_eq_u32 s2, %d" % wg)
                a("s_cselect_b32 s83, %d, s83" % k)
            a("s_cmp_eq_u32 s83, 99")
            a("s_cbranch_scc1 %s" % lab)
            a("s_load_dwordx2 s[80:81], s[0:1], 40")
            a("s_waitcnt lgkmcnt(0)")
            a("s_mov_b32 s84, s80")
            a("s_mov_b32 s85, s81")
            a("s_mov_b32 s86, 256")
            a("s_mov_b32 s87, 0x00020000")
            a("s_mov_b64 exec, 1")
            a("s_lshl_b32 s83, s83, 4")
            a("v_mov_b32 v1, s83")
            a("v_mov_b32 v4, s%d" % S_ST)
            a("v_mov_b32 v5, s%d" % (S_ST + 2))
            a("s_sub_u32 s82, s%d, s%d" % (S_ST + 8, S_ST + 4))
            a("v_mov_b32 v6, s82")
            a("s_sub_u32 s82, s%d, s%d" % (S_ST + 14, S_ST + 4))
            a("v_mov_b32 v7, s82")
            a("buffer_store_dwordx4 v[4:7], v1, s[84:87], 0 offen")
            a.label(lab)
            return
        a("s_load_dwordx2 s[80:81], s[0:1], 48")
        a("s_waitcnt lgkmcnt(0)")
        a("s_mov_b32 s84, s80")
        a("s_mov_b32 s85, s81")
        a("s_mov_b32 s86, 0x100000")
        a("s_mov_b32 s87, 0x00020000")
        a("s_lshl_b32 s82, s2, 3")
        a("s_add_u32 s82, s82, s%d" % S_W)
        a("s_mul_i32 s83, s82, %d" % (NST * 8))
        a("v_mov_b32 v1, s83")
        a("s_mov_b64 exec, 1")
        for i in range(NST):
            a("v_mov_b32 v2, s%d" % (S_ST + 2 * i))
            a("v_mov_b32 v3, s%d" % (S_ST + 2 * i + 1))
            a("buffer_store_dwordx2 v[2:3], v1, s[84:87], 0 offen offset:%d" % (8 * i))
            a("s_nop 1")
        if iters:
            a("s_mov_b64 exec, -1")
            a("s_lshl_b32 s82, s82, 8")
            a("s_add_u32 s82, s82, 0x80000")
            a("v_lshlrev_b32 v1, 2, v0")
            a("v_add_u32 v1, s82, v1")
            a("buffer_store_dword v90, v1, s[84:87], 0 offen")

    a.label(NAME + "_kernel")
    a("s_cmp_ge_u32 s2, 256")
    a("s_cbranch_scc1 L_end")
    stamp(0, True)
    stamp(2)
    a("s_load_dwordx8 s[4:11], s[0:1], 0")
    a("s_load_dwordx2 s[12:13], s[0:1], 32")
    a("v_lshrrev_b32 v1, 6, v0")
    a("s_getpc_b64 %s" % sr(S_PC, 2))
    a.label("L_pc")
    a("v_readfirstlane_b32 s%d, v1" % S_W)
    a("s_and_b32 s%d, s2, 0xf8" % S_TMP)
    a("s_add_u32 s%d, s%d, L_table-L_pc" % (S_PC, S_PC))
    a("s_addc_u32 s%d, s%d, 0" % (S_PC + 1, S_PC + 1))
    a("s_add_u32 s%d, s%d, s%d" % (S_TMP, S_TMP, S_W))
    a("s_lshl_b32 s%d, s%d, 6" % (S_TMP, S_TMP))
    a("s_load_dwordx16 %s, %s, s%d" % (sr(S_CF, 16), sr(S_PC, 2), S_TMP))
    a("v_and_b32 v0, 63, v0")
    a("s_and_b32 s%d, s2, 7" % S_XB)
    a("s_mul_i32 s%d, s%d, 768" % (S_XB, S_XB))
    a("v_lshrrev_b32 v1, 3, v0")
    a("v_and_b32 v2, 7, v0")
    a("v_bfe_u32 v3, v0, 4, 2")
    a("v_bfe_u32 v4, v0, 4, 1")
    a("v_mul_u32_u24 v1, %d, v1" % RS)
    a("v_xor_b32 v3, v2, v3")
    a("v_lshlrev_b32 v4, 2, v4")
    a("v_xor_b32 v4, v2, v4")
    a("v_min_u32 v2, 5, v2")
    a("v_lshl_add_u32 v5, v3, 4, v1")
    a("v_lshl_add_u32 v7, v4, 4, v1")
    a("v_xor_b32 v6, 64, v5")
    a("v_lshl_add_u32 v8, v2, 7, v1")
    a("s_mov_b32 s%d, 0x00020000" % (SRD_Q + 3))
    a("s_mov_b32 s%d, 0x00020000" % (SRD_KV + 3))
    a("s_mov_b32 s%d, 0x00020000" % (SRD_O + 3))
    a("s_mov_b32 s%d, %d" % (SRD_KV + 2, T * RS))
    a("s_mov_b32 s%d, 0x%x" % (S_C, f32(CSCALE)))
    a("s_mov_b32 s%d, 0x%x" % (S_THR, f32(THR)))
    a("s_mov_b32 s%d, 0" % S_LN)
    a("s_waitcnt lgkmcnt(0)")
    stamp(3)
    a("s_mov_b32 s%d, s%d" % (SRD_Q, S_Q))
    a("s_mov_b32 s%d, s%d" % (SRD_Q + 1, S_Q + 1))
    if XC:
        a("s_mov_b32 s90, %d" % XC)
        a.label("L_xc")
        for i in range(32):
            a("v_add_f32 v100, v100, v100")
        a("s_sub_u32 s90, s90, 1")
        a("s_cmp_lg_u32 s90, 0")
        a("s_cbranch_scc1 L_xc")
    if XM:
        a("s_load_dwordx2 s[80:81], s[0:1], %d" % XMP)
        a("s_waitcnt lgkmcnt(0)")
        a("s_mov_b32 s84, s80")
        a("s_mov_b32 s85, s81")
        a("s_mov_b32 s86, %d" % (0x10000000 if XMP == 48 else T * RS))
        a("s_mov_b32 s87, 0x00020000")
        a("s_lshl_b32 s82, s2, 3")
        a("s_add_u32 s82, s82, s%d" % S_W)
        a("s_lshl_b32 s82, s82, 10")
        a("v_lshlrev_b32 v100, 4, v0")
        for i in range(XM):
            a("s_add_u32 s83, s82, %d" % (i * XMS))
            a("buffer_load_dwordx4 v[104:107], v100, s[84:87], s83 offen nt")
            a("s_waitcnt vmcnt(0)")
    a("s_mov_b32 s%d, s%d" % (SRD_Q + 2, S_NREC))
    a("s_add_u32 s%d, s%d, s%d" % (S_QOFF, S_QOFF, S_XB))
    a("s_bfe_u32 s%d, s%d, 0x20008" % (S_WIN, S_FL))
    a("s_bitcmp1_b32 s%d, 1" % S_FL)
    a("s_cbranch_scc0 L_noq")
    a("s_cmp_lg_u32 s%d, 0" % S_WIN)
    a("s_cbranch_scc1 L_qthr")

    def q_loads(win):
        for rg in range(4):
            a("s_add_u32 s%d, s%d, %d" % (S_TMP, S_QOFF, rg * 8 * RS))
            for lc in range(3):
                a("s_add_u32 m0, s%d, %d" % (S_QLDS, lc * 4096 + rg * 1024 - lc * 128))
                if win and 3 * rg + lc >= win:
                    a("s_waitcnt vmcnt(%d)" % (win - 1))
                else:
                    a("s_nop 0")
                a("buffer_load_dwordx4 v%d, %s, s%d offen offset:%d %s lds" % (5 + (rg & 1), sr(SRD_Q, 4), S_TMP, lc * 128, qf))
    q_loads(0)
    a("s_branch L_noq")
    a.label("L_qthr")
    a("s_bfe_u32 s%d, s%d, 0x3001a" % (S_TMP3, S_FL))
    for i in range(NPF):
        a("s_cmp_le_u32 s%d, %d" % (S_TMP3, i))
        a("s_cbranch_scc1 L_pfdone")
        a("s_bitcmp1_b32 s%d, 31" % (S_PF + i))
        a("s_cselect_b32 s%d, s%d, s%d" % (SRD_KV, S_V, S_K))
        a("s_cselect_b32 s%d, s%d, s%d" % (SRD_KV + 1, S_V + 1, S_K + 1))
        a("s_and_b32 s%d, s%d, 0xffffff" % (S_TMP, S_PF + i))
        a("s_add_u32 s%d, s%d, s%d" % (S_TMP, S_TMP, S_XB))
        a("buffer_load_dword v19, v8, %s, s%d offen %s" % (sr(SRD_KV, 4), S_TMP, kvf))
    a.label("L_pfdone")
    if PFWAIT:
        a("s_waitcnt vmcnt(0)")
    for wc in range(2, 4):
        a("s_cmp_eq_u32 s%d, %d" % (S_WIN, wc))
        a("s_cbranch_scc1 L_q%d" % wc)
    for wc in range(1, 4):
        a.label("L_q%d" % wc)
        q_loads(WINS[wc])
        if wc < 3:
            a("s_branch L_noq")
    a.label("L_noq")
    a("s_bfe_u32 s%d, s%d, 0x6000a" % (S_NKB, S_FL))
    a("s_bfe_u32 s%d, s%d, 0x60010" % (S_NVAL, S_FL))
    a("s_bfe_u32 s%d, s%d, 0x40016" % (S_LB, S_FL))
    a("s_bfe_u32 s%d, s%d, 0x10002" % (S_ISK, S_FL))
    a("s_bfe_u32 s%d, s%d, 0x30003" % (S_NP, S_FL))
    a("s_mul_i32 s%d, s%d, 3" % (S_NP, S_NP))
    a("s_sub_u32 s%d, s%d, 1" % (S_NF, S_NKB))
    a("s_mov_b32 s%d, s%d" % (SRD_KV + 2, S_NREC))
    a("s_mov_b32 s%d, s%d" % (SRD_O + 2, S_NREC))
    a("s_mov_b32 s%d, s%d" % (SRD_O, S_OUT))
    a("s_mov_b32 s%d, s%d" % (SRD_O + 1, S_OUT + 1))
    a("s_add_u32 s%d, s%d, s%d" % (S_GOFF, S_GOFF, S_XB))
    a("s_bitcmp1_b32 s%d, 6" % S_FL)
    a("s_cselect_b64 vcc, -1, 0")
    a("v_cndmask_b32 v%d, v5, v6, vcc" % V_DE)
    a("v_mov_b32 v%d, v6" % V_DO)
    a("s_cmp_eq_u32 s%d, 0" % S_ISK)
    a("s_cselect_b64 vcc, -1, 0")
    a("s_cselect_b32 s%d, s%d, s%d" % (SRD_KV, S_V, S_K))
    a("s_cselect_b32 s%d, s%d, s%d" % (SRD_KV + 1, S_V + 1, S_K + 1))
    a("v_cndmask_b32 v%d, v%d, v7, vcc" % (V_DE, V_DE))
    a("v_cndmask_b32 v%d, v%d, v7, vcc" % (V_DO, V_DO))
    a("s_mov_b32 s%d, s%d" % (S_NEED, S_ISK))

    def load_body(np_static, win=0, first=False):
        nop = ("s_waitcnt vmcnt(%d)" % (win - 1)) if win else "s_nop 0"
        a("s_cmp_eq_u32 s%d, s%d" % (S_LN, S_NF))
        a("s_cselect_b32 s%d, s%d, s%d" % (S_TMP, S_NF, S_LB))
        a("s_mul_i32 s%d, s%d, %d" % (S_TMP, S_TMP, 32 * RS))
        a("s_add_u32 s%d, s%d, s%d" % (S_TMP, S_TMP, S_GOFF))
        labd = a.newlabel("ldd")
        for rg in range(1 if np_static else 4):
            if rg:
                if rg != 3:
                    a("s_cmp_eq_u32 s%d, %d" % (S_NP, 3 * rg))
                    a("s_cbranch_scc1 %s" % labd)
                a("s_add_u32 s%d, s%d, %d" % (S_TMP, S_TMP, 8 * RS))
            for lc in range(3):
                a("s_add_u32 m0, s%d, %d" % (S_LDST, rg * 1024 + lc * 4096 - lc * 128))
                a(nop)
                a("buffer_load_dwordx4 v%d, %s, s%d offen offset:%d %s lds" % (
                    V_DO if rg & 1 else V_DE, sr(SRD_KV, 4), S_TMP, lc * 128, kvf))
                if first and rg == 0 and lc == 0:
                    lab = a.newlabel("fv")
                    a("s_cmp_lg_u32 s%d, 0" % S_ISK)
                    a("s_cbranch_scc1 %s" % lab)
                    a("s_waitcnt vmcnt(0)")
                    a.label(lab)
        a.label(labd)
        if first:
            lab = a.newlabel("fk")
            a("s_cmp_eq_u32 s%d, 0" % S_ISK)
            a("s_cbranch_scc1 %s" % lab)
            a("s_waitcnt vmcnt(2)")
            a.label(lab)
        a("s_add_u32 s%d, s%d, 1" % (S_LN, S_LN))
        a("s_add_u32 s%d, s%d, 1" % (S_LB, S_LB))
        a("s_cmp_ge_u32 s%d, s%d" % (S_LB, S_NF))
        a("s_cselect_b32 s%d, 0, s%d" % (S_LB, S_LB))
        a("s_add_u32 s%d, s%d, s%d" % (S_LDST, S_LDST, S_STEP))
        a("s_sub_u32 s%d, s%d, %d" % (S_TMP2, S_LDST, RING))
        a("s_cmp_ge_u32 s%d, %d" % (S_LDST, RING))
        a("s_cselect_b32 s%d, s%d, s%d" % (S_LDST, S_TMP2, S_LDST))

    def load_upto(limit_sgpr, np_static, win=0):
        top, done = a.newlabel("lu"), a.newlabel("lud")
        a("s_min_u32 s%d, s%d, s%d" % (limit_sgpr, limit_sgpr, S_NKB))
        a("s_cmp_ge_u32 s%d, s%d" % (S_LN, limit_sgpr))
        a("s_cbranch_scc1 %s" % done)
        a.label(top)
        load_body(np_static, win)
        a("s_cmp_lt_u32 s%d, s%d" % (S_LN, limit_sgpr))
        a("s_cbranch_scc1 %s" % top)
        a.label(done)

    def pre_loads(np_static):
        labs = [a.newlabel("pl") for _ in range(4)]
        done = a.newlabel("pld")
        for wc in range(1, 4):
            a("s_cmp_eq_u32 s%d, %d" % (S_WIN, wc))
            a("s_cbranch_scc1 %s" % labs[wc])
        if np_static is None:
            load_body(None, 0, True)
        load_upto(S_NPRE, np_static)
        a("s_branch %s" % done)
        for wc in range(1, 4):
            a.label(labs[wc])
            load_upto(S_NPRE, np_static, WINS[wc])
            if wc < 3:
                a("s_branch %s" % done)
        a.label(done)

    def wait_cascade(np_static):
        done = a.newlabel("wc")
        a("s_min_u32 s%d, s%d, s%d" % (S_REM, S_NEED, S_LN))
        a("s_sub_u32 s%d, s%d, s%d" % (S_REM, S_LN, S_REM))
        if np_static is None:
            a("s_mul_i32 s%d, s%d, s%d" % (S_REM, S_REM, S_NP))
            vals = sorted(set([3 * r for r in range(6)] + [6 * r for r in range(6)]), reverse=True)
            cmpv = vals
        else:
            vals = [np_static * r for r in range(5, -1, -1)]
            cmpv = list(range(5, -1, -1))
        for v, c in zip(vals[:-1], cmpv[:-1]):
            a("s_waitcnt vmcnt(%d)" % v)
            a("s_cmp_ge_u32 s%d, %d" % (S_REM, c))
            a("s_cbranch_scc1 %s" % done)
        a("s_waitcnt vmcnt(0)")
        a.label(done)

    a("s_bitcmp1_b32 s%d, 1" % S_FL)
    a("s_cbranch_scc1 L_compute")

    a("s_cmp_eq_u32 s%d, 0" % S_NP)
    a("s_cbranch_scc1 L_idle")
    pre_loads(None)
    wait_cascade(None)
    a("s_barrier")
    stamp(4)
    a("s_mov_b32 s%d, s%d" % (S_TMP3, S_DEPTH))
    a("s_mov_b32 s%d, 0" % S_J)
    if stamps:
        a("v_mov_b32 v90, 0")
    a.label("L_ld_loop")
    a("s_add_u32 s%d, s%d, %d" % (S_LIM, S_LN, RAMP))
    a("s_min_u32 s%d, s%d, s%d" % (S_LIM, S_LIM, S_TMP3))
    load_upto(S_LIM, None)
    a("s_add_u32 s%d, s%d, 1" % (S_NEED, S_NEED))
    wait_cascade(None)
    if stamps:
        a("s_memtime s[88:89]")
        a("s_waitcnt lgkmcnt(0)")
        a("s_add_u32 m0, s%d, 32" % S_J)
        a("s_nop 0")
        a("v_writelane_b32 v90, s88, m0")
    a("s_barrier")
    if stamps:
        a("s_memtime s[88:89]")
        a("s_waitcnt lgkmcnt(0)")
        a("s_mov_b32 m0, s%d" % S_J)
        a("s_nop 0")
        a("v_writelane_b32 v90, s88, m0")
    a("s_add_u32 s%d, s%d, 1" % (S_TMP3, S_TMP3))
    a("s_add_u32 s%d, s%d, 1" % (S_J, S_J))
    a("s_cmp_lt_u32 s%d, s%d" % (S_J, S_NKB))
    a("s_cbranch_scc1 L_ld_loop")
    stamp(5)
    stamp(6)
    stamp_flush(True)
    a("s_endpgm")
    a.label("L_idle")
    a("s_add_u32 s%d, s%d, 1" % (S_J, S_NKB))
    a.label("L_idle_loop")
    a("s_barrier")
    a("s_sub_u32 s%d, s%d, 1" % (S_J, S_J))
    a("s_cmp_lg_u32 s%d, 0" % S_J)
    a("s_cbranch_scc1 L_idle_loop")
    a.label("L_end")
    a("s_endpgm")

    a.label("L_compute")
    lab_nl = a.newlabel("nl")
    a("s_cmp_eq_u32 s%d, 0" % S_NP)
    a("s_cbranch_scc1 %s" % lab_nl)
    pre_loads(3)
    a.label(lab_nl)
    r, h, f, h4 = V_T[0], V_T[1], V_T[2], V_T[7]
    a("v_and_b32 v%d, 31, v%d" % (r, V_LANE))
    a("v_lshrrev_b32 v%d, 5, v%d" % (h, V_LANE))
    a("v_lshlrev_b32 v%d, 2, v%d" % (h4, h))
    a("v_bfe_u32 v%d, v%d, 1, 3" % (f, r))
    a("v_xor_b32 v%d, v%d, v%d" % (f, f, h))
    a("v_lshlrev_b32 v%d, 4, v%d" % (f, f))
    a("v_lshl_add_u32 v%d, v%d, 7, v%d" % (V_KA0, r, f))
    rr, c, dh, b = V_T[3], V_T[4], V_T[5], V_T[6]
    a("v_bfe_u32 v%d, v%d, 2, 2" % (rr, V_LANE))
    a("v_and_b32 v%d, 3, v%d" % (c, V_LANE))
    a("v_bfe_u32 v%d, v%d, 4, 1" % (dh, V_LANE))
    a("v_bfe_u32 v%d, v%d, 3, 1" % (b, V_LANE))
    a("v_add_u32 v%d, v%d, v%d" % (rr, rr, h4))
    a("v_lshlrev_b32 v%d, 7, v%d" % (V_VA0, rr))
    a("v_lshl_add_u32 v%d, v%d, 6, v%d" % (V_VA0, b, V_VA0))
    a("v_lshl_add_u32 v%d, v%d, 5, v%d" % (V_VA0, dh, V_VA0))
    a("v_lshl_add_u32 v%d, v%d, 3, v%d" % (V_VA0, c, V_VA0))
    for i in range(48):
        a("v_pk_mov_b32 %s, 0, 0" % vr(V_O + 2 * i, 2)) if False else None
    for i in range(96):
        a("v_mov_b32 v%d, 0" % (V_O + i))
    a("v_mov_b32 v%d, 0" % V_L)
    a("v_add_u32 v%d, s%d, v%d" % (V_KB[0], S_QLDS, V_KA0))
    for j in range(1, 4):
        a("v_xor_b32 v%d, %d, v%d" % (V_KB[j], 32 * j, V_KB[0]))
    wait_cascade(3)
    for ks in range(12):
        a("ds_read_b128 %s, v%d offset:%d" % (vr(V_Q + 4 * ks, 4), V_KB[ks & 3], (ks >> 2) * 4096))
    a("v_add_u32 v%d, s%d, v%d" % (V_KB[0], S_K0, V_KA0))
    for j in range(1, 4):
        a("v_xor_b32 v%d, %d, v%d" % (V_KB[j], 32 * j, V_KB[0]))
    a("s_waitcnt lgkmcnt(0)")
    a("s_barrier")
    stamp(4)
    for ks in range(12):
        a("ds_read_b128 %s, v%d offset:%d" % (vr(POOL + 4 * ks, 4), V_KB[ks & 3], (ks >> 2) * 4096))
    a("s_mov_b32 s%d, 0" % S_J)
    for ks in range(12):
        a("s_waitcnt lgkmcnt(%d)" % (11 - ks))
        a("v_mfma_f32_32x32x16_bf16 %s, %s, %s, %s" % (
            vr(V_S[0], 16), vr(POOL + 4 * ks, 4), vr(V_Q + 4 * ks, 4), "0" if ks == 0 else vr(V_S[0], 16)))

    def block_max(S, mx, t2):
        a("v_max3_f32 v%d, v%d, v%d, v%d" % (mx, S, S + 1, S + 2))
        for i in range(3, 15, 2):
            a("v_max3_f32 v%d, v%d, v%d, v%d" % (mx, mx, S + i, S + i + 1))
        a("v_max_f32 v%d, v%d, v%d" % (mx, mx, S + 15))
        a("v_mov_b32 v%d, v%d" % (t2, mx))
        a("s_nop 1")
        a("v_permlane32_swap_b32 v%d, v%d" % (t2, mx))
        a("s_nop 1")
        a("v_max_f32 v%d, v%d, v%d" % (mx, mx, t2))

    stubs = []

    def sm_seq(par):
        S = V_S[par]
        tm = V_T
        out = []

        def fma(k):
            return ("v_fma_f32 v%d, v%d, s%d, v%d" % (tm[k % 8], S + k, S_C, V_NMC), 1, k // 8, 0)

        def ex(k):
            return ("v_exp_f32 v%d, v%d" % (tm[k % 8], tm[k % 8]), 2, k // 8, 0)

        def cvt(p):
            return ("v_cvt_pk_bf16_f32 v%d, v%d, v%d" % (V_P + p, tm[(2 * p) % 8], tm[(2 * p + 1) % 8]), 1, p // 4,
                    17 if p < 4 else 23)

        def add(k):
            if k == 1:
                return ("v_add_f32 v%d, v%d, v%d" % (V_BS, tm[0], tm[1]), 1, 0, 0)
            return ("ADD %d" % k, 1, k // 8, 0)
        for hf in range(2):
            o = 8 * hf
            p = 4 * hf
            out += [fma(o), fma(o + 1), ex(o), fma(o + 2), ex(o + 1), fma(o + 3), ex(o + 2), fma(o + 4), ex(o + 3)]
            if hf:
                out += [add(o)]
            out += [add(o + 1), fma(o + 5), ex(o + 4), cvt(p), add(o + 2), fma(o + 6), ex(o + 5), cvt(p + 1), add(o + 3),
                    fma(o + 7), ex(o + 6), add(o + 4), ex(o + 7), cvt(p + 2), add(o + 5), add(o + 6), cvt(p + 3),
                    add(o + 7)]
        return out

    def schedule(par, duty):
        gaps = {g: [] for g in range(BG, BG + 26)}
        load = {g: 0.0 for g in range(24)}
        load[BG % 24] += 2
        load[(BG - 2) % 24] += 4
        load[(BG - 1) % 24] += 6
        load[23] += 2

        def put(it, g):
            it.gap = g
            gaps[g].append(it)
            load[g % 24] += it.cost
        put(Item(["MASK %d" % par], 2, 0, 0, "mask"), max(SM0, BG))
        if duty:
            put(Item(["DUTYLD"], 2, 0, 0, "duty"), BG + 2)
            put(Item(["DUTYWAIT"], 6, 0, 0, "duty"), BG + 24 - 4)
        kg = []
        g = BG
        for i in range(12):
            g = max(g, 12 + i)
            while kg.count(g) >= (2 if g < BG + 2 else 1):
                g += 1
            kg.append(g)
            put(Item("ds_read_b128 %s, v%d offset:%d" % (vr(POOL + 4 * i, 4), V_KB[i & 3], (i >> 2) * 4096),
                     1, 0, 0, "K", ("F", i)), g)
            assert g <= 24 + i - 4
        for idx in range(12):
            s, t = divmod(idx, 6)
            for u in range(2):
                put(Item("ds_read_b64_tr_b16 %s, v%d offset:%d" % (
                    vr(POOL + 4 * idx + 2 * u, 2), V_VB[t & 1], HB + (16 * s + 8 * u) * 128 + (t >> 1) * 4096),
                    1, 0, 0, "V%d" % s, ("F", idx)), 24 + idx)
        e, l = max(SM0, BG), SM1
        its = [Item(txt, cost, max(mg, 24 if hf else 0), l, "sm", half=hf) for txt, cost, hf, mg in sm_seq(par)]
        its.append(Item(["CHECK %d 2" % par], 3, 0, l, "chk"))
        tot = sum(v.cost for v in its) + sum(load[g % 24] for g in range(e, l + 1))
        target = tot / (l - e + 1)
        g = e
        exc = 0.0
        for it in its:
            while g < l and (load[g % 24] + it.cost / 2.0 > target + exc or g < it.early):
                exc += target - load[g % 24]
                g += 1
            put(it, g)
        return gaps, load

    def mfma_for(slot, par):
        if slot < 12:
            Sn = V_S[par ^ 1]
            txt = "v_mfma_f32_32x32x16_bf16 %s, %s, %s, %s" % (
                vr(Sn, 16), vr(POOL + 4 * slot, 4), vr(V_Q + 4 * slot, 4), "0" if slot == 0 else vr(Sn, 16))
            return txt, ("F", slot), "qk"
        idx = slot - 12
        s, t = divmod(idx, 6)
        txt = "v_mfma_f32_32x32x16_bf16 %s, %s, %s, %s" % (
            vr(V_O + 16 * t, 16), vr(POOL + 4 * idx, 4), vr(V_P + 4 * s, 4), vr(V_O + 16 * t, 16))
        return txt, ("F", idx), "pv%d" % s

    def emit_lines(lines, tailmode=False):
        for ln in lines:
            if ln.startswith("CHECK"):
                _, par, mode = ln.split()
                stub, back = a.newlabel("slow"), a.newlabel("back")
                a("v_cmp_lt_f32 vcc, s%d, v%d" % (S_THR, V_BS))
                a("s_cbranch_vccnz %s" % stub)
                a.label(back)
                a("v_add_f32 v%d, v%d, v%d" % (V_L, V_L, V_BS))
                stubs.append((stub, "L_slow_%s_%s" % (par, mode), back))
            elif ln.startswith("MASK"):
                _, par = ln.split()
                stub, back = a.newlabel("mstub"), a.newlabel("mback")
                a("s_cmp_eq_u32 s%d, s%d" % (S_J, S_NF))
                a("s_cbranch_scc1 %s" % stub)
                a.label(back)
                stubs.append((stub, "L_mask_%s" % par, back))
            elif ln.startswith("ADD"):
                k = int(ln.split()[1])
                if tailmode and k == 8:
                    a("v_mov_b32 v%d, v%d" % (V_BS, V_T[0]))
                else:
                    a("v_add_f32 v%d, v%d, v%d" % (V_BS, V_BS, V_T[k % 8]))
            elif ln == "DUTYLD":
                stub, back = a.newlabel("dl"), a.newlabel("dlb")
                a("s_cmp_lt_u32 s%d, s%d" % (S_LN, S_NKB))
                a("s_cbranch_scc1 %s" % stub)
                a.label(back)
                stubs.append((stub, "L_dutyld", back))
            elif ln == "DUTYWAIT":
                a("s_add_u32 s%d, s%d, 1" % (S_NEED, S_NEED))
                wait_cascade(3)
            else:
                a(ln)

    def skip_item(it):
        return ("L" in abl and it.writes is not None) or ("S" in abl and it.kind in ("sm", "chk"))

    def emit_stream(seq, outstanding, tailmode=False):
        issued = list(outstanding)
        done = 0
        for idx, e in enumerate(seq):
            if e[0] == "m":
                frag = e[2]
                need = max([k for k, fr in enumerate(issued) if fr == frag], default=-1) + 1
                if need > done:
                    tgt = need
                    cnt = 0
                    for e2 in seq[idx + 1:]:
                        if e2[0] == "m":
                            n2 = max([k for k, fr in enumerate(issued) if fr == e2[2]], default=-1) + 1
                            if n2 > tgt and n2 <= len(issued) - 6 and cnt < 5:
                                tgt = n2
                                cnt += 1
                            else:
                                break
                    n = len(issued) - tgt
                    a("s_waitcnt lgkmcnt(%d)" % min(15, n))
                    done = len(issued) - min(15, n)
                a(e[1])
            elif e[0] == "i":
                it = e[1]
                if skip_item(it):
                    continue
                emit_lines(it.lines, tailmode)
                if it.writes is not None:
                    issued.append(it.writes)
            elif e[0] == "bar":
                a("s_waitcnt lgkmcnt(0)")
                a("s_barrier")
                issued, done = [], 0
            elif e[0] == "raw":
                emit_lines([e[1]], tailmode)
            elif e[0] == "label":
                a.label(e[1])

    def addr_lines():
        return (["v_add_u32 v%d, s%d, v%d" % (V_KB[0], S_SLOT, V_KA0), "v_add_u32 v%d, s%d, v%d" % (V_VB[0], S_SLOT, V_VA0)] +
                ["v_xor_b32 v%d, %d, v%d" % (V_KB[j], 32 * j, V_KB[0]) for j in range(1, 4)] +
                ["v_xor_b32 v%d, 64, v%d" % (V_VB[1], V_VB[0])])

    def compute_path(duty):
        sfx = "d" if duty else "n"
        scheds = [schedule(0, duty), schedule(1, duty)]
        sys.stderr.write("gap loads (%s): %s\n" % (sfx, " ".join("%.0f" % scheds[0][1][g] for g in range(24))))

        def next_items(par):
            return [it for g in range(BG, 24) for it in scheds[par][0][g]]

        def nfr(par):
            return [it.writes for it in next_items(par) if it.writes is not None and not skip_item(it)]

        def body(par):
            cur, nxt = scheds[par][0], scheds[par ^ 1][0]
            seq = []
            for slot in range(24):
                txt, frag, kind = mfma_for(slot, par)
                seq.append(("m", txt, frag))
                for it in cur.get(slot + 24, []):
                    seq.append(("i", it))
                if slot == BG - 2:
                    seq += [("raw", "s_add_u32 s%d, s%d, s%d" % (S_SLOT, S_SLOT, S_STEP)),
                            ("raw", "s_sub_u32 s%d, s%d, %d" % (S_TMP3, S_SLOT, RING)),
                            ("raw", "s_cselect_b32 s%d, s%d, s%d" % (S_SLOT, S_SLOT, S_TMP3)),
                            ("raw", "s_add_u32 s%d, s%d, 1" % (S_J, S_J))]
                if slot == BG - 1:
                    seq += [("raw", x) for x in addr_lines()]
                if slot == BG:
                    seq.append(("bar",))
                if slot >= BG:
                    for it in nxt.get(slot, []):
                        seq.append(("i", it))
            return seq

        def tail(par):
            cur = scheds[par][0]
            rest = [it for g in range(24, BG + 26) for it in cur[g]]
            assert all(it.half != 1 for it in next_items(par)), "second half started too early"
            vreads = [it for it in rest if it.kind in ("V0", "V1")]
            h0 = [it for it in rest if it.kind == "sm" and it.half == 0]
            h1 = [it for it in rest if it.kind == "sm" and it.half == 1]
            seq = []
            v0 = [it for it in vreads if it.kind == "V0"]
            v1 = [it for it in vreads if it.kind == "V1"]
            k = 0
            for it in v0:
                seq.append(("i", it))
                if k < len(h0):
                    seq.append(("i", h0[k]))
                    k += 1
            for it in h0[k:]:
                seq.append(("i", it))
            seq.append(("raw", "CHECK %d 0" % par))
            seq.append(("raw", "s_cmp_le_u32 s%d, 16" % S_NVAL))
            seq.append(("raw", "s_cbranch_scc1 L_short_%s%d" % (sfx, par)))
            k = 0
            kv = 0
            per = (len(h1) + 5) // 6
            for t in range(6):
                txt, frag, kind = mfma_for(12 + t, par)
                seq.append(("m", txt, frag))
                for it in v1[2 * t:2 * t + 2]:
                    seq.append(("i", it))
                for it in h1[k:k + per]:
                    seq.append(("i", it))
                k += per
            seq.append(("raw", "CHECK %d 1" % par))
            for t in range(6):
                txt, frag, kind = mfma_for(18 + t, par)
                seq.append(("m", txt, frag))
            seq.append(("raw", "s_branch L_epi"))
            short = [("label", "L_short_%s%d" % (sfx, par)), ("raw", "s_waitcnt lgkmcnt(0)")]
            for t in range(6):
                txt, frag, kind = mfma_for(12 + t, par)
                short.append(("raw", txt))
            short.append(("raw", "s_branch L_epi"))
            return seq, short

        if duty:
            a("s_add_u32 s%d, s%d, %d" % (S_LIM, S_LN, RAMPD))
            a("s_min_u32 s%d, s%d, s%d" % (S_LIM, S_LIM, S_DEPTH))
            load_upto(S_LIM, 3)
            a("s_add_u32 s%d, s%d, 1" % (S_NEED, S_NEED))
            wait_cascade(3)
        for x in addr_lines():
            a(x)
        a("s_nop 6")
        block_max(V_S[0], V_M, V_T[1])
        a("v_mul_f32 v%d, s%d, v%d" % (V_NMC, S_C, V_M))
        a("v_sub_f32 v%d, 0, v%d" % (V_NMC, V_NMC))
        emit_stream([("bar",)] + [("i", it) for it in next_items(0)], [])
        a.label("L_loop_" + sfx)
        emit_stream(body(0), nfr(0))
        a("s_cmp_eq_u32 s%d, s%d" % (S_J, S_NF))
        a("s_cbranch_scc1 L_tail1_" + sfx)
        emit_stream(body(1), nfr(1))
        a("s_cmp_lg_u32 s%d, s%d" % (S_J, S_NF))
        a("s_cbranch_scc1 L_loop_" + sfx)
        t0, s0 = tail(0)
        t1, s1 = tail(1)
        emit_stream(t0, nfr(0), True)
        a.label("L_tail1_" + sfx)
        emit_stream(t1, nfr(1), True)
        emit_stream(s0, [], True)
        emit_stream(s1, [], True)

    a("s_cmp_lg_u32 s%d, 0" % S_NP)
    a("s_cbranch_scc1 L_duty_path")
    compute_path(False)
    a.label("L_duty_path")
    compute_path(True)

    a.label("L_epi")
    stamp(5)
    a("s_add_u32 s%d, s%d, s%d" % (S_TMP, S_SLOT, S_SCR))
    a("s_sub_u32 s%d, s%d, %d" % (S_TMP2, S_TMP, RING))
    a("s_cselect_b32 s%d, s%d, s%d" % (S_TMP, S_TMP, S_TMP2))
    a("v_mov_b32 v%d, v%d" % (V_T[0], V_L))
    q, hh = V_T[1], V_T[2]
    a("v_and_b32 v%d, 31, v%d" % (q, V_LANE))
    a("v_lshrrev_b32 v%d, 5, v%d" % (hh, V_LANE))
    a("v_permlane32_swap_b32 v%d, v%d" % (V_T[0], V_L))
    a("v_lshlrev_b32 v%d, 7, v%d" % (V_T[3], q))
    a("v_add_f32 v%d, v%d, v%d" % (V_L, V_L, V_T[0]))
    a("v_and_b32 v%d, 7, v%d" % (q, q))
    a("v_rcp_f32 v%d, v%d" % (V_L, V_L))
    a("v_lshl_add_u32 v%d, v%d, 4, v%d" % (V_T[3], q, V_T[3]))
    a("v_lshl_add_u32 v%d, v%d, 3, v%d" % (V_T[3], hh, V_T[3]))
    a("v_mov_b32 v%d, v%d" % (V_M, V_L))
    a("v_add_u32 v%d, s%d, v%d" % (POOL, S_TMP, V_T[3]))
    for c in range(1, 8):
        a("v_xor_b32 v%d, %d, v%d" % (POOL + c, 16 * c, POOL))
    for t in range(6):
        for g in range(4):
            o = V_O + 16 * t + 4 * g
            d = V_P + 2 * ((4 * t + g) % 4)
            a("v_pk_mul_f32 %s, %s, %s" % (vr(o, 2), vr(o, 2), vr(V_L, 2)))
            a("v_pk_mul_f32 %s, %s, %s" % (vr(o + 2, 2), vr(o + 2, 2), vr(V_L, 2)))
            a("v_cvt_pk_bf16_f32 v%d, v%d, v%d" % (d, o, o + 1))
            a("v_cvt_pk_bf16_f32 v%d, v%d, v%d" % (d + 1, o + 2, o + 3))
            c = 4 * t + g
            a("ds_write_b64 v%d, %s offset:%d" % (POOL + (c & 7), vr(d, 2), (c >> 3) * 4096))
    a("v_lshlrev_b32 v%d, 4, v%d" % (V_T[4], V_LANE))
    a("v_add_u32 v%d, s%d, v%d" % (POOL + 8, S_TMP, V_T[4]))
    a("v_lshrrev_b32 v%d, 3, v%d" % (V_T[0], V_LANE))
    a("v_and_b32 v%d, 7, v%d" % (V_T[1], V_LANE))
    a("v_xor_b32 v%d, v%d, v%d" % (V_T[1], V_T[1], V_T[0]))
    a("v_mul_u32_u24 v%d, %d, v%d" % (V_T[0], RS, V_T[0]))
    a("v_lshl_add_u32 v%d, v%d, 4, v%d" % (V_T[0], V_T[1], V_T[0]))
    a("v_add_u32 v%d, s%d, v%d" % (POOL + 9, S_QOFF, V_T[0]))
    for rg in range(1, 4):
        a("v_add_u32 v%d, %d, v%d" % (POOL + 9 + rg, rg * 8 * RS, POOL + 9))
    stamp(6)
    a("s_waitcnt lgkmcnt(0)")
    order = [(rg, lc) for rg in range(4) for lc in range(3)]
    for j, (rg, lc) in enumerate(order):
        a("ds_read_b128 %s, v%d offset:%d" % (vr(V_O + 4 * j, 4), POOL + 8, lc * 4096 + rg * 1024))
    for j, (rg, lc) in enumerate(order):
        a("s_waitcnt lgkmcnt(%d)" % (11 - j))
        a("buffer_store_dwordx4 %s, v%d, %s, 0 offen offset:%d %s" % (
            vr(V_O + 4 * j, 4), POOL + 9 + rg, sr(SRD_O, 4), lc * 128, stf))
    stamp_flush()
    a("s_endpgm")

    for stub, target, back in stubs:
        a.label(stub)
        a("s_call_b64 %s, %s" % (sr(S_RET, 2), target))
        a("s_branch %s" % back)
    a.label("L_dutyld")
    load_body(3)
    a("s_setpc_b64 %s" % sr(S_RET, 2))
    for par in range(2):
        S = V_S[par]
        a.label("L_mask_%d" % par)
        a("s_nop 7")
        a("v_lshrrev_b32 v%d, 5, v%d" % (V_T[1], V_LANE))
        a("v_lshlrev_b32 v%d, 2, v%d" % (V_T[1], V_T[1]))
        a("v_mov_b32 v%d, 0xff800000" % V_T[0])
        for g in range(4):
            for i in range(4):
                a("s_sub_u32 s%d, s%d, %d" % (S_TMP2, S_NVAL, 8 * g + i))
                a("v_cmp_gt_i32 vcc, s%d, v%d" % (S_TMP2, V_T[1]))
                a("s_nop 1")
                a("v_cndmask_b32 v%d, v%d, v%d, vcc" % (S + 4 * g + i, V_T[0], S + 4 * g + i))
        a("s_setpc_b64 %s" % sr(S_RET, 2))
    a.label("L_rescale")
    mx, t2 = V_T[0], V_T[1]
    a("v_max_f32 v%d, v%d, v%d" % (mx, mx, V_M))
    a("v_sub_f32 v%d, v%d, v%d" % (t2, V_M, mx))
    a("v_mul_f32 v%d, s%d, v%d" % (t2, S_C, t2))
    a("v_exp_f32 v%d, v%d" % (t2, t2))
    a("v_mov_b32 v%d, v%d" % (V_M, mx))
    a("v_mul_f32 v%d, s%d, v%d" % (V_NMC, S_C, mx))
    a("v_sub_f32 v%d, 0, v%d" % (V_NMC, V_NMC))
    a("v_mul_f32 v%d, v%d, v%d" % (V_L, V_L, t2))
    for i in range(96):
        a("v_mul_f32 v%d, v%d, v%d" % (V_O + i, V_O + i, t2))
    a("s_setpc_b64 %s" % sr(S_RET2, 2))
    for par in range(2):
        for mode in range(3):
            S = V_S[par]
            a.label("L_slow_%d_%d" % (par, mode))
            a("s_nop 15")
            block_max(S, mx, t2)
            a("s_call_b64 %s, L_rescale" % sr(S_RET2, 2))
            first = True
            for hf in ([0, 1] if mode == 2 else [mode]):
                for k in range(8):
                    a("v_fma_f32 v%d, v%d, s%d, v%d" % (V_T[k], S + 8 * hf + k, S_C, V_NMC))
                for k in range(8):
                    a("v_exp_f32 v%d, v%d" % (V_T[k], V_T[k]))
                a("s_nop 0")
                for p in range(4):
                    a("v_cvt_pk_bf16_f32 v%d, v%d, v%d" % (V_P + 4 * hf + p, V_T[2 * p], V_T[2 * p + 1]))
                for k in range(8):
                    if first:
                        a("v_mov_b32 v%d, v%d" % (V_BS, V_T[k]))
                        first = False
                    else:
                        a("v_add_f32 v%d, v%d, v%d" % (V_BS, V_BS, V_T[k]))
            a("s_setpc_b64 %s" % sr(S_RET, 2))
    a.lines.append(".p2align 6")
    a.lines.append(".type L_table,@object")
    a.label("L_table")
    for d in TABLE:
        a(".long " + ", ".join("0x%x" % x for x in d))
    a.lines.append(".size L_table, %d" % (64 * len(TABLE)))

    hdr = open("cdna_kernels/%s.s.ref" % NAME).read().split("\n")
    out = []
    for ln in hdr:
        if ln.startswith("; @launch"):
            out.append("; @launch grid=(256,1,1) block=(512,1,1) lds=%d" % LDS_TOTAL)
        elif ln.startswith(";"):
            out.append(ln)
        else:
            break
    out += [
        '.amdgcn_target "amdgcn-amd-amdhsa--gfx950"',
        ".text",
        ".globl %s_kernel" % NAME,
        ".p2align 8",
        ".type %s_kernel,@function" % NAME,
    ]
    out += a.lines
    out += [
        '.section .rodata,"a"',
        ".p2align 6",
        ".amdhsa_kernel %s_kernel" % NAME,
        "  .amdhsa_next_free_vgpr 256",
        "  .amdhsa_next_free_sgpr 96",
        "  .amdhsa_accum_offset 256",
        "  .amdhsa_group_segment_fixed_size 0",
        "  .amdhsa_kernarg_size 56",
        "  .amdhsa_user_sgpr_count 2",
        "  .amdhsa_user_sgpr_kernarg_segment_ptr 1",
        "  .amdhsa_system_sgpr_workgroup_id_x 1",
        ".end_amdhsa_kernel",
        "",
    ]
    return "\n".join(out)


def parse_plan(s):
    out = []
    for (seq, parts, _, _, _), x in zip(DEFAULT_PLAN, s.split(",")):
        qg, npre, thr = x.split(".")
        out.append((seq, parts, int(qg), int(npre), int(thr)))
    return out


if __name__ == "__main__":
    dst = sys.argv[1] if len(sys.argv) > 1 and not sys.argv[1].startswith("--") else "cdna_kernels/%s.s" % NAME

    def opt(n, d):
        for x in sys.argv:
            if x.startswith("--" + n + "="):
                return x.split("=", 1)[1].replace("+", " ")
        return d
    plan = parse_plan(opt("plan", "")) if opt("plan", "") else None
    open(dst, "w").write(gen(stamps=(2 if "--dbg" in sys.argv else 1 if "--stamps" in sys.argv else 0), qf=opt("qf", "nt"), kvf=opt("kvf", "nt"),
                             stf=opt("stf", ""), BG=int(opt("bg", "14")), rot="--rot" in sys.argv, abl=opt("abl", ""),
                             plan=plan, SM0=int(opt("sm0", "14")), SM1=int(opt("sm1", "35")),
                             RAMP=int(opt("ramp", "1")), NPF=int(opt("npf", "2")),
                             PFWAIT=int(opt("pfwait", "1")), RAMPD=int(opt("rampd", "2")),
                             pfspec=([] if "--nopf" in sys.argv else None),
                             XC=int(opt("xc", "0")), XM=int(opt("xm", "0")), XMS=int(opt("xms", "2097152")), XMP=int(opt("xmp", "48"))))
    print("wrote", dst)
```

```python
import math
import struct
import sys

NAME = "standalone__varlen_attn_packed__ragged"
CU = [0, 238, 376, 669, 835, 1320, 1545, 1865, 2058]
T, H, D = 2058, 16, 192
RS = H * D * 2
HB = 12288
BLK = 2 * HB
NSLOT = 6
RING = NSLOT * BLK
LDS_TOTAL = 163840
CSCALE = (D ** -0.5) * math.log2(math.e)
LMAX = 2.0 ** 40
NKB = [(CU[i + 1] - CU[i] + 31) // 32 for i in range(8)]


def f32(x):
    return struct.unpack("<I", struct.pack("<f", x))[0]


DEFAULT_PLAN = [(4, [4, 4, 4, 4], 0, 3, 0), (7, [7], 0, 2, 0), (3, [6], 3, 1, 0),
                (6, [4, 4, 2], 5, 1, 0), (2, [4, 4, 2], 5, 1, 0), (1, [5], 8, 1, 0), (0, [4, 4], 8, 1, 0),
                (5, [4, 4], 8, 1, 0)]


def make_wgs(plan):
    wgs = []
    for seq, parts, win, npre, rot in plan:
        nf = NKB[seq] - 1
        t0 = 0
        assert sum(parts) == NKB[seq]
        for r, nt in enumerate(parts):
            rr = ((r * nf) // len(parts)) if rot else 0
            if nt == 2:
                wgs.append(dict(seq=seq, t0=t0, nt=4, dual=True, hb=0, rot=rr, win=max(0, win - 2), npre=1))
            else:
                for hb in range(2):
                    wgs.append(dict(seq=seq, t0=t0, nt=nt, dual=False, hb=hb, rot=rr, win=win,
                                    npre=max(1, min(npre, 5 - (nt - 1) // 2))))
            t0 += nt
    assert len(wgs) == 32, len(wgs)
    return wgs


def wave_desc(wg, w):
    seq, nt, dual = wg["seq"], wg["nt"], wg["dual"]
    s0, s1 = CU[seq], CU[seq + 1]
    nkb = NKB[seq]
    nval = (s1 - s0) - 32 * (nkb - 1)
    step = 2 * BLK if dual else BLK
    ns = RING // step
    compute = w < nt
    if dual:
        hb = (w >> 1) & 1
        tile = wg["t0"] + (w & 1)
        so = hb * BLK
        qlds = [12 * HB, 9 * HB, 11 * HB, 7 * HB][w & 3]
        isk, nrg, rg0 = (1 - (w & 1), 4, 0) if w >= 4 else (0, 0, 0)
    else:
        hb = wg["hb"]
        tile = wg["t0"] + w
        so = 0
        qlds = (12 - w - (1 if w >= 2 else 0)) * HB
        if nt > 4:
            isk, nrg, rg0 = (1 if w < 4 else 0), 1, w & 3
        elif w >= 4:
            isk, nrg, rg0 = (1 if w < 6 else 0), 2, 2 * (w & 1)
        else:
            isk, nrg, rg0 = 0, 0, 0
    role = (3 if nrg else 2) if compute else (1 if nrg else 0)
    d0 = role | (isk << 2) | ((rg0 & 1) << 3) | (((nkb - 1) & 1) << 4) | (wg["win"] << 28)
    k0 = RING - step + so
    ldst0 = (k0 if isk else so + HB) + rg0 * 1024
    corr = f32(float(nval - 16)) if nval <= 16 else 0
    d = [d0, s1 * RS, (s0 + 32 * tile) * RS + hb * 384, qlds, (s0 + 8 * rg0) * RS + hb * 384, ldst0, step,
         wg["npre"] + isk, ns - 1 + isk, so, k0, step - so + w * HB,
         nkb | (nval << 8) | (wg["rot"] << 16) | ((3 * nrg) << 24), s0 * RS + hb * 384, corr, 0]
    return d


class Asm:
    def __init__(self):
        self.lines = []
        self.nlabel = 0

    def __call__(self, s):
        self.lines.append("    " + s)

    def label(self, name):
        self.lines.append(name + ":")

    def newlabel(self, base):
        self.nlabel += 1
        return "L_%s_%d" % (base, self.nlabel)


def vr(lo, n):
    return "v[%d:%d]" % (lo, lo + n - 1)


def sr(lo, n):
    return "s[%d:%d]" % (lo, lo + n - 1)


class Item:
    def __init__(self, lines, cost, early, kind, writes=None, half=None):
        self.lines = lines if isinstance(lines, list) else [lines]
        self.cost, self.early, self.kind = cost, early, kind
        self.writes, self.half = writes, half


def gen(stamps=0, qf="", kvf="", stf="", plan=None, BG=13, SM0=14, SM1=35, RAMP=2, RAMPD=2, EARLY=0,
        APAD=0, APADD=0, A8=0, ORDER=0, KD=2, EXPC=2.0, LDSC=1.0, forcesolo=0, abl=""):
    a = Asm()
    WGS = make_wgs(plan or DEFAULT_PLAN)
    TABLE = [wave_desc(wg, w) for wg in WGS for w in range(8)]
    NST = 8
    S_ST = 64

    V_LANE = 0
    V_T = list(range(1, 9))
    V_KA0, V_VA0 = 9, 10
    V_KB = [11, 12, 13, 14]
    V_VB = [15, 16]
    V_DE, V_DO, V_JUNK = 17, 18, 19
    V_L, V_M, V_L2, V_NMC = 20, 21, 22, 23
    POOL = 24
    V_P = 72
    V_S = [80, 96]
    V_Q = 112
    V_O = 160
    EA = V_Q

    S_Q, S_K, S_V, S_OUT = 4, 6, 8, 12
    S_WIN, S_XB = 14, 15
    SRD_Q, SRD_KV, SRD_O = 16, 20, 24
    S_W = 28
    S_TMP, S_TMP2, S_TMP3 = 29, 30, 31
    S_CF = 32
    (S_FL, S_NREC, S_QOFF, S_QLDS, S_GOFF, S_LDST, S_STEP, S_NPRE, S_DEPTH, S_SLOT, S_K0, S_SCR,
     S_PK, S_GB, S_CORR, S_SPARE) = range(32, 48)
    S_NKB, S_NF, S_NVAL, S_J = 48, 49, 50, 51
    S_LN, S_LB, S_ISK, S_NP = 52, 53, 54, 55
    S_C, S_LMAX = 56, 57
    S_RET = 58
    S_LIM, S_SOLO, S_REM, S_NEED = 60, 61, 62, 63
    S_PC = 92
    S_SCRB = 90

    def stamp(i, real=False, early=False):
        if EARLY and i in (5, 6) and not early:
            return
        if early and not EARLY:
            return
        if stamps:
            a(("s_memrealtime %s" if real else "s_memtime %s") % sr(S_ST + 2 * i, 2))
            a("s_waitcnt lgkmcnt(0)")

    def stamp_flush(iters=False):
        if not stamps:
            return
        a("s_waitcnt vmcnt(0)")
        stamp(1, True)
        if not EARLY:
            stamp(7)
        a("s_load_dwordx2 s[80:81], s[0:1], 48")
        a("s_waitcnt lgkmcnt(0)")
        a("s_mov_b32 s84, s80")
        a("s_mov_b32 s85, s81")
        a("s_mov_b32 s86, 0x100000")
        a("s_mov_b32 s87, 0x00020000")
        a("s_lshl_b32 s82, s2, 3")
        a("s_add_u32 s82, s82, s%d" % S_W)
        a("s_mul_i32 s83, s82, %d" % (NST * 8))
        a("v_mov_b32 v1, s83")
        a("s_mov_b64 exec, 1")
        for i in range(NST):
            a("v_mov_b32 v2, s%d" % (S_ST + 2 * i))
            a("v_mov_b32 v3, s%d" % (S_ST + 2 * i + 1))
            a("buffer_store_dwordx2 v[2:3], v1, s[84:87], 0 offen offset:%d" % (8 * i))
            a("s_nop 1")
        if iters:
            a("s_mov_b64 exec, -1")
            a("s_lshl_b32 s82, s82, 8")
            a("s_add_u32 s82, s82, 0x80000")
            a("v_lshlrev_b32 v1, 2, v0")
            a("v_add_u32 v1, s82, v1")
            a("buffer_store_dword v90, v1, s[84:87], 0 offen")

    def dma_patterns():
        a("v_lshrrev_b32 v1, 3, v0")
        a("v_and_b32 v2, 7, v0")
        a("v_bfe_u32 v3, v0, 4, 2")
        a("v_bfe_u32 v4, v0, 4, 1")
        a("v_mul_u32_u24 v1, %d, v1" % RS)
        a("v_xor_b32 v3, v2, v3")
        a("v_lshlrev_b32 v4, 2, v4")
        a("v_xor_b32 v4, v2, v4")
        a("v_lshl_add_u32 v5, v3, 4, v1")
        a("v_lshl_add_u32 v7, v4, 4, v1")
        a("v_xor_b32 v6, 64, v5")

    def tile_loads(srd, s_goff, s_lds, isv, ser=False, flags=""):
        for rg in range(4):
            a("s_add_u32 s%d, s%d, %d" % (S_TMP, s_goff, rg * 8 * RS))
            for lc in range(3):
                a("s_add_u32 m0, s%d, %d" % (s_lds, lc * 4096 + rg * 1024 - lc * 128))
                k = 3 * rg + lc
                if ser and k >= 1:
                    lab = a.newlabel("qs")
                    a("s_cmp_lt_u32 s%d, %d" % (S_WIN, k))
                    a("s_cbranch_scc1 %s" % lab)
                    a("s_waitcnt vmcnt(0)")
                    a.label(lab)
                else:
                    a("s_nop 0")
                a("buffer_load_dwordx4 v%d, %s, s%d offen offset:%d %s lds" % (
                    7 if isv else 5 + (rg & 1), sr(srd, 4), S_TMP, lc * 128, flags))

    a.label(NAME + "_kernel")
    a("s_cmp_ge_u32 s2, 256")
    a("s_cbranch_scc1 L_end")
    stamp(0, True)
    stamp(2)
    a("s_load_dwordx8 s[4:11], s[0:1], 0")
    a("s_load_dwordx2 s[12:13], s[0:1], 32")
    a("s_getpc_b64 %s" % sr(S_PC, 2))
    a.label("L_pc")
    a("v_lshrrev_b32 v1, 6, v0")
    a("v_lshlrev_b32 v2, 7, v0")
    a("v_readfirstlane_b32 s%d, v1" % S_W)
    a("v_min_u32 v2, L_table-L_pc-4, v2")
    a("global_load_dword v%d, v2, %s" % (V_JUNK, sr(S_PC, 2)))
    a("s_and_b32 s%d, s2, 0xf8" % S_TMP)
    a("s_add_u32 s%d, s%d, L_table-L_pc" % (S_PC, S_PC))
    a("s_addc_u32 s%d, s%d, 0" % (S_PC + 1, S_PC + 1))
    a("s_add_u32 s%d, s%d, s%d" % (S_TMP, S_TMP, S_W))
    a("s_lshl_b32 s%d, s%d, 6" % (S_TMP, S_TMP))
    a("s_load_dwordx16 %s, %s, s%d" % (sr(S_CF, 16), sr(S_PC, 2), S_TMP))
    a("v_and_b32 v0, 63, v0")
    a("s_and_b32 s%d, s2, 7" % S_XB)
    a("s_mul_i32 s%d, s%d, 768" % (S_XB, S_XB))
    dma_patterns()
    a("s_mov_b32 s%d, 0x00020000" % (SRD_Q + 3))
    a("s_mov_b32 s%d, 0x00020000" % (SRD_KV + 3))
    a("s_mov_b32 s%d, 0x00020000" % (SRD_O + 3))
    a("s_mov_b32 s%d, 0x%x" % (S_C, f32(CSCALE)))
    a("s_mov_b32 s%d, 0x%x" % (S_LMAX, f32(LMAX)))
    a("s_mov_b32 s%d, 0" % S_LN)
    a("s_mov_b32 s%d, 0" % S_SOLO)
    a("s_waitcnt lgkmcnt(0)")
    stamp(3)
    a("s_mov_b32 s%d, s%d" % (SRD_Q, S_Q))
    a("s_mov_b32 s%d, s%d" % (SRD_Q + 1, S_Q + 1))
    a("s_mov_b32 s%d, s%d" % (SRD_Q + 2, S_NREC))
    a("s_add_u32 s%d, s%d, s%d" % (S_QOFF, S_QOFF, S_XB))
    a("s_lshr_b32 s%d, s%d, 28" % (S_WIN, S_FL))
    a("s_bitcmp1_b32 s%d, 1" % S_FL)
    a("s_cbranch_scc0 L_noq")
    a("s_cmp_lg_u32 s%d, 0" % S_WIN)
    a("s_cbranch_scc1 L_qser")
    tile_loads(SRD_Q, S_QOFF, S_QLDS, False, False, qf)
    a.label("L_noq")
    stamp(5, early=True)
    a("s_and_b32 s%d, s%d, 0xff" % (S_NKB, S_PK))
    a("s_bfe_u32 s%d, s%d, 0x80008" % (S_NVAL, S_PK))
    a("s_bfe_u32 s%d, s%d, 0x80010" % (S_LB, S_PK))
    a("s_lshr_b32 s%d, s%d, 24" % (S_NP, S_PK))
    a("s_bfe_u32 s%d, s%d, 0x10002" % (S_ISK, S_FL))
    a("s_sub_u32 s%d, s%d, 1" % (S_NF, S_NKB))
    a("s_mov_b32 s%d, s%d" % (SRD_KV + 2, S_NREC))
    a("s_add_u32 s%d, s%d, s%d" % (S_GOFF, S_GOFF, S_XB))
    a("s_bitcmp1_b32 s%d, 3" % S_FL)
    a("s_cselect_b64 vcc, -1, 0")
    a("v_cndmask_b32 v%d, v5, v6, vcc" % V_DE)
    a("v_mov_b32 v%d, v6" % V_DO)
    a("s_cmp_eq_u32 s%d, 0" % S_ISK)
    a("s_cselect_b64 vcc, -1, 0")
    a("s_cselect_b32 s%d, s%d, s%d" % (SRD_KV, S_V, S_K))
    a("s_cselect_b32 s%d, s%d, s%d" % (SRD_KV + 1, S_V + 1, S_K + 1))
    a("v_cndmask_b32 v%d, v%d, v7, vcc" % (V_DE, V_DE))
    a("v_cndmask_b32 v%d, v%d, v7, vcc" % (V_DO, V_DO))
    a("s_mov_b32 s%d, s%d" % (S_NEED, S_ISK))
    a("s_bitcmp1_b32 s%d, 1" % S_FL)
    a("s_cbranch_scc0 L_loader")

    def load_body(np_static, first=False):
        a("s_cmp_eq_u32 s%d, s%d" % (S_LN, S_NF))
        a("s_cselect_b32 s%d, s%d, s%d" % (S_TMP, S_NF, S_LB))
        a("s_mul_i32 s%d, s%d, %d" % (S_TMP, S_TMP, 32 * RS))
        a("s_add_u32 s%d, s%d, s%d" % (S_TMP, S_TMP, S_GOFF))
        labd = a.newlabel("ldd")
        for rg in range(1 if np_static else 4):
            if rg:
                if rg != 3:
                    a("s_cmp_eq_u32 s%d, %d" % (S_NP, 3 * rg))
                    a("s_cbranch_scc1 %s" % labd)
                a("s_add_u32 s%d, s%d, %d" % (S_TMP, S_TMP, 8 * RS))
            for lc in range(3):
                a("s_add_u32 m0, s%d, %d" % (S_LDST, rg * 1024 + lc * 4096 - lc * 128))
                a("s_nop 0")
                a("buffer_load_dwordx4 v%d, %s, s%d offen offset:%d %s lds" % (
                    V_DO if rg & 1 else V_DE, sr(SRD_KV, 4), S_TMP, lc * 128, kvf))
                if first and rg == 0 and lc == 0:
                    lab, top = a.newlabel("fv"), a.newlabel("fvt")
                    a("s_mov_b32 s%d, s%d" % (S_REM, S_WIN))
                    a.label(top)
                    a("s_cmp_eq_u32 s%d, 0" % S_REM)
                    a("s_cbranch_scc1 %s" % lab)
                    a("s_waitcnt vmcnt(0)")
                    a("s_mul_i32 s%d, s%d, %d" % (S_TMP2, S_REM, 16 * RS))
                    a("s_add_u32 s%d, s%d, s%d" % (S_TMP2, S_TMP2, S_TMP))
                    a("buffer_load_dword v%d, v%d, %s, s%d offen offset:128" % (V_JUNK, V_DE, sr(SRD_KV, 4), S_TMP2))
                    a("s_sub_u32 s%d, s%d, 1" % (S_REM, S_REM))
                    a("s_branch %s" % top)
                    a.label(lab)
        a.label(labd)
        a("s_add_u32 s%d, s%d, 1" % (S_LN, S_LN))
        a("s_add_u32 s%d, s%d, 1" % (S_LB, S_LB))
        a("s_cmp_ge_u32 s%d, s%d" % (S_LB, S_NF))
        a("s_cselect_b32 s%d, 0, s%d" % (S_LB, S_LB))
        a("s_add_u32 s%d, s%d, s%d" % (S_LDST, S_LDST, S_STEP))
        a("s_sub_u32 s%d, s%d, %d" % (S_TMP2, S_LDST, RING))
        a("s_cselect_b32 s%d, s%d, s%d" % (S_LDST, S_LDST, S_TMP2))

    def load_upto(limit_sgpr, np_static):
        top, done = a.newlabel("lu"), a.newlabel("lud")
        a("s_min_u32 s%d, s%d, s%d" % (limit_sgpr, limit_sgpr, S_NKB))
        a("s_cmp_ge_u32 s%d, s%d" % (S_LN, limit_sgpr))
        a("s_cbranch_scc1 %s" % done)
        a.label(top)
        load_body(np_static)
        a("s_cmp_lt_u32 s%d, s%d" % (S_LN, limit_sgpr))
        a("s_cbranch_scc1 %s" % top)
        a.label(done)

    def wait_cascade(np_static):
        done = a.newlabel("wc")
        a("s_min_u32 s%d, s%d, s%d" % (S_REM, S_NEED, S_LN))
        a("s_sub_u32 s%d, s%d, s%d" % (S_REM, S_LN, S_REM))
        if np_static is None:
            a("s_mul_i32 s%d, s%d, s%d" % (S_REM, S_REM, S_NP))
            vals = sorted(set([3 * r for r in range(6)] + [6 * r for r in range(6)]), reverse=True)
            cmpv = vals
        else:
            vals = [np_static * r for r in range(5, -1, -1)]
            cmpv = list(range(5, -1, -1))
        for v, c in zip(vals[:-1], cmpv[:-1]):
            a("s_waitcnt vmcnt(%d)" % v)
            a("s_cmp_ge_u32 s%d, %d" % (S_REM, c))
            a("s_cbranch_scc1 %s" % done)
        a("s_waitcnt vmcnt(0)")
        a.label(done)

    def k_addrs(s_base):
        a("v_add_u32 v%d, s%d, v%d" % (V_KB[0], s_base, V_KA0))
        for j in range(1, 4):
            a("v_xor_b32 v%d, %d, v%d" % (V_KB[j], 32 * j, V_KB[0]))

    def k_reads(dst):
        for ks in range(12):
            a("ds_read_b128 %s, v%d offset:%d" % (vr(dst + 4 * ks, 4), V_KB[ks & 3], (ks >> 2) * 4096))

    def qk_plain(S):
        for ks in range(12):
            a("s_waitcnt lgkmcnt(%d)" % (11 - ks))
            a("v_mfma_f32_32x32x16_bf16 %s, %s, %s, %s" % (
                vr(S, 16), vr(POOL + 4 * ks, 4), vr(V_Q + 4 * ks, 4), "0" if ks == 0 else vr(S, 16)))

    def block_max(S, mx, t2):
        a("v_max3_f32 v%d, v%d, v%d, v%d" % (mx, S, S + 1, S + 2))
        a("v_max3_f32 v%d, v%d, v%d, v%d" % (t2, S + 3, S + 4, S + 5))
        a("v_max3_f32 v%d, v%d, v%d, v%d" % (mx, mx, S + 6, S + 7))
        a("v_max3_f32 v%d, v%d, v%d, v%d" % (t2, t2, S + 8, S + 9))
        a("v_max3_f32 v%d, v%d, v%d, v%d" % (mx, mx, S + 10, S + 11))
        a("v_max3_f32 v%d, v%d, v%d, v%d" % (t2, t2, S + 12, S + 13))
        a("v_max3_f32 v%d, v%d, v%d, v%d" % (mx, mx, S + 14, S + 15))
        a("v_max_f32 v%d, v%d, v%d" % (mx, mx, t2))
        a("v_mov_b32 v%d, v%d" % (t2, mx))
        a("s_nop 1")
        a("v_permlane32_swap_b32 v%d, v%d" % (t2, mx))
        a("s_nop 0")
        a("v_max_f32 v%d, v%d, v%d" % (mx, mx, t2))

    lab_nl = a.newlabel("nl")
    a("s_cmp_eq_u32 s%d, 0" % S_NP)
    a("s_cbranch_scc1 %s" % lab_nl)
    load_upto(S_NPRE, 3)
    a.label(lab_nl)
    r, h, f, h4 = V_T[0], V_T[1], V_T[2], V_T[7]
    a("v_and_b32 v%d, 31, v%d" % (r, V_LANE))
    a("v_lshrrev_b32 v%d, 5, v%d" % (h, V_LANE))
    a("v_lshlrev_b32 v%d, 2, v%d" % (h4, h))
    a("v_bfe_u32 v%d, v%d, 1, 3" % (f, r))
    a("v_xor_b32 v%d, v%d, v%d" % (f, f, h))
    a("v_lshlrev_b32 v%d, 4, v%d" % (f, f))
    a("v_lshl_add_u32 v%d, v%d, 7, v%d" % (V_KA0, r, f))
    rr, c, dh, b = V_T[3], V_T[4], V_T[5], V_T[6]
    a("v_bfe_u32 v%d, v%d, 2, 2" % (rr, V_LANE))
    a("v_and_b32 v%d, 3, v%d" % (c, V_LANE))
    a("v_bfe_u32 v%d, v%d, 4, 1" % (dh, V_LANE))
    a("v_bfe_u32 v%d, v%d, 3, 1" % (b, V_LANE))
    a("v_add_u32 v%d, v%d, v%d" % (rr, rr, h4))
    a("v_lshlrev_b32 v%d, 7, v%d" % (V_VA0, rr))
    a("v_lshl_add_u32 v%d, v%d, 6, v%d" % (V_VA0, b, V_VA0))
    a("v_lshl_add_u32 v%d, v%d, 5, v%d" % (V_VA0, dh, V_VA0))
    a("v_lshl_add_u32 v%d, v%d, 3, v%d" % (V_VA0, c, V_VA0))
    for i in range(96):
        a("v_mov_b32 v%d, 0" % (V_O + i))
    a("v_mov_b32 v%d, 0" % V_L)
    a("v_mov_b32 v%d, 0" % V_L2)
    a("s_mov_b32 s%d, s%d" % (SRD_O + 2, S_NREC))
    a("s_mov_b32 s%d, s%d" % (SRD_O, S_OUT))
    a("s_mov_b32 s%d, s%d" % (SRD_O + 1, S_OUT + 1))
    a("s_lshr_b32 s%d, s%d, 1" % (S_J, S_NKB))
    k_addrs(S_QLDS)
    stamp(7, early=True)
    wait_cascade(3)
    stamp(6, early=True)
    k_reads(V_Q)
    k_addrs(S_K0)
    a("s_waitcnt lgkmcnt(0)")
    a("s_barrier")
    stamp(4)
    k_reads(POOL)
    a("s_cmp_lg_u32 s%d, 0" % S_NP)
    a("s_cbranch_scc1 L_duty_path")

    stubs = []

    def sm_seq(par):
        S = V_S[par]
        tm = V_T
        out = []

        def fma(k):
            return ("v_fma_f32 v%d, v%d, s%d, v%d" % (tm[k % 8], S + k, S_C, V_NMC), 1, k // 8, 0)

        def ex(k):
            return ("v_exp_f32 v%d, v%d" % (tm[k % 8], tm[k % 8]), EXPC, k // 8, 0)

        def cvt(p):
            return ("v_cvt_pk_bf16_f32 v%d, v%d, v%d" % (V_P + p, tm[(2 * p) % 8], tm[(2 * p + 1) % 8]), 1, p // 4,
                    17 if p < 4 else 23)

        def add(k):
            lr = V_L2 if k & 1 else V_L
            return ("v_add_f32 v%d, v%d, v%d" % (lr, lr, tm[k % 8]), 1, k // 8, 0)
        for hf in range(2):
            o = 8 * hf
            p = 4 * hf
            out += [fma(o), fma(o + 1), ex(o), fma(o + 2), ex(o + 1), fma(o + 3), ex(o + 2), add(o), fma(o + 4),
                    ex(o + 3), add(o + 1), fma(o + 5), ex(o + 4), cvt(p), add(o + 2), fma(o + 6), ex(o + 5), cvt(p + 1),
                    add(o + 3), fma(o + 7), ex(o + 6), add(o + 4), ex(o + 7), cvt(p + 2), add(o + 5), add(o + 6),
                    cvt(p + 3), add(o + 7)]
        return out

    def schedule(par, duty):
        gaps = {g: [] for g in range(BG, BG + 26)}
        load = {g: 0.0 for g in range(24)}
        load[BG % 24] += 2
        load[(BG - 2) % 24] += 3
        load[(BG - 1) % 24] += 6
        load[23] += 1.5

        def put(it, g):
            gaps[g].append(it)
            load[g % 24] += it.cost
        if duty:
            put(Item(["DUTYLD"], 2, 0, "duty"), BG + 2)
            put(Item(["DUTYWAIT"], 6, 0, "duty"), BG + 24 - 4)
        kg = []
        g = BG
        for i in range(12):
            g = max(g, 12 + i)
            while kg.count(g) >= (2 if g < BG + KD else 1):
                g += 1
            kg.append(g)
            put(Item("ds_read_b128 %s, v%d offset:%d" % (vr(POOL + 4 * i, 4), V_KB[i & 3], (i >> 2) * 4096),
                     LDSC, 0, "K", ("F", i)), g)
            assert g <= 23
        for idx in range(12):
            s, t = divmod(idx, 6)
            for u in range(2):
                put(Item("ds_read_b64_tr_b16 %s, v%d offset:%d" % (
                    vr(POOL + 4 * idx + 2 * u, 2), V_VB[t & 1], HB + (16 * s + 8 * u) * 128 + (t >> 1) * 4096),
                    LDSC, 0, "V%d" % s, ("F", idx)), 24 + idx)
        e, l = max(SM0, BG), SM1
        its = [Item(txt, cost, max(mg, 24 if hf else 0), "sm", half=hf) for txt, cost, hf, mg in sm_seq(par)]
        tot = sum(v.cost for v in its) + sum(load[g % 24] for g in range(e, l + 1))
        target = tot / (l - e + 1)
        g = e
        exc = 0.0
        for it in its:
            while g < l and (load[g % 24] + it.cost / 2.0 > target + exc or g < it.early):
                exc += target - load[g % 24]
                g += 1
            put(it, g)
        if ORDER == 1:
            for g in gaps:
                gaps[g] = [x for x in gaps[g] if x.writes is None] + [x for x in gaps[g] if x.writes is not None]
        elif ORDER == 2:
            for g in gaps:
                x1 = [x for x in gaps[g] if x.writes is not None]
                x2 = [x for x in gaps[g] if x.writes is None]
                o = []
                while x1 or x2:
                    if x1:
                        o.append(x1.pop(0))
                    if x2:
                        o.append(x2.pop(0))
                gaps[g] = o
        return gaps, load

    def mfma_for(slot, par):
        if slot < 12:
            Sn = V_S[par ^ 1]
            txt = "v_mfma_f32_32x32x16_bf16 %s, %s, %s, %s" % (
                vr(Sn, 16), vr(POOL + 4 * slot, 4), vr(V_Q + 4 * slot, 4), "0" if slot == 0 else vr(Sn, 16))
            return txt, ("F", slot)
        idx = slot - 12
        s, t = divmod(idx, 6)
        txt = "v_mfma_f32_32x32x16_bf16 %s, %s, %s, %s" % (
            vr(V_O + 16 * t, 16), vr(POOL + 4 * idx, 4), vr(V_P + 4 * s, 4), vr(V_O + 16 * t, 16))
        return txt, ("F", idx)

    def emit_lines(lines):
        for ln in lines:
            if ln == "DUTYLD":
                stub, back = a.newlabel("dl"), a.newlabel("dlb")
                a("s_cmp_lt_u32 s%d, s%d" % (S_LN, S_NKB))
                a("s_cbranch_scc1 %s" % stub)
                a.label(back)
                stubs.append((stub, "L_dutyld", back))
            elif ln == "DUTYWAIT":
                a("s_add_u32 s%d, s%d, 1" % (S_NEED, S_NEED))
                wait_cascade(3)
            elif ln == "MASKHI":
                stub, back = a.newlabel("mk"), a.newlabel("mkb")
                a("s_cmp_lg_u32 s%d, 32" % S_NVAL)
                a("s_cbranch_scc1 %s" % stub)
                a.label(back)
                stubs.append((stub, "L_mask", back))
            else:
                a(ln)

    def skip_item(it):
        return ("L" in abl and it.writes is not None) or ("S" in abl and it.kind == "sm")

    def emit_stream(seq, outstanding):
        issued = list(outstanding)
        done = 0
        for idx, e in enumerate(seq):
            if e[0] == "m":
                frag = e[2]
                need = max([k for k, fr in enumerate(issued) if fr == frag], default=-1) + 1
                if need > done:
                    tgt = need
                    cnt = 0
                    for e2 in seq[idx + 1:]:
                        if e2[0] == "m":
                            n2 = max([k for k, fr in enumerate(issued) if fr == e2[2]], default=-1) + 1
                            if n2 > tgt and n2 <= len(issued) - 6 and cnt < 5:
                                tgt = n2
                                cnt += 1
                            else:
                                break
                    n = len(issued) - tgt
                    a("s_waitcnt lgkmcnt(%d)" % min(15, n))
                    done = len(issued) - min(15, n)
                a(e[1])
            elif e[0] == "i":
                it = e[1]
                if skip_item(it):
                    continue
                emit_lines(it.lines)
                if it.writes is not None:
                    issued.append(it.writes)
            elif e[0] == "bar":
                a("s_waitcnt lgkmcnt(0)")
                a("s_barrier")
                issued, done = [], 0
            elif e[0] == "raw":
                emit_lines([e[1]])
            elif e[0] == "label":
                a.label(e[1])

    def addr_lines():
        return (["v_add_u32 v%d, s%d, v%d" % (V_KB[0], S_SLOT, V_KA0), "v_add_u32 v%d, s%d, v%d" % (V_VB[0], S_SLOT, V_VA0)] +
                ["v_xor_b32 v%d, %d, v%d" % (V_KB[j], 32 * j, V_KB[0]) for j in range(1, 4)] +
                ["v_xor_b32 v%d, 64, v%d" % (V_VB[1], V_VB[0])])

    def epi_pre():
        q, hh = V_T[1], V_T[2]
        return [
            "v_add_f32 v%d, v%d, v%d" % (V_L, V_L, V_L2),
            "s_add_u32 s%d, s%d, s%d" % (S_SCRB, S_SLOT, S_SCR),
            "v_exp_f32 v%d, v%d" % (V_T[5], V_NMC),
            "v_mov_b32 v%d, v%d" % (V_T[0], V_L),
            "s_sub_u32 s%d, s%d, %d" % (S_TMP2, S_SCRB, RING),
            "s_cselect_b32 s%d, s%d, s%d" % (S_SCRB, S_SCRB, S_TMP2),
            "v_and_b32 v%d, 31, v%d" % (q, V_LANE),
            "v_permlane32_swap_b32 v%d, v%d" % (V_T[0], V_L),
            "v_lshrrev_b32 v%d, 5, v%d" % (hh, V_LANE),
            "v_add_f32 v%d, v%d, v%d" % (V_L, V_L, V_T[0]),
            "v_mul_f32 v%d, s%d, v%d" % (V_T[5], S_CORR, V_T[5]),
            "v_lshlrev_b32 v%d, 7, v%d" % (V_T[3], q),
            "v_and_b32 v%d, 7, v%d" % (q, q),
            "v_fma_f32 v%d, v%d, s%d, v%d" % (V_T[6], V_T[5], S_NEG, V_L),
            "v_add_f32 v%d, v%d, v%d" % (V_L, V_L, V_T[5]),
            "v_lshl_add_u32 v%d, v%d, 4, v%d" % (V_T[3], q, V_T[3]),
            "v_cmp_nge_f32 vcc, s%d, v%d" % (S_LMAX, V_T[6]),
            "v_rcp_f32 v%d, v%d" % (V_L, V_L),
            "v_lshl_add_u32 v%d, v%d, 3, v%d" % (V_T[3], hh, V_T[3]),
            "v_add_u32 v%d, s%d, v%d" % (EA, S_SCRB, V_T[3]),
            "v_mov_b32 v%d, v%d" % (V_M, V_L),
        ] + ["v_xor_b32 v%d, %d, v%d" % (EA + c, 16 * c, EA) for c in range(1, 8)] + [
            "v_lshlrev_b32 v%d, 4, v%d" % (V_T[4], V_LANE),
            "v_lshrrev_b32 v%d, 3, v%d" % (V_T[0], V_LANE),
            "v_and_b32 v%d, 7, v%d" % (V_T[1], V_LANE),
            "v_add_u32 v%d, s%d, v%d" % (EA + 8, S_SCRB, V_T[4]),
            "v_xor_b32 v%d, v%d, v%d" % (V_T[1], V_T[1], V_T[0]),
            "v_mul_u32_u24 v%d, %d, v%d" % (V_T[0], RS, V_T[0]),
            "v_lshl_add_u32 v%d, v%d, 4, v%d" % (V_T[0], V_T[1], V_T[0]),
            "v_add_u32 v%d, s%d, v%d" % (EA + 9, S_QOFF, V_T[0]),
        ] + ["v_add_u32 v%d, %d, v%d" % (EA + 9 + rg, rg * 8 * RS, EA + 9) for rg in range(1, 4)]
    S_NEG = S_SPARE

    def last_mfmas(first_slot):
        seq = []
        pre = epi_pre()
        per = (len(pre) + 5) // 6
        for t in range(6):
            txt, frag = mfma_for(first_slot + t, 0)
            seq.append(("m", txt, frag))
            for x in pre[per * t: per * (t + 1)]:
                seq.append(("raw", x))
        return seq

    def compute_path(duty):
        sfx = "d" if duty else "n"
        scheds = [schedule(0, duty), schedule(1, duty)]
        sys.stderr.write("gap loads (%s): %s\n" % (sfx, " ".join("%.0f" % scheds[0][1][g] for g in range(24))))

        def next_items(par):
            return [it for g in range(BG, 24) for it in scheds[par][0][g]]

        def nfr(par):
            return [it.writes for it in next_items(par) if it.writes is not None and not skip_item(it)]

        def body(par):
            cur, nxt = scheds[par][0], scheds[par ^ 1][0]
            seq = []
            for slot in range(24):
                txt, frag = mfma_for(slot, par)
                seq.append(("m", txt, frag))
                for it in cur.get(slot + 24, []):
                    seq.append(("i", it))
                if slot == BG - 2:
                    seq += [("raw", "s_add_u32 s%d, s%d, s%d" % (S_SLOT, S_SLOT, S_STEP)),
                            ("raw", "s_sub_u32 s%d, s%d, %d" % (S_TMP3, S_SLOT, RING)),
                            ("raw", "s_cselect_b32 s%d, s%d, s%d" % (S_SLOT, S_SLOT, S_TMP3))]
                if slot == BG - 1:
                    seq += [("raw", x) for x in addr_lines()]
                if slot == BG:
                    seq.append(("bar",))
                if slot >= BG:
                    for it in nxt.get(slot, []):
                        seq.append(("i", it))
            return seq

        def prologue(par):
            qk_plain(V_S[par])
            if duty:
                a("s_add_u32 s%d, s%d, %d" % (S_LIM, S_LN, RAMPD))
                a("s_min_u32 s%d, s%d, s%d" % (S_LIM, S_LIM, S_DEPTH))
                load_upto(S_LIM, 3)
                a("s_add_u32 s%d, s%d, 1" % (S_NEED, S_NEED))
                wait_cascade(3)
            for x in addr_lines():
                a(x)
            a("s_mov_b32 s%d, 0x%x" % (S_NEG, f32(-LMAX / 64)))
            a("s_barrier")
            items = next_items(par)
            kre = [it for it in items if it.kind == "K"]
            oth = [it for it in items if it.kind != "K"]
            emit_stream([("i", it) for it in kre], [])
            block_max(V_S[par], V_M, V_T[1])
            a("v_mul_f32 v%d, s%d, v%d" % (V_NMC, S_C, V_M))
            a("v_sub_f32 v%d, 0, v%d" % (V_NMC, V_NMC))
            emit_stream([("i", it) for it in oth], [])

        a("s_bitcmp1_b32 s%d, 4" % S_FL)
        a("s_cbranch_scc1 L_pro1_" + sfx)
        prologue(0)
        a("s_branch L_loop_" + sfx)
        a.label("L_pro1_" + sfx)
        prologue(1)
        a("s_branch L_mid_" + sfx)
        a.lines.append(".p2align 6")
        for _ in range(APADD if duty else APAD):
            a("s_nop 0")
        a.label("L_loop_" + sfx)
        a("; ALIGN8_BEGIN")
        emit_stream(body(0), nfr(0))
        a.label("L_mid_" + sfx)
        b1 = body(1)
        pos = max(i for i, e in enumerate(b1) if e[0] == "m")
        b1 = b1[:pos + 1] + [("raw", "s_sub_u32 s%d, s%d, 1" % (S_J, S_J)), ("raw", "s_cmp_lg_u32 s%d, 0" % S_J)] + b1[pos + 1:]
        emit_stream(b1, nfr(1))
        a("s_cbranch_scc1 L_loop_" + sfx)
        a("; ALIGN8_END")
        cur = scheds[0][0]
        rest = [it for g in range(24, BG + 26) for it in cur[g]]
        assert all(it.half != 1 for it in next_items(0))
        v0 = [it for it in rest if it.kind == "V0"]
        v1 = [it for it in rest if it.kind == "V1"]
        h0 = [it for it in rest if it.kind == "sm" and it.half == 0]
        h1 = [it for it in rest if it.kind == "sm" and it.half == 1]
        seq = []
        k = 0
        for it in v0:
            seq.append(("i", it))
            if k < len(h0):
                seq.append(("i", h0[k]))
                k += 1
        for it in h0[k:]:
            seq.append(("i", it))
        seq.append(("raw", "s_cmp_gt_u32 s%d, 16" % S_NVAL))
        seq.append(("raw", "s_cbranch_scc1 L_long_" + sfx))
        pref = list(seq)
        emit_stream(seq + last_mfmas(12) + [("raw", "s_branch L_epi")], nfr(0))
        a.label("L_long_" + sfx)
        seq = [("raw", "MASKHI")]
        k = 0
        per = (len(h1) + 5) // 6
        for t in range(6):
            txt, frag = mfma_for(12 + t, 0)
            seq.append(("m", txt, frag))
            for it in v1[2 * t:2 * t + 2]:
                seq.append(("i", it))
            for it in h1[k:k + per]:
                seq.append(("i", it))
            k += per
        seq.append(("raw", "s_nop 0"))
        outst = nfr(0) + [e[1].writes for e in pref if e[0] == "i" and e[1].writes is not None and not skip_item(e[1])]
        emit_stream(seq + last_mfmas(18) + ([] if not duty else [("raw", "s_branch L_epi")]), outst)

    compute_path(False)

    a.label("L_epi")
    stamp(5)
    if forcesolo:
        a("s_mov_b64 vcc, -1")
    a("s_cbranch_vccnz L_solo")
    a.label("L_epi2")

    def conv(c):
        t, g = divmod(c, 4)
        o = V_O + 16 * t + 4 * g
        d = V_P + 2 * (c % 4)
        a("v_pk_mul_f32 %s, %s, %s" % (vr(o, 2), vr(o, 2), vr(V_L, 2)))
        a("v_pk_mul_f32 %s, %s, %s" % (vr(o + 2, 2), vr(o + 2, 2), vr(V_L, 2)))
        a("v_cvt_pk_bf16_f32 v%d, v%d, v%d" % (d, o, o + 1))
        a("v_cvt_pk_bf16_f32 v%d, v%d, v%d" % (d + 1, o + 2, o + 3))
        a("ds_write_b64 v%d, %s offset:%d" % (EA + (c & 7), vr(d, 2), (c >> 3) * 4096))

    RB = V_S[0]
    for lc in range(3):
        for c in range(8 * lc, 8 * lc + 8):
            conv(c)
            if lc > 0 and c == 8 * lc + 2:
                for rg in range(4):
                    a("s_waitcnt lgkmcnt(%d)" % (3 + 3 - rg))
                    a("buffer_store_dwordx4 %s, v%d, %s, 0 offen offset:%d %s" % (
                        vr(RB + 16 * ((lc - 1) & 1) + 4 * rg, 4), EA + 9 + rg, sr(SRD_O, 4), (lc - 1) * 128, stf))
        for rg in range(4):
            a("ds_read_b128 %s, v%d offset:%d" % (vr(RB + 16 * (lc & 1) + 4 * rg, 4), EA + 8, lc * 4096 + rg * 1024))
    stamp(6)
    for rg in range(4):
        a("s_waitcnt lgkmcnt(%d)" % (3 - rg))
        a("buffer_store_dwordx4 %s, v%d, %s, 0 offen offset:%d %s" % (
            vr(RB + 4 * rg, 4), EA + 9 + rg, sr(SRD_O, 4), 2 * 128, stf))
    stamp_flush()
    a("s_endpgm")

    a.label("L_loader")
    a("s_cmp_eq_u32 s%d, 0" % S_NP)
    a("s_cbranch_scc1 L_idle")
    load_body(None, True)
    load_upto(S_NPRE, None)
    stamp(7, early=True)
    wait_cascade(None)
    stamp(6, early=True)
    a("s_barrier")
    stamp(4)
    a("s_mov_b32 s%d, s%d" % (S_TMP3, S_DEPTH))
    a("s_mov_b32 s%d, 0" % S_J)
    if stamps:
        a("v_mov_b32 v90, 0")
    a.label("L_ld_loop")
    a("s_add_u32 s%d, s%d, %d" % (S_LIM, S_LN, RAMP))
    a("s_min_u32 s%d, s%d, s%d" % (S_LIM, S_LIM, S_TMP3))
    load_upto(S_LIM, None)
    a("s_add_u32 s%d, s%d, 1" % (S_NEED, S_NEED))
    wait_cascade(None)
    if stamps:
        a("s_memtime s[88:89]")
        a("s_waitcnt lgkmcnt(0)")
        a("s_add_u32 m0, s%d, 32" % S_J)
        a("s_nop 0")
        a("v_writelane_b32 v90, s88, m0")
    a("s_barrier")
    if stamps:
        a("s_memtime s[88:89]")
        a("s_memrealtime s[94:95]")
        a("s_waitcnt lgkmcnt(0)")
        a("s_mov_b32 m0, s%d" % S_J)
        a("s_nop 0")
        a("v_writelane_b32 v90, s88, m0")
        a("s_add_u32 m0, s%d, 16" % S_J)
        a("s_nop 0")
        a("v_writelane_b32 v90, s94, m0")
    a("s_add_u32 s%d, s%d, 1" % (S_TMP3, S_TMP3))
    a("s_add_u32 s%d, s%d, 1" % (S_J, S_J))
    a("s_cmp_lt_u32 s%d, s%d" % (S_J, S_NKB))
    a("s_cbranch_scc1 L_ld_loop")
    stamp(5)
    stamp(6)
    stamp_flush(True)
    a.label("L_end")
    a("s_endpgm")
    a.label("L_idle")
    a("s_add_u32 s%d, s%d, 1" % (S_J, S_NKB))
    a.label("L_idle_loop")
    a("s_barrier")
    a("s_sub_u32 s%d, s%d, 1" % (S_J, S_J))
    a("s_cmp_lg_u32 s%d, 0" % S_J)
    a("s_cbranch_scc1 L_idle_loop")
    a("s_endpgm")
    a.label("L_qser")
    tile_loads(SRD_Q, S_QOFF, S_QLDS, False, True, qf)
    a("s_branch L_noq")

    a.label("L_duty_path")
    compute_path(True)

    for stub, target, back in stubs:
        a.label(stub)
        a("s_call_b64 %s, %s" % (sr(S_RET, 2), target))
        a("s_branch %s" % back)
    a.label("L_dutyld")
    load_body(3)
    a("s_setpc_b64 %s" % sr(S_RET, 2))

    def mask_code(S, lo):
        a("v_lshrrev_b32 v%d, 5, v%d" % (V_DE, V_LANE))
        a("v_lshlrev_b32 v%d, 2, v%d" % (V_DE, V_DE))
        a("v_mov_b32 v%d, 0xff800000" % V_DO)
        for g in range(lo, 4):
            for i in range(4):
                a("s_sub_u32 s%d, s%d, %d" % (S_TMP2, S_NVAL, 8 * g + i))
                a("v_cmp_gt_i32 vcc, s%d, v%d" % (S_TMP2, V_DE))
                a("s_nop 1")
                a("v_cndmask_b32 v%d, v%d, v%d, vcc" % (S + 4 * g + i, V_DO, S + 4 * g + i))
    a.label("L_mask")
    mask_code(V_S[0], 2)
    a("s_setpc_b64 %s" % sr(S_RET, 2))

    a.label("L_solo")
    a("s_cmp_lg_u32 s%d, 0" % S_SOLO)
    a("s_cbranch_scc1 L_epi2")
    a("s_mov_b32 s%d, 1" % S_SOLO)
    a("s_nop 15")
    dma_patterns()
    a("v_mov_b32 v%d, v5" % (V_P + 5))
    a("v_mov_b32 v%d, v6" % (V_P + 6))
    a("v_mov_b32 v%d, v7" % (V_P + 7))
    tile_loads(SRD_Q, S_QOFF, S_SCRB, False)
    k_addrs(S_SCRB)
    a("v_add_u32 v%d, s%d, v%d" % (V_VB[0], S_SCRB, V_VA0))
    a("v_xor_b32 v%d, 64, v%d" % (V_VB[1], V_VB[0]))
    for i in range(96):
        a("v_mov_b32 v%d, 0" % (V_O + i))
    a("v_mov_b32 v%d, 0" % V_L)
    a("v_mov_b32 v%d, 0" % V_L2)
    a("v_mov_b32 v%d, 0xff800000" % V_M)
    a("s_waitcnt vmcnt(0)")
    k_reads(V_Q)
    a("s_waitcnt lgkmcnt(0)")
    a("s_mov_b32 s%d, 0" % S_J)
    a("s_add_u32 s%d, s%d, s%d" % (S_GOFF, S_GB, S_XB))
    a("s_mov_b32 s%d, 0" % S_CORR)
    S = V_S[0]
    PAT = V_S[1]
    a("v_mov_b32 v%d, v5" % PAT)
    a("v_mov_b32 v%d, v6" % (PAT + 1))
    a("v_mov_b32 v%d, v7" % (PAT + 2))
    a.label("L_solo_loop")
    a("v_mov_b32 v5, v%d" % PAT)
    a("v_mov_b32 v6, v%d" % (PAT + 1))
    a("s_mov_b32 s%d, s%d" % (SRD_KV, S_K))
    a("s_mov_b32 s%d, s%d" % (SRD_KV + 1, S_K + 1))
    tile_loads(SRD_KV, S_GOFF, S_SCRB, False)
    a("s_waitcnt vmcnt(0)")
    k_reads(POOL)
    qk_plain(S)
    a("v_mov_b32 v7, v%d" % (PAT + 2))
    a("s_mov_b32 s%d, s%d" % (SRD_KV, S_V))
    a("s_mov_b32 s%d, s%d" % (SRD_KV + 1, S_V + 1))
    tile_loads(SRD_KV, S_GOFF, S_SCRB, True)
    a("s_cmp_lg_u32 s%d, s%d" % (S_J, S_NF))
    a("s_cbranch_scc1 L_solo_nm")
    mask_code(S, 0)
    a.label("L_solo_nm")
    mx, t2 = V_T[0], V_T[1]
    block_max(S, mx, t2)
    a("v_max_f32 v%d, v%d, v%d" % (mx, mx, V_M))
    a("v_sub_f32 v%d, v%d, v%d" % (t2, V_M, mx))
    a("v_mul_f32 v%d, s%d, v%d" % (t2, S_C, t2))
    a("v_exp_f32 v%d, v%d" % (t2, t2))
    a("v_mov_b32 v%d, v%d" % (V_M, mx))
    a("v_mul_f32 v%d, s%d, v%d" % (V_NMC, S_C, mx))
    a("v_sub_f32 v%d, 0, v%d" % (V_NMC, V_NMC))
    a("v_mul_f32 v%d, v%d, v%d" % (V_L, V_L, t2))
    for i in range(96):
        a("v_mul_f32 v%d, v%d, v%d" % (V_O + i, V_O + i, t2))
    for hf in range(2):
        for k in range(8):
            a("v_fma_f32 v%d, v%d, s%d, v%d" % (V_T[k], S + 8 * hf + k, S_C, V_NMC))
        for k in range(8):
            a("v_exp_f32 v%d, v%d" % (V_T[k], V_T[k]))
        a("s_nop 0")
        for p in range(4):
            a("v_cvt_pk_bf16_f32 v%d, v%d, v%d" % (V_P + 4 * hf + p, V_T[2 * p], V_T[2 * p + 1]))
        for k in range(8):
            a("v_add_f32 v%d, v%d, v%d" % (V_L, V_L, V_T[k]))
    a("s_waitcnt vmcnt(0)")
    for idx in range(12):
        s, t = divmod(idx, 6)
        for u in range(2):
            a("ds_read_b64_tr_b16 %s, v%d offset:%d" % (
                vr(POOL + 4 * idx + 2 * u, 2), V_VB[t & 1], (16 * s + 8 * u) * 128 + (t >> 1) * 4096))
    a("s_waitcnt lgkmcnt(0)")
    for idx in range(12):
        a(mfma_for(12 + idx, 0)[0])
    a("s_add_u32 s%d, s%d, %d" % (S_GOFF, S_GOFF, 32 * RS))
    a("s_add_u32 s%d, s%d, 1" % (S_J, S_J))
    a("s_cmp_lt_u32 s%d, s%d" % (S_J, S_NKB))
    a("s_cbranch_scc1 L_solo_loop")
    a("v_min_f32 v%d, 0, v%d" % (V_NMC, V_NMC))
    for x in epi_pre():
        a(x)
    a("s_branch L_epi2")

    a.lines.append(".p2align 6")
    a.lines.append(".type L_table,@object")
    a.label("L_table")
    for d in TABLE:
        a(".long " + ", ".join("0x%x" % x for x in d))
    a.lines.append(".size L_table, %d" % (64 * len(TABLE)))

    hdr = open("cdna_kernels/%s.s.ref" % NAME).read().split("\n")
    out = []
    for ln in hdr:
        if ln.startswith("; @launch"):
            out.append("; @launch grid=(256,1,1) block=(512,1,1) lds=%d" % LDS_TOTAL)
        elif ln.startswith(";"):
            out.append(ln)
        else:
            break
    out += ['.amdgcn_target "amdgcn-amd-amdhsa--gfx950"', ".text", ".globl %s_kernel" % NAME, ".p2align 8",
            ".type %s_kernel,@function" % NAME]
    out += a.lines
    out += ['.section .rodata,"a"', ".p2align 6", ".amdhsa_kernel %s_kernel" % NAME,
            "  .amdhsa_next_free_vgpr 256", "  .amdhsa_next_free_sgpr 96", "  .amdhsa_accum_offset 256",
            "  .amdhsa_group_segment_fixed_size 0", "  .amdhsa_kernarg_size 56", "  .amdhsa_user_sgpr_count 2",
            "  .amdhsa_user_sgpr_kernarg_segment_ptr 1", "  .amdhsa_system_sgpr_workgroup_id_x 1",
            ".end_amdhsa_kernel", ""]
    text = "\n".join(out)
    if A8:
        import align8
        text = align8.process(text)
    return text


def parse_plan(s):
    out = []
    for (seq, parts, _, _, _), x in zip(DEFAULT_PLAN, s.split(",")):
        w, npre, rot = x.split(".")
        out.append((seq, parts, int(w), int(npre), int(rot)))
    return out


if __name__ == "__main__":
    dst = sys.argv[1] if len(sys.argv) > 1 and not sys.argv[1].startswith("--") else "cdna_kernels/%s.s" % NAME
    kw = {}
    for x in sys.argv[1:]:
        if x.startswith("--"):
            k, _, v = x[2:].partition("=")
            if k == "plan":
                kw[k] = parse_plan(v)
            elif k in ("qf", "kvf", "stf", "abl"):
                kw[k] = v.replace("+", " ")
            elif k in ("EXPC", "LDSC"):
                kw[k] = float(v)
            else:
                kw[k] = int(v) if v else 1
    open(dst, "w").write(gen(**kw))
    print("wrote", dst)
```

```python
import math
import struct
import sys

NAME = "standalone__varlen_attn_packed__ragged"
CU = [0, 238, 376, 669, 835, 1320, 1545, 1865, 2058]
T, H, D = 2058, 16, 192
RS = H * D * 2
HB = 12288
BLK = 2 * HB
NSLOT = 6
RING = NSLOT * BLK
LDS_TOTAL = 163840
CSCALE = (D ** -0.5) * math.log2(math.e)
LMAX = 2.0 ** 40
NKB = [(CU[i + 1] - CU[i] + 31) // 32 for i in range(8)]


def f32(x):
    return struct.unpack("<I", struct.pack("<f", x))[0]


DEFAULT_PLAN = [(4, [4, 4, 4, 4], 0), (7, [7], 1), (3, [6], 2), (6, [4, 4, 2], 2), (2, [4, 4, 2], 2), (1, [5], 9),
                (0, [4, 4], 10), (5, [4, 4], 10)]


def make_wgs(plan, dualwin=2):
    wgs = []
    for seq, parts, win in plan:
        t0 = 0
        assert sum(parts) == NKB[seq]
        for r, nt in enumerate(parts):
            if nt == 2:
                wgs.append(dict(seq=seq, t0=t0, nt=4, dual=True, hb=0, win=max(0, win - dualwin)))
            else:
                assert nt <= 7
                for hb in range(2):
                    wgs.append(dict(seq=seq, t0=t0, nt=nt, dual=False, hb=hb, win=win))
            t0 += nt
    assert len(wgs) == 32, len(wgs)
    return wgs


def wave_desc(wg, w):
    seq, nt, dual = wg["seq"], wg["nt"], wg["dual"]
    s0, s1 = CU[seq], CU[seq + 1]
    nkb = NKB[seq]
    nval = (s1 - s0) - 32 * (nkb - 1)
    step = 2 * BLK if dual else BLK
    compute = w < nt
    dok = dov = nrg = rg0 = 0
    if dual:
        hb = (w >> 1) & 1
        tile = wg["t0"] + (w & 1)
        so = hb * BLK
        qlds = [12 * HB, 9 * HB, 11 * HB, 7 * HB][w & 3]
        if w >= 4:
            dok, dov, nrg = 1 - (w & 1), w & 1, 4
    else:
        hb = wg["hb"]
        tile = wg["t0"] + w
        so = 0
        qlds = (12 - w - (1 if w >= 2 else 0)) * HB
        if nt <= 4:
            if w >= 4:
                dok, dov, nrg, rg0 = int(w < 6), int(w >= 6), 2, 2 * (w & 1)
        elif nt <= 6:
            if w >= 6:
                dok, dov, nrg = int(w == 6), int(w == 7), 4
        elif w == 7:
            dok, dov, nrg = 1, 1, 4
    role = 2 if compute else (1 if nrg else 0)
    d0 = role | (dok << 2) | (dov << 3) | (((nkb - 1) & 1) << 4) | (int(nt > 4) << 5) | (int(nrg == 4) << 6) | \
        (wg["win"] << 28)
    k0 = RING - step + so
    corr = f32(float(nval - 16)) if nval <= 16 else f32(float(nval - 32))
    d = [d0, s1 * RS, (s0 + 32 * tile) * RS + hb * 384, qlds, (s0 + 8 * rg0) * RS + hb * 384, k0 + rg0 * 1024, step,
         so + HB + rg0 * 1024, nkb, so, k0, step - so + w * HB,
         nval, s0 * RS + hb * 384, corr, 0]
    return d


class Asm:
    def __init__(self):
        self.lines = []
        self.nlabel = 0

    def __call__(self, s):
        self.lines.append("    " + s)

    def label(self, name):
        self.lines.append(name + ":")

    def newlabel(self, base):
        self.nlabel += 1
        return "L_%s_%d" % (base, self.nlabel)


def vr(lo, n):
    return "v[%d:%d]" % (lo, lo + n - 1)


def sr(lo, n):
    return "s[%d:%d]" % (lo, lo + n - 1)


class Item:
    def __init__(self, lines, cost, early, kind, writes=None, half=None):
        self.lines = lines if isinstance(lines, list) else [lines]
        self.cost, self.early, self.kind = cost, early, kind
        self.writes, self.half = writes, half


def gen(stamps=0, qf="", kvf="", stf="nt", plan=None, BG=13, SM0=14, SM1=35, RAMP=2, RAMPD=2, EARLY=0,
        APAD=1, APADD=4, A8=0, ORDER=0, ORDERD=0, KD=2, EXPC=2.0, LDSC=1.0, forcesolo=0, DUALWIN=1, BGD=13, VDELAY=0, abl=""):
    a = Asm()
    BGN = BG
    WGS = make_wgs(plan or DEFAULT_PLAN, DUALWIN)
    TABLE = [wave_desc(wg, w) for wg in WGS for w in range(8)]
    NST = 8
    S_ST = 64

    V_LANE = 0
    V_T = list(range(1, 9))
    V_KA0, V_VA0 = 9, 10
    V_KB = [11, 12, 13, 14]
    V_VB = [15, 16]
    V_DE, V_DO, V_JUNK = 17, 18, 19
    V_L, V_M, V_L2, V_NMC = 20, 21, 22, 23
    POOL = 24
    V_P = 72
    V_S = [80, 96]
    V_Q = 112
    V_O = 160
    EA = V_Q

    S_Q, S_K, S_V, S_OUT = 4, 6, 8, 12
    S_WIN, S_XB = 14, 15
    SRD_Q, SRD_KV, SRD_O = 16, 20, 24
    SRD_K, SRD_V = 20, 24
    S_W = 28
    S_TMP, S_TMP2, S_TMP3 = 29, 30, 31
    S_CF = 32
    (S_FL, S_NREC, S_QOFF, S_QLDS, S_GOFF, S_KDST, S_STEP, S_VDST, S_NKB, S_SLOT, S_K0, S_SCR,
     S_NVAL, S_GB, S_CORR, S_SPARE) = range(32, 48)
    S_NF, S_J = 49, 51
    S_KN, S_VN, S_KOFF, S_VOFF = 52, 53, 54, 55
    S_C, S_LMAX = 56, 57
    S_RET = 58
    S_CNT, S_SOLO, S_REM = 60, 61, 62
    S_PC = 92
    S_SCRB = 90

    def stamp(i, real=False, early=False):
        if EARLY and i in (5, 6) and not early:
            return
        if early and not EARLY:
            return
        if stamps:
            a(("s_memrealtime %s" if real else "s_memtime %s") % sr(S_ST + 2 * i, 2))
            a("s_waitcnt lgkmcnt(0)")

    def stamp_flush(iters=False):
        if not stamps:
            return
        a("s_waitcnt vmcnt(0)")
        stamp(1, True)
        if not EARLY:
            stamp(7)
        a("s_load_dwordx2 s[80:81], s[0:1], 48")
        a("s_waitcnt lgkmcnt(0)")
        a("s_mov_b32 s84, s80")
        a("s_mov_b32 s85, s81")
        a("s_mov_b32 s86, 0x100000")
        a("s_mov_b32 s87, 0x00020000")
        a("s_lshl_b32 s82, s2, 3")
        a("s_add_u32 s82, s82, s%d" % S_W)
        a("s_mul_i32 s83, s82, %d" % (NST * 8))
        a("v_mov_b32 v1, s83")
        a("s_mov_b64 exec, 1")
        for i in range(NST):
            a("v_mov_b32 v2, s%d" % (S_ST + 2 * i))
            a("v_mov_b32 v3, s%d" % (S_ST + 2 * i + 1))
            a("buffer_store_dwordx2 v[2:3], v1, s[84:87], 0 offen offset:%d" % (8 * i))
            a("s_nop 1")
        if iters:
            a("s_mov_b64 exec, -1")
            a("s_lshl_b32 s82, s82, 8")
            a("s_add_u32 s82, s82, 0x80000")
            a("v_lshlrev_b32 v1, 2, v0")
            a("v_add_u32 v1, s82, v1")
            a("buffer_store_dword v90, v1, s[84:87], 0 offen")

    def dma_patterns():
        a("v_lshrrev_b32 v1, 3, v0")
        a("v_and_b32 v2, 7, v0")
        a("v_bfe_u32 v3, v0, 4, 2")
        a("v_bfe_u32 v4, v0, 4, 1")
        a("v_mul_u32_u24 v1, %d, v1" % RS)
        a("v_xor_b32 v3, v2, v3")
        a("v_lshlrev_b32 v4, 2, v4")
        a("v_xor_b32 v4, v2, v4")
        a("v_lshl_add_u32 v5, v3, 4, v1")
        a("v_lshl_add_u32 v7, v4, 4, v1")
        a("v_xor_b32 v6, 64, v5")

    def tile_loads(srd, s_goff, s_lds, isv, ser=False, flags=""):
        for rg in range(4):
            a("s_add_u32 s%d, s%d, %d" % (S_TMP, s_goff, rg * 8 * RS))
            for lc in range(3):
                a("s_add_u32 m0, s%d, %d" % (s_lds, lc * 4096 + rg * 1024 - lc * 128))
                k = 3 * rg + lc
                if ser and k >= 1:
                    lab = a.newlabel("qs")
                    a("s_cmp_lt_u32 s%d, %d" % (S_WIN, k))
                    a("s_cbranch_scc1 %s" % lab)
                    a("s_waitcnt vmcnt(0)")
                    a("s_cmp_lg_u32 s%d, %d" % (S_WIN, k))
                    a("s_cbranch_scc1 %s" % lab)
                    a("s_barrier")
                    a.label(lab)
                else:
                    a("s_nop 0")
                a("buffer_load_dwordx4 v%d, %s, s%d offen offset:%d %s lds" % (
                    7 if isv else 5 + (rg & 1), sr(srd, 4), S_TMP, lc * 128, flags))

    a.label(NAME + "_kernel")
    a("s_cmp_ge_u32 s2, 256")
    a("s_cbranch_scc1 L_end")
    stamp(0, True)
    stamp(2)
    a("s_load_dwordx8 s[4:11], s[0:1], 0")
    a("s_load_dwordx2 s[12:13], s[0:1], 32")
    a("s_getpc_b64 %s" % sr(S_PC, 2))
    a.label("L_pc")
    a("v_lshrrev_b32 v1, 6, v0")
    a("v_lshlrev_b32 v2, 7, v0")
    a("v_readfirstlane_b32 s%d, v1" % S_W)
    a("v_min_u32 v2, L_table-L_pc-4, v2")
    a("global_load_dword v%d, v2, %s" % (V_JUNK, sr(S_PC, 2)))
    a("s_and_b32 s%d, s2, 0xf8" % S_TMP)
    a("s_add_u32 s%d, s%d, L_table-L_pc" % (S_PC, S_PC))
    a("s_addc_u32 s%d, s%d, 0" % (S_PC + 1, S_PC + 1))
    a("s_add_u32 s%d, s%d, s%d" % (S_TMP, S_TMP, S_W))
    a("s_lshl_b32 s%d, s%d, 6" % (S_TMP, S_TMP))
    a("s_load_dwordx16 %s, %s, s%d" % (sr(S_CF, 16), sr(S_PC, 2), S_TMP))
    a("v_and_b32 v0, 63, v0")
    a("s_and_b32 s%d, s2, 7" % S_XB)
    a("s_mul_i32 s%d, s%d, 768" % (S_XB, S_XB))
    dma_patterns()
    a("s_mov_b32 s%d, 0x00020000" % (SRD_Q + 3))
    a("s_mov_b32 s%d, 0x00020000" % (SRD_KV + 3))
    a("s_mov_b32 s%d, 0x00020000" % (SRD_O + 3))
    a("s_mov_b32 s%d, 0x%x" % (S_C, f32(CSCALE)))
    a("s_mov_b32 s%d, 0x%x" % (S_LMAX, f32(LMAX)))
    a("s_mov_b32 s%d, 0" % S_SOLO)
    a("s_waitcnt lgkmcnt(0)")
    stamp(3)
    a("s_mov_b32 s%d, s%d" % (SRD_Q, S_Q))
    a("s_mov_b32 s%d, s%d" % (SRD_Q + 1, S_Q + 1))
    a("s_mov_b32 s%d, s%d" % (SRD_Q + 2, S_NREC))
    a("s_add_u32 s%d, s%d, s%d" % (S_QOFF, S_QOFF, S_XB))
    a("s_lshr_b32 s%d, s%d, 28" % (S_WIN, S_FL))
    a("s_bitcmp1_b32 s%d, 1" % S_FL)
    a("s_cbranch_scc0 L_loader")
    a("s_cmp_lg_u32 s%d, 0" % S_WIN)
    a("s_cbranch_scc1 L_qser")
    tile_loads(SRD_Q, S_QOFF, S_QLDS, False, False, qf)
    a.label("L_noq")
    stamp(5, early=True)
    a("s_sub_u32 s%d, s%d, 1" % (S_NF, S_NKB))
    a("s_mov_b32 s%d, s%d" % (SRD_KV + 2, S_NREC))

    def k_addrs(s_base):
        a("v_add_u32 v%d, s%d, v%d" % (V_KB[0], s_base, V_KA0))
        for j in range(1, 4):
            a("v_xor_b32 v%d, %d, v%d" % (V_KB[j], 32 * j, V_KB[0]))

    def k_reads(dst):
        for ks in range(12):
            a("ds_read_b128 %s, v%d offset:%d" % (vr(dst + 4 * ks, 4), V_KB[ks & 3], (ks >> 2) * 4096))

    def qk_plain(S):
        for ks in range(12):
            a("s_waitcnt lgkmcnt(%d)" % (11 - ks))
            a("v_mfma_f32_32x32x16_bf16 %s, %s, %s, %s" % (
                vr(S, 16), vr(POOL + 4 * ks, 4), vr(V_Q + 4 * ks, 4), "0" if ks == 0 else vr(S, 16)))

    def block_max(S, mx, t2):
        a("v_max3_f32 v%d, v%d, v%d, v%d" % (mx, S, S + 1, S + 2))
        a("v_max3_f32 v%d, v%d, v%d, v%d" % (t2, S + 3, S + 4, S + 5))
        a("v_max3_f32 v%d, v%d, v%d, v%d" % (mx, mx, S + 6, S + 7))
        a("v_max3_f32 v%d, v%d, v%d, v%d" % (t2, t2, S + 8, S + 9))
        a("v_max3_f32 v%d, v%d, v%d, v%d" % (mx, mx, S + 10, S + 11))
        a("v_max3_f32 v%d, v%d, v%d, v%d" % (t2, t2, S + 12, S + 13))
        a("v_max3_f32 v%d, v%d, v%d, v%d" % (mx, mx, S + 14, S + 15))
        a("v_max_f32 v%d, v%d, v%d" % (mx, mx, t2))
        a("v_mov_b32 v%d, v%d" % (t2, mx))
        a("s_nop 1")
        a("v_permlane32_swap_b32 v%d, v%d" % (t2, mx))
        a("s_nop 0")
        a("v_max_f32 v%d, v%d, v%d" % (mx, mx, t2))

    r, h, f, h4 = V_T[0], V_T[1], V_T[2], V_T[7]
    a("v_and_b32 v%d, 31, v%d" % (r, V_LANE))
    a("v_lshrrev_b32 v%d, 5, v%d" % (h, V_LANE))
    a("v_lshlrev_b32 v%d, 2, v%d" % (h4, h))
    a("v_bfe_u32 v%d, v%d, 1, 3" % (f, r))
    a("v_xor_b32 v%d, v%d, v%d" % (f, f, h))
    a("v_lshlrev_b32 v%d, 4, v%d" % (f, f))
    a("v_lshl_add_u32 v%d, v%d, 7, v%d" % (V_KA0, r, f))
    rr, c, dh, b = V_T[3], V_T[4], V_T[5], V_T[6]
    a("v_bfe_u32 v%d, v%d, 2, 2" % (rr, V_LANE))
    a("v_and_b32 v%d, 3, v%d" % (c, V_LANE))
    a("v_bfe_u32 v%d, v%d, 4, 1" % (dh, V_LANE))
    a("v_bfe_u32 v%d, v%d, 3, 1" % (b, V_LANE))
    a("v_add_u32 v%d, v%d, v%d" % (rr, rr, h4))
    a("v_lshlrev_b32 v%d, 7, v%d" % (V_VA0, rr))
    a("v_lshl_add_u32 v%d, v%d, 6, v%d" % (V_VA0, b, V_VA0))
    a("v_lshl_add_u32 v%d, v%d, 5, v%d" % (V_VA0, dh, V_VA0))
    a("v_lshl_add_u32 v%d, v%d, 3, v%d" % (V_VA0, c, V_VA0))
    for i in range(96):
        a("v_mov_b32 v%d, 0" % (V_O + i))
    a("v_mov_b32 v%d, 0" % V_L)
    a("v_mov_b32 v%d, 0" % V_L2)
    a("s_mov_b32 s%d, s%d" % (SRD_O + 2, S_NREC))
    a("s_mov_b32 s%d, s%d" % (SRD_O, S_OUT))
    a("s_mov_b32 s%d, s%d" % (SRD_O + 1, S_OUT + 1))
    a("s_lshr_b32 s%d, s%d, 1" % (S_J, S_NKB))
    k_addrs(S_QLDS)
    stamp(7, early=True)
    a("s_waitcnt vmcnt(0)")
    stamp(6, early=True)
    k_reads(V_Q)
    k_addrs(S_K0)
    a("s_waitcnt lgkmcnt(0)")
    a("s_barrier")
    stamp(4)
    k_reads(POOL)
    a("s_bitcmp1_b32 s%d, 5" % S_FL)
    a("s_cbranch_scc1 L_duty_path")

    stubs = []

    def sm_seq(par):
        S = V_S[par]
        tm = V_T
        out = []

        def fma(k):
            return ("v_fma_f32 v%d, v%d, s%d, v%d" % (tm[k % 8], S + k, S_C, V_NMC), 1, k // 8, 0)

        def ex(k):
            return ("v_exp_f32 v%d, v%d" % (tm[k % 8], tm[k % 8]), EXPC, k // 8, 0)

        def cvt(p):
            return ("v_cvt_pk_bf16_f32 v%d, v%d, v%d" % (V_P + p, tm[(2 * p) % 8], tm[(2 * p + 1) % 8]), 1, p // 4,
                    17 if p < 4 else 23)

        def add(k):
            lr = V_L2 if k & 1 else V_L
            return ("v_add_f32 v%d, v%d, v%d" % (lr, lr, tm[k % 8]), 1, k // 8, 0)
        for hf in range(2):
            o = 8 * hf
            p = 4 * hf
            out += [fma(o), fma(o + 1), ex(o), fma(o + 2), ex(o + 1), fma(o + 3), ex(o + 2), add(o), fma(o + 4),
                    ex(o + 3), add(o + 1), fma(o + 5), ex(o + 4), cvt(p), add(o + 2), fma(o + 6), ex(o + 5), cvt(p + 1),
                    add(o + 3), fma(o + 7), ex(o + 6), add(o + 4), ex(o + 7), cvt(p + 2), add(o + 5), add(o + 6),
                    cvt(p + 3), add(o + 7)]
        return out

    def schedule(par, duty):
        BG = BGD if duty else BGN
        gaps = {g: [] for g in range(BG, BG + 26)}
        load = {g: 0.0 for g in range(24)}
        load[BG % 24] += 2
        load[(BG - 2) % 24] += 3
        load[(BG - 1) % 24] += 6
        load[23] += 1.5

        def put(it, g):
            gaps[g].append(it)
            load[g % 24] += it.cost
        kg = []
        g = BG
        for i in range(12):
            g = max(g, 12 + i)
            while kg.count(g) >= (2 if g < BG + KD else 1):
                g += 1
            kg.append(g)
            put(Item("ds_read_b128 %s, v%d offset:%d" % (vr(POOL + 4 * i, 4), V_KB[i & 3], (i >> 2) * 4096),
                     LDSC, 0, "K", ("F", i)), g)
            assert g <= 23
        for idx in range(12):
            s, t = divmod(idx, 6)
            for u in range(2):
                put(Item("ds_read_b64_tr_b16 %s, v%d offset:%d" % (
                    vr(POOL + 4 * idx + 2 * u, 2), V_VB[t & 1], HB + (16 * s + 8 * u) * 128 + (t >> 1) * 4096),
                    LDSC, 0, "V%d" % s, ("F", idx)), 24 + idx)
        e, l = max(SM0, BG), SM1
        its = [Item(txt, cost, max(mg, 24 if (hf and txt.startswith(("v_add", "v_cvt"))) else 0), "sm", half=hf)
               for txt, cost, hf, mg in sm_seq(par)]
        tot = sum(v.cost for v in its) + sum(load[g % 24] for g in range(e, l + 1))
        target = tot / (l - e + 1)
        g = e
        exc = 0.0
        for it in its:
            while g < l and (load[g % 24] + it.cost / 2.0 > target + exc or g < it.early):
                exc += target - load[g % 24]
                g += 1
            put(it, g)
        order = ORDERD if duty else ORDER
        if order == 1:
            for g in gaps:
                gaps[g] = [x for x in gaps[g] if x.writes is None] + [x for x in gaps[g] if x.writes is not None]
        elif order == 2:
            for g in gaps:
                x1 = [x for x in gaps[g] if x.writes is not None]
                x2 = [x for x in gaps[g] if x.writes is None]
                o = []
                while x1 or x2:
                    if x1:
                        o.append(x1.pop(0))
                    if x2:
                        o.append(x2.pop(0))
                gaps[g] = o
        return gaps, load

    def mfma_for(slot, par):
        if slot < 12:
            Sn = V_S[par ^ 1]
            txt = "v_mfma_f32_32x32x16_bf16 %s, %s, %s, %s" % (
                vr(Sn, 16), vr(POOL + 4 * slot, 4), vr(V_Q + 4 * slot, 4), "0" if slot == 0 else vr(Sn, 16))
            return txt, ("F", slot)
        idx = slot - 12
        s, t = divmod(idx, 6)
        txt = "v_mfma_f32_32x32x16_bf16 %s, %s, %s, %s" % (
            vr(V_O + 16 * t, 16), vr(POOL + 4 * idx, 4), vr(V_P + 4 * s, 4), vr(V_O + 16 * t, 16))
        return txt, ("F", idx)

    def emit_lines(lines):
        for ln in lines:
            if ln == "DUTYLD":
                stub, back = a.newlabel("dl"), a.newlabel("dlb")
                a("s_cmp_lt_u32 s%d, s%d" % (S_LN, S_NKB))
                a("s_cbranch_scc1 %s" % stub)
                a.label(back)
                stubs.append((stub, "L_dutyld", back))
            elif ln == "DUTYWAIT":
                a("s_add_u32 s%d, s%d, 1" % (S_NEED, S_NEED))
                wait_cascade(3)
            elif ln == "MASKHI":
                stub, back = a.newlabel("mk"), a.newlabel("mkb")
                a("s_cmp_lg_u32 s%d, 32" % S_NVAL)
                a("s_cbranch_scc1 %s" % stub)
                a.label(back)
                stubs.append((stub, "L_mask", back))
            else:
                a(ln)

    def skip_item(it):
        return ("L" in abl and it.writes is not None) or ("S" in abl and it.kind == "sm")

    def emit_stream(seq, outstanding):
        issued = list(outstanding)
        done = 0
        for idx, e in enumerate(seq):
            if e[0] == "m":
                frag = e[2]
                need = max([k for k, fr in enumerate(issued) if fr == frag], default=-1) + 1
                if need > done:
                    tgt = need
                    cnt = 0
                    for e2 in seq[idx + 1:]:
                        if e2[0] == "m":
                            n2 = max([k for k, fr in enumerate(issued) if fr == e2[2]], default=-1) + 1
                            if n2 > tgt and n2 <= len(issued) - 6 and cnt < 5:
                                tgt = n2
                                cnt += 1
                            else:
                                break
                    n = len(issued) - tgt
                    a("s_waitcnt lgkmcnt(%d)" % min(15, n))
                    done = len(issued) - min(15, n)
                a(e[1])
            elif e[0] == "i":
                it = e[1]
                if skip_item(it):
                    continue
                emit_lines(it.lines)
                if it.writes is not None:
                    issued.append(it.writes)
            elif e[0] == "bar":
                a("s_waitcnt lgkmcnt(0)")
                a("s_barrier")
                issued, done = [], 0
            elif e[0] == "raw":
                emit_lines([e[1]])
            elif e[0] == "label":
                a.label(e[1])

    def addr_lines():
        return (["v_add_u32 v%d, s%d, v%d" % (V_KB[0], S_SLOT, V_KA0), "v_add_u32 v%d, s%d, v%d" % (V_VB[0], S_SLOT, V_VA0)] +
                ["v_xor_b32 v%d, %d, v%d" % (V_KB[j], 32 * j, V_KB[0]) for j in range(1, 4)] +
                ["v_xor_b32 v%d, 64, v%d" % (V_VB[1], V_VB[0])])

    def epi_pre():
        q, hh = V_T[1], V_T[2]
        return [
            "v_add_f32 v%d, v%d, v%d" % (V_L, V_L, V_L2),
            "s_add_u32 s%d, s%d, s%d" % (S_SCRB, S_SLOT, S_SCR),
            "v_exp_f32 v%d, v%d" % (V_T[5], V_NMC),
            "v_mov_b32 v%d, v%d" % (V_T[0], V_L),
            "s_sub_u32 s%d, s%d, %d" % (S_TMP2, S_SCRB, RING),
            "s_cselect_b32 s%d, s%d, s%d" % (S_SCRB, S_SCRB, S_TMP2),
            "v_and_b32 v%d, 31, v%d" % (q, V_LANE),
            "v_permlane32_swap_b32 v%d, v%d" % (V_T[0], V_L),
            "v_lshrrev_b32 v%d, 5, v%d" % (hh, V_LANE),
            "v_add_f32 v%d, v%d, v%d" % (V_L, V_L, V_T[0]),
            "v_mul_f32 v%d, s%d, v%d" % (V_T[5], S_CORR, V_T[5]),
            "v_lshlrev_b32 v%d, 7, v%d" % (V_T[3], q),
            "v_and_b32 v%d, 7, v%d" % (q, q),
            "v_fma_f32 v%d, v%d, s%d, v%d" % (V_T[6], V_T[5], S_NEG, V_L),
            "v_add_f32 v%d, v%d, v%d" % (V_L, V_L, V_T[5]),
            "v_lshl_add_u32 v%d, v%d, 4, v%d" % (V_T[3], q, V_T[3]),
            "v_cmp_nge_f32 vcc, s%d, v%d" % (S_LMAX, V_T[6]),
            "v_rcp_f32 v%d, v%d" % (V_L, V_L),
            "v_lshl_add_u32 v%d, v%d, 3, v%d" % (V_T[3], hh, V_T[3]),
            "v_add_u32 v%d, s%d, v%d" % (EA, S_SCRB, V_T[3]),
            "v_mov_b32 v%d, v%d" % (V_M, V_L),
        ] + ["v_xor_b32 v%d, %d, v%d" % (EA + c, 16 * c, EA) for c in range(1, 8)] + [
            "v_lshlrev_b32 v%d, 4, v%d" % (V_T[4], V_LANE),
            "v_lshrrev_b32 v%d, 3, v%d" % (V_T[0], V_LANE),
            "v_and_b32 v%d, 7, v%d" % (V_T[1], V_LANE),
            "v_add_u32 v%d, s%d, v%d" % (EA + 8, S_SCRB, V_T[4]),
            "v_xor_b32 v%d, v%d, v%d" % (V_T[1], V_T[1], V_T[0]),
            "v_mul_u32_u24 v%d, %d, v%d" % (V_T[0], RS, V_T[0]),
            "v_lshl_add_u32 v%d, v%d, 4, v%d" % (V_T[0], V_T[1], V_T[0]),
            "v_add_u32 v%d, s%d, v%d" % (EA + 9, S_QOFF, V_T[0]),
        ] + ["v_add_u32 v%d, %d, v%d" % (EA + 9 + rg, rg * 8 * RS, EA + 9) for rg in range(1, 4)]
    S_NEG = S_SPARE

    def last_mfmas(first_slot):
        seq = []
        pre = epi_pre()
        per = (len(pre) + 5) // 6
        for t in range(6):
            txt, frag = mfma_for(first_slot + t, 0)
            seq.append(("m", txt, frag))
            for x in pre[per * t: per * (t + 1)]:
                seq.append(("raw", x))
        return seq

    def compute_path(duty):
        sfx = "d" if duty else "n"
        BG = BGD if duty else BGN
        scheds = [schedule(0, duty), schedule(1, duty)]
        sys.stderr.write("gap loads (%s): %s\n" % (sfx, " ".join("%.0f" % scheds[0][1][g] for g in range(24))))

        def next_items(par):
            return [it for g in range(BG, 24) for it in scheds[par][0][g]]

        def nfr(par):
            return [it.writes for it in next_items(par) if it.writes is not None and not skip_item(it)]

        def body(par):
            cur, nxt = scheds[par][0], scheds[par ^ 1][0]
            seq = []
            for slot in range(24):
                txt, frag = mfma_for(slot, par)
                seq.append(("m", txt, frag))
                for it in cur.get(slot + 24, []):
                    seq.append(("i", it))
                if slot == BG - 2:
                    seq += [("raw", "s_add_u32 s%d, s%d, s%d" % (S_SLOT, S_SLOT, S_STEP)),
                            ("raw", "s_sub_u32 s%d, s%d, %d" % (S_TMP3, S_SLOT, RING)),
                            ("raw", "s_cselect_b32 s%d, s%d, s%d" % (S_SLOT, S_SLOT, S_TMP3))]
                if slot == BG - 1:
                    seq += [("raw", x) for x in addr_lines()]
                if slot == BG:
                    seq.append(("bar",))
                if slot >= BG:
                    for it in nxt.get(slot, []):
                        seq.append(("i", it))
            return seq

        def prologue(par):
            qk_plain(V_S[par])
            for x in addr_lines():
                a(x)
            a("s_mov_b32 s%d, 0x%x" % (S_NEG, f32(-LMAX / 64)))
            a("s_barrier")
            items = next_items(par)
            kre = [it for it in items if it.kind == "K"]
            oth = [it for it in items if it.kind != "K"]
            emit_stream([("i", it) for it in kre], [])
            block_max(V_S[par], V_M, V_T[1])
            a("v_mul_f32 v%d, s%d, v%d" % (V_NMC, S_C, V_M))
            a("v_sub_f32 v%d, 0, v%d" % (V_NMC, V_NMC))
            emit_stream([("i", it) for it in oth], [])

        a("s_bitcmp1_b32 s%d, 4" % S_FL)
        a("s_cbranch_scc1 L_pro1_" + sfx)
        prologue(0)
        a("s_branch L_loop_" + sfx)
        a.label("L_pro1_" + sfx)
        prologue(1)
        a("s_branch L_mid_" + sfx)
        a.lines.append(".p2align 6")
        for _ in range(APADD if duty else APAD):
            a("s_nop 0")
        a.label("L_loop_" + sfx)
        a("; ALIGN8_BEGIN")
        emit_stream(body(0), nfr(0))
        a.label("L_mid_" + sfx)
        b1 = body(1)
        pos = max(i for i, e in enumerate(b1) if e[0] == "m")
        b1 = b1[:pos + 1] + [("raw", "s_sub_u32 s%d, s%d, 1" % (S_J, S_J)), ("raw", "s_cmp_lg_u32 s%d, 0" % S_J)] + b1[pos + 1:]
        emit_stream(b1, nfr(1))
        a("s_cbranch_scc1 L_loop_" + sfx)
        a("; ALIGN8_END")
        cur = scheds[0][0]
        rest = [it for g in range(24, BG + 26) for it in cur[g]]
        assert all(it.half != 1 or it.lines[0].startswith(("v_fma", "v_exp")) for it in next_items(0))
        v0 = [it for it in rest if it.kind == "V0"]
        v1 = [it for it in rest if it.kind == "V1"]
        h0 = [it for it in rest if it.kind == "sm" and it.half == 0]
        h1 = [it for it in rest if it.kind == "sm" and it.half == 1]
        seq = []
        k = 0
        for it in v0:
            seq.append(("i", it))
            if k < len(h0):
                seq.append(("i", h0[k]))
                k += 1
        for it in h0[k:]:
            seq.append(("i", it))
        seq.append(("raw", "s_cmp_gt_u32 s%d, 16" % S_NVAL))
        seq.append(("raw", "s_cbranch_scc1 L_long_" + sfx))
        pref = list(seq)
        emit_stream(seq + last_mfmas(12) + [("raw", "s_branch L_epi")], nfr(0))
        a.label("L_long_" + sfx)
        seq = []
        k = 0
        per = (len(h1) + 5) // 6
        for t in range(6):
            txt, frag = mfma_for(12 + t, 0)
            seq.append(("m", txt, frag))
            for it in v1[2 * t:2 * t + 2]:
                seq.append(("i", it))
            for it in h1[k:k + per]:
                seq.append(("i", it))
            k += per
        seq.append(("raw", "s_nop 0"))
        outst = nfr(0) + [e[1].writes for e in pref if e[0] == "i" and e[1].writes is not None and not skip_item(e[1])]
        emit_stream(seq + last_mfmas(18) + ([] if not duty else [("raw", "s_branch L_epi")]), outst)

    compute_path(False)

    a.label("L_epi")
    stamp(5)
    if forcesolo:
        a("s_mov_b64 vcc, -1")
    a("s_cbranch_vccnz L_solo")
    a.label("L_epi2")

    def conv(c):
        t, g = divmod(c, 4)
        o = V_O + 16 * t + 4 * g
        d = V_P + 2 * (c % 4)
        a("v_pk_mul_f32 %s, %s, %s" % (vr(o, 2), vr(o, 2), vr(V_L, 2)))
        a("v_pk_mul_f32 %s, %s, %s" % (vr(o + 2, 2), vr(o + 2, 2), vr(V_L, 2)))
        a("v_cvt_pk_bf16_f32 v%d, v%d, v%d" % (d, o, o + 1))
        a("v_cvt_pk_bf16_f32 v%d, v%d, v%d" % (d + 1, o + 2, o + 3))
        a("ds_write_b64 v%d, %s offset:%d" % (EA + (c & 7), vr(d, 2), (c >> 3) * 4096))

    RB = V_S[0]
    for lc in range(3):
        for c in range(8 * lc, 8 * lc + 8):
            conv(c)
            if lc > 0 and c == 8 * lc + 2:
                for rg in range(4):
                    a("s_waitcnt lgkmcnt(%d)" % (3 + 3 - rg))
                    a("buffer_store_dwordx4 %s, v%d, %s, 0 offen offset:%d %s" % (
                        vr(RB + 16 * ((lc - 1) & 1) + 4 * rg, 4), EA + 9 + rg, sr(SRD_O, 4), (lc - 1) * 128, stf))
        for rg in range(4):
            a("ds_read_b128 %s, v%d offset:%d" % (vr(RB + 16 * (lc & 1) + 4 * rg, 4), EA + 8, lc * 4096 + rg * 1024))
    stamp(6)
    for rg in range(4):
        a("s_waitcnt lgkmcnt(%d)" % (3 - rg))
        a("buffer_store_dwordx4 %s, v%d, %s, 0 offen offset:%d %s" % (
            vr(RB + 4 * rg, 4), EA + 9 + rg, sr(SRD_O, 4), 2 * 128, stf))
    stamp_flush()
    a("s_endpgm")

    def blk_load(isv, first=False):
        sn, soff, sdst, srd = (S_VN, S_VOFF, S_VDST, SRD_V) if isv else (S_KN, S_KOFF, S_KDST, SRD_K)
        skip, half = a.newlabel("bl"), a.newlabel("blh")
        a("s_cmp_ge_u32 s%d, s%d" % (sn, S_NKB))
        a("s_cbranch_scc1 %s" % skip)
        for rg in range(4):
            if rg == 2:
                a("s_add_u32 s%d, s%d, 6" % (S_CNT, S_CNT))
                a("s_bitcmp1_b32 s%d, 6" % S_FL)
                a("s_cbranch_scc0 %s" % half)
            a("s_add_u32 s%d, s%d, %d" % (S_TMP, soff, rg * 8 * RS))
            for lc in range(3):
                a("s_add_u32 m0, s%d, %d" % (sdst, rg * 1024 + lc * 4096 - lc * 128))
                a("s_nop 0")
                a("buffer_load_dwordx4 v%d, %s, s%d offen offset:%d %s lds" % (
                    7 if isv else 5 + (rg & 1), sr(srd, 4), S_TMP, lc * 128, kvf))
        a("s_add_u32 s%d, s%d, 6" % (S_CNT, S_CNT))
        a.label(half)
        a("s_add_u32 s%d, s%d, 1" % (sn, sn))
        a("s_add_u32 s%d, s%d, %d" % (soff, soff, 32 * RS))
        a("s_add_u32 s%d, s%d, s%d" % (sdst, sdst, S_STEP))
        a("s_sub_u32 s%d, s%d, %d" % (S_TMP2, sdst, RING))
        a("s_cselect_b32 s%d, s%d, s%d" % (sdst, sdst, S_TMP2))
        a.label(skip)

    def stage_load_wait():
        done = a.newlabel("sw")
        a("s_mov_b32 s%d, 0" % S_CNT)
        blk_load(False)
        blk_load(True)
        for v in (24, 12, 6):
            a("s_waitcnt vmcnt(%d)" % v)
            a("s_cmp_ge_u32 s%d, %d" % (S_CNT, v))
            a("s_cbranch_scc1 %s" % done)
        a("s_waitcnt vmcnt(0)")
        a.label(done)

    a.label("L_loader")
    a("s_cmp_eq_u32 s%d, 0" % S_WIN)
    a("s_cbranch_scc1 L_ld_go")
    a("s_barrier")
    a.label("L_ld_go")
    a("s_bitcmp1_b32 s%d, 0" % S_FL)
    a("s_cbranch_scc0 L_idle")
    a("s_mov_b32 s%d, s%d" % (SRD_K, S_K))
    a("s_mov_b32 s%d, s%d" % (SRD_K + 1, S_K + 1))
    a("s_mov_b32 s%d, s%d" % (SRD_K + 2, S_NREC))
    a("s_mov_b32 s%d, s%d" % (SRD_V, S_V))
    a("s_mov_b32 s%d, s%d" % (SRD_V + 1, S_V + 1))
    a("s_mov_b32 s%d, s%d" % (SRD_V + 2, S_NREC))
    a("s_add_u32 s%d, s%d, s%d" % (S_KOFF, S_GOFF, S_XB))
    a("s_mov_b32 s%d, s%d" % (S_VOFF, S_KOFF))
    a("s_bitcmp1_b32 s%d, 2" % S_FL)
    a("s_cselect_b32 s%d, 0, 99" % S_KN)
    a("s_bitcmp1_b32 s%d, 3" % S_FL)
    a("s_cselect_b32 s%d, 0, 99" % S_VN)
    stamp(5, early=True)
    blk_load(False)
    if VDELAY:
        a("s_waitcnt vmcnt(%d)" % (VDELAY - 1))
    a("s_mov_b32 s%d, -1" % S_J)
    if stamps:
        a("v_mov_b32 v90, 0")
    a.label("L_ld_loop")
    stage_load_wait()
    if stamps:
        a("s_memtime s[88:89]")
        a("s_waitcnt lgkmcnt(0)")
        a("s_add_u32 m0, s%d, 33" % S_J)
        a("s_nop 0")
        a("v_writelane_b32 v90, s88, m0")
    a("s_barrier")
    if stamps:
        lab = a.newlabel("st")
        a("s_memtime s[88:89]")
        a("s_memrealtime s[94:95]")
        a("s_waitcnt lgkmcnt(0)")
        a("s_cmp_lt_i32 s%d, 0" % S_J)
        a("s_cselect_b32 s%d, s88, s%d" % (S_ST + 8, S_ST + 8))
        a("s_cselect_b32 s%d, s89, s%d" % (S_ST + 9, S_ST + 9))
        a("s_cbranch_scc1 %s" % lab)
        a("s_mov_b32 m0, s%d" % S_J)
        a("s_nop 0")
        a("v_writelane_b32 v90, s88, m0")
        a("s_add_u32 m0, s%d, 16" % S_J)
        a("s_nop 0")
        a("v_writelane_b32 v90, s94, m0")
        a.label(lab)
    a("s_add_u32 s%d, s%d, 1" % (S_J, S_J))
    a("s_cmp_lt_u32 s%d, s%d" % (S_J, S_NKB))
    a("s_cbranch_scc1 L_ld_loop")
    stamp(5)
    stamp(6)
    stamp_flush(True)
    a.label("L_end")
    a("s_endpgm")
    a.label("L_idle")
    a("s_add_u32 s%d, s%d, 1" % (S_J, S_NKB))
    a.label("L_idle_loop")
    a("s_barrier")
    a("s_sub_u32 s%d, s%d, 1" % (S_J, S_J))
    a("s_cmp_lg_u32 s%d, 0" % S_J)
    a("s_cbranch_scc1 L_idle_loop")
    a("s_endpgm")
    a.label("L_qser")
    tile_loads(SRD_Q, S_QOFF, S_QLDS, False, True, qf)
    a("s_branch L_noq")

    a.label("L_duty_path")
    compute_path(True)

    for stub, target, back in stubs:
        a.label(stub)
        a("s_call_b64 %s, %s" % (sr(S_RET, 2), target))
        a("s_branch %s" % back)

    def mask_code(S, lo):
        a("v_lshrrev_b32 v%d, 5, v%d" % (V_DE, V_LANE))
        a("v_lshlrev_b32 v%d, 2, v%d" % (V_DE, V_DE))
        a("v_mov_b32 v%d, 0xff800000" % V_DO)
        for g in range(lo, 4):
            for i in range(4):
                a("s_sub_u32 s%d, s%d, %d" % (S_TMP2, S_NVAL, 8 * g + i))
                a("v_cmp_gt_i32 vcc, s%d, v%d" % (S_TMP2, V_DE))
                a("s_nop 1")
                a("v_cndmask_b32 v%d, v%d, v%d, vcc" % (S + 4 * g + i, V_DO, S + 4 * g + i))

    a.label("L_solo")
    a("s_cmp_lg_u32 s%d, 0" % S_SOLO)
    a("s_cbranch_scc1 L_epi2")
    a("s_mov_b32 s%d, 1" % S_SOLO)
    a("s_nop 15")
    dma_patterns()
    a("v_mov_b32 v%d, v5" % (V_P + 5))
    a("v_mov_b32 v%d, v6" % (V_P + 6))
    a("v_mov_b32 v%d, v7" % (V_P + 7))
    tile_loads(SRD_Q, S_QOFF, S_SCRB, False)
    k_addrs(S_SCRB)
    a("v_add_u32 v%d, s%d, v%d" % (V_VB[0], S_SCRB, V_VA0))
    a("v_xor_b32 v%d, 64, v%d" % (V_VB[1], V_VB[0]))
    for i in range(96):
        a("v_mov_b32 v%d, 0" % (V_O + i))
    a("v_mov_b32 v%d, 0" % V_L)
    a("v_mov_b32 v%d, 0" % V_L2)
    a("v_mov_b32 v%d, 0xff800000" % V_M)
    a("s_waitcnt vmcnt(0)")
    k_reads(V_Q)
    a("s_waitcnt lgkmcnt(0)")
    a("s_mov_b32 s%d, 0" % S_J)
    a("s_add_u32 s%d, s%d, s%d" % (S_GOFF, S_GB, S_XB))
    a("s_mov_b32 s%d, 0" % S_CORR)
    S = V_S[0]
    PAT = V_S[1]
    a("v_mov_b32 v%d, v5" % PAT)
    a("v_mov_b32 v%d, v6" % (PAT + 1))
    a("v_mov_b32 v%d, v7" % (PAT + 2))
    a.label("L_solo_loop")
    a("v_mov_b32 v5, v%d" % PAT)
    a("v_mov_b32 v6, v%d" % (PAT + 1))
    a("s_mov_b32 s%d, s%d" % (SRD_KV, S_K))
    a("s_mov_b32 s%d, s%d" % (SRD_KV + 1, S_K + 1))
    tile_loads(SRD_KV, S_GOFF, S_SCRB, False)
    a("s_waitcnt vmcnt(0)")
    k_reads(POOL)
    qk_plain(S)
    a("v_mov_b32 v7, v%d" % (PAT + 2))
    a("s_mov_b32 s%d, s%d" % (SRD_KV, S_V))
    a("s_mov_b32 s%d, s%d" % (SRD_KV + 1, S_V + 1))
    tile_loads(SRD_KV, S_GOFF, S_SCRB, True)
    a("s_cmp_lg_u32 s%d, s%d" % (S_J, S_NF))
    a("s_cbranch_scc1 L_solo_nm")
    mask_code(S, 0)
    a.label("L_solo_nm")
    mx, t2 = V_T[0], V_T[1]
    block_max(S, mx, t2)
    a("v_max_f32 v%d, v%d, v%d" % (mx, mx, V_M))
    a("v_sub_f32 v%d, v%d, v%d" % (t2, V_M, mx))
    a("v_mul_f32 v%d, s%d, v%d" % (t2, S_C, t2))
    a("v_exp_f32 v%d, v%d" % (t2, t2))
    a("v_mov_b32 v%d, v%d" % (V_M, mx))
    a("v_mul_f32 v%d, s%d, v%d" % (V_NMC, S_C, mx))
    a("v_sub_f32 v%d, 0, v%d" % (V_NMC, V_NMC))
    a("v_mul_f32 v%d, v%d, v%d" % (V_L, V_L, t2))
    for i in range(96):
        a("v_mul_f32 v%d, v%d, v%d" % (V_O + i, V_O + i, t2))
    for hf in range(2):
        for k in range(8):
            a("v_fma_f32 v%d, v%d, s%d, v%d" % (V_T[k], S + 8 * hf + k, S_C, V_NMC))
        for k in range(8):
            a("v_exp_f32 v%d, v%d" % (V_T[k], V_T[k]))
        a("s_nop 0")
        for p in range(4):
            a("v_cvt_pk_bf16_f32 v%d, v%d, v%d" % (V_P + 4 * hf + p, V_T[2 * p], V_T[2 * p + 1]))
        for k in range(8):
            a("v_add_f32 v%d, v%d, v%d" % (V_L, V_L, V_T[k]))
    a("s_waitcnt vmcnt(0)")
    for idx in range(12):
        s, t = divmod(idx, 6)
        for u in range(2):
            a("ds_read_b64_tr_b16 %s, v%d offset:%d" % (
                vr(POOL + 4 * idx + 2 * u, 2), V_VB[t & 1], (16 * s + 8 * u) * 128 + (t >> 1) * 4096))
    a("s_waitcnt lgkmcnt(0)")
    for idx in range(12):
        a(mfma_for(12 + idx, 0)[0])
    a("s_add_u32 s%d, s%d, %d" % (S_GOFF, S_GOFF, 32 * RS))
    a("s_add_u32 s%d, s%d, 1" % (S_J, S_J))
    a("s_cmp_lt_u32 s%d, s%d" % (S_J, S_NKB))
    a("s_cbranch_scc1 L_solo_loop")
    a("v_min_f32 v%d, 0, v%d" % (V_NMC, V_NMC))
    for x in epi_pre():
        a(x)
    a("s_branch L_epi2")

    a.lines.append(".p2align 6")
    a.lines.append(".type L_table,@object")
    a.label("L_table")
    for d in TABLE:
        a(".long " + ", ".join("0x%x" % x for x in d))
    a.lines.append(".size L_table, %d" % (64 * len(TABLE)))

    hdr = open("cdna_kernels/%s.s.ref" % NAME).read().split("\n")
    out = []
    for ln in hdr:
        if ln.startswith("; @launch"):
            out.append("; @launch grid=(256,1,1) block=(512,1,1) lds=%d" % LDS_TOTAL)
        elif ln.startswith(";"):
            out.append(ln)
        else:
            break
    out += ['.amdgcn_target "amdgcn-amd-amdhsa--gfx950"', ".text", ".globl %s_kernel" % NAME, ".p2align 8",
            ".type %s_kernel,@function" % NAME]
    out += a.lines
    out += ['.section .rodata,"a"', ".p2align 6", ".amdhsa_kernel %s_kernel" % NAME,
            "  .amdhsa_next_free_vgpr 256", "  .amdhsa_next_free_sgpr 96", "  .amdhsa_accum_offset 256",
            "  .amdhsa_group_segment_fixed_size 0", "  .amdhsa_kernarg_size 56", "  .amdhsa_user_sgpr_count 2",
            "  .amdhsa_user_sgpr_kernarg_segment_ptr 1", "  .amdhsa_system_sgpr_workgroup_id_x 1",
            ".end_amdhsa_kernel", ""]
    text = "\n".join(out)
    if A8:
        import align8
        text = align8.process(text)
    return text


def parse_plan(s):
    out = []
    for (seq, parts, _), x in zip(DEFAULT_PLAN, s.split(",")):
        out.append((seq, parts, int(x)))
    return out


if __name__ == "__main__":
    dst = sys.argv[1] if len(sys.argv) > 1 and not sys.argv[1].startswith("--") else "cdna_kernels/%s.s" % NAME
    kw = {}
    for x in sys.argv[1:]:
        if x.startswith("--"):
            k, _, v = x[2:].partition("=")
            if k == "plan":
                kw[k] = parse_plan(v)
            elif k in ("qf", "kvf", "stf", "abl"):
                kw[k] = v.replace("+", " ")
            elif k in ("EXPC", "LDSC"):
                kw[k] = float(v)
            else:
                kw[k] = int(v) if v else 1
    open(dst, "w").write(gen(**kw))
    print("wrote", dst)
```

```python
import math
import struct
import sys

NAME = "standalone__varlen_attn_packed__ragged"
CU = [0, 238, 376, 669, 835, 1320, 1545, 1865, 2058]
T, H, D = 2058, 16, 192
RS = H * D * 2
HB = 12288
BLK = 2 * HB
NSLOT = 6
LDS_TOTAL = 163840
CSCALE = (D ** -0.5) * math.log2(math.e)
THR = 1024.0


def f32(x):
    return struct.unpack("<I", struct.pack("<f", x))[0]


RING = NSLOT * BLK
NKB = [(CU[i + 1] - CU[i] + 31) // 32 for i in range(8)]

DEFAULT_PLAN = [(4, [4, 4, 4, 4], 0, 1, 0), (7, [7], 0, 1, 0), (3, [6], 1, 1, 0),
                (6, [4, 4, 2], 1, 1, 0), (2, [4, 4, 2], 1, 1, 0), (1, [5], 2, 1, 0), (0, [4, 4], 2, 1, 0),
                (5, [4, 4], 2, 1, 0)]


def make_wgs(plan):
    wgs = []
    for seq, parts, win, npre, rot in plan:
        nf = NKB[seq] - 1
        t0 = 0
        assert sum(parts) == NKB[seq]
        for r, nt in enumerate(parts):
            rr = ((r * nf) // len(parts)) if rot else 0
            if nt == 2:
                wgs.append(dict(seq=seq, t0=t0, nt=4, dual=True, hb=0, rot=rr, win=win, npre=min(npre, 1)))
            else:
                for hb in range(2):
                    wgs.append(dict(seq=seq, t0=t0, nt=nt, dual=False, hb=hb, rot=rr, win=win,
                                    npre=min(npre, 5 - (nt - 1) // 2)))
            t0 += nt
    assert len(wgs) == 32, len(wgs)
    return wgs


def prefetch_list(spec):
    items = []
    for ten, seq, b0, b1 in spec:
        for b in range(b0, b1 + 1):
            for rg in range(4):
                row = CU[seq] + 32 * b + 8 * rg
                if row < CU[seq + 1]:
                    items.append((ten, row))
    return items


def default_pf():
    spec = []
    for b in range(0, 6):
        spec += [("K", 4, b + 1, b + 1), ("V", 4, b, b)]
        if b < 3:
            spec += [("K", 7, b + 1, b + 1), ("V", 7, b, b)]
    return spec


def wave_desc(wg, w, pf):
    seq, nt, dual = wg["seq"], wg["nt"], wg["dual"]
    s0, s1 = CU[seq], CU[seq + 1]
    nkb = NKB[seq]
    nval = (s1 - s0) - 32 * (nkb - 1)
    step = 2 * BLK if dual else BLK
    ns = RING // step
    compute = w < nt
    if dual:
        hb = (w >> 1) & 1
        tile = wg["t0"] + (w & 1)
        so = hb * BLK
        qlds = [12 * HB, 9 * HB, 11 * HB, 7 * HB][w & 3]
        if w >= 4:
            isk, nrg, rg0 = 1 - (w & 1), 4, 0
        else:
            isk, nrg, rg0 = 0, 0, 0
    else:
        hb = wg["hb"]
        tile = wg["t0"] + w
        so = 0
        qlds = (12 - w - (1 if w >= 2 else 0)) * HB
        if nt > 4:
            isk, nrg, rg0 = (1 if w < 4 else 0), 1, w & 3
        elif w >= 4:
            isk, nrg, rg0 = (1 if w < 6 else 0), 2, 2 * (w & 1)
        else:
            isk, nrg, rg0 = 0, 0, 0
    role = (3 if nrg else 2) if compute else (1 if nrg else 0)
    d0 = role | (isk << 2) | (nrg << 3) | ((rg0 & 1) << 6) | (wg["win"] << 28) | (nkb << 10) | (nval << 16) | \
        (wg["rot"] << 22)
    k0 = RING - step + so
    ldst0 = (k0 if isk else so + HB) + rg0 * 1024
    d = [d0, s1 * RS, (s0 + 32 * tile) * RS + hb * 384, qlds, (s0 + 8 * rg0) * RS + hb * 384, ldst0, step,
         wg["npre"] + isk, ns - 1 + isk, so, k0, step - so + w * HB]
    for ten, row in pf:
        d.append(row * RS | ((1 << 31) if ten == "V" else 0))
    d += [0] * (16 - len(d))
    return d


def make_table(plan, pfspec, npf):
    wgs = make_wgs(plan)
    items = prefetch_list(pfspec)
    slots = [(j, w) for w in range(8) for j, wg in enumerate(wgs) if wg["win"] > 0 and w < wg["nt"]]
    assign = {}
    for k, it in enumerate([]):
        key = slots[k % len(slots)]
        if len(assign.setdefault(key, [])) < npf:
            assign[key].append(it)
    tab = []
    for j, wg in enumerate(wgs):
        for w in range(8):
            tab.append(wave_desc(wg, w, assign.get((j, w), [])))
    return wgs, tab


class Asm:
    def __init__(self):
        self.lines = []
        self.nlabel = 0

    def __call__(self, s):
        self.lines.append("    " + s)

    def label(self, name):
        self.lines.append(name + ":")

    def newlabel(self, base):
        self.nlabel += 1
        return "L_%s_%d" % (base, self.nlabel)


def vr(lo, n):
    return "v[%d:%d]" % (lo, lo + n - 1)


def sr(lo, n):
    return "s[%d:%d]" % (lo, lo + n - 1)


class Item:
    def __init__(self, lines, cost, early, late, kind, writes=None, half=None):
        self.lines = lines if isinstance(lines, list) else [lines]
        self.cost, self.early, self.late, self.kind = cost, early, late, kind
        self.writes = writes
        self.half = half
        self.gap = None


def gen(stamps=False, qf="nt", kvf="nt", stf="", plan=None, BG=14, rot=False, abl="", SM0=14, SM1=35, RAMP=1, NIMM=1, pfspec=None, NPF=2, PFWAIT=1, RAMPD=2, XC=0, XM=0, XMS=0x200000, XMP=48, CPF=1, EARLY=0):
    a = Asm()
    WGS, TABLE = make_table(plan or DEFAULT_PLAN, default_pf() if pfspec is None else pfspec, NPF)
    NST = 8
    DBGWG = [0, 70, 133, 255]
    S_ST = 64

    V_LANE = 0
    V_T = list(range(1, 9))
    V_KA0, V_VA0 = 9, 10
    V_KB = [11, 12, 13, 14]
    V_VB = [15, 16]
    V_DE, V_DO = 17, 18
    V_L, V_M, V_BS, V_NMC = 20, 21, 22, 23
    POOL = 24
    V_P = 72
    V_S = [80, 96]
    V_Q = 112
    V_O = 160
    S_Q, S_K, S_V, S_OUT = 4, 6, 8, 12
    S_WIN, S_XB = 14, 15
    SRD_Q, SRD_KV, SRD_O = 16, 20, 24
    S_W = 28
    S_TMP, S_TMP2, S_TMP3, S_LIM = 29, 30, 31, 91
    S_CF = 32
    S_FL, S_NREC, S_QOFF, S_QLDS, S_GOFF, S_LDST, S_STEP, S_NPRE, S_DEPTH, S_SLOT, S_K0, S_SCR = range(32, 44)
    S_PF = 44
    S_NKB, S_NF, S_NVAL, S_J = 48, 49, 50, 51
    S_LN, S_LB, S_ISK, S_NP, S_REM, S_NEED = 52, 53, 54, 55, 62, 63
    S_C, S_THR = 56, 57
    S_RET = 58
    S_RET2 = 60
    S_PC = 92
    WINS = [0, 4, 2, 1]

    def stamp(i, real=False, early=False):
        if EARLY and i in (5, 6) and not early:
            return
        if early and not EARLY:
            return
        if stamps:
            a(("s_memrealtime %s" if real else "s_memtime %s") % sr(S_ST + 2 * i, 2))
            a("s_waitcnt lgkmcnt(0)")

    def stamp_flush(iters=False):
        if not stamps:
            return
        a("s_waitcnt vmcnt(0)")
        stamp(1, True)
        if not EARLY:
            stamp(7)
        if stamps == 2:
            lab = a.newlabel("dbg")
            a("s_cmp_lg_u32 s%d, 0" % S_W)
            a("s_cbranch_scc1 %s" % lab)
            a("s_mov_b32 s83, 99")
            for k, wg in enumerate(DBGWG):
                a("s_cmp_eq_u32 s2, %d" % wg)
                a("s_cselect_b32 s83, %d, s83" % k)
            a("s_cmp_eq_u32 s83, 99")
            a("s_cbranch_scc1 %s" % lab)
            a("s_load_dwordx2 s[80:81], s[0:1], 40")
            a("s_waitcnt lgkmcnt(0)")
            a("s_mov_b32 s84, s80")
            a("s_mov_b32 s85, s81")
            a("s_mov_b32 s86, 256")
            a("s_mov_b32 s87, 0x00020000")
            a("s_mov_b64 exec, 1")
            a("s_lshl_b32 s83, s83, 4")
            a("v_mov_b32 v1, s83")
            a("v_mov_b32 v4, s%d" % S_ST)
            a("v_mov_b32 v5, s%d" % (S_ST + 2))
            a("s_sub_u32 s82, s%d, s%d" % (S_ST + 8, S_ST + 4))
            a("v_mov_b32 v6, s82")
            a("s_sub_u32 s82, s%d, s%d" % (S_ST + 14, S_ST + 4))
            a("v_mov_b32 v7, s82")
            a("buffer_store_dwordx4 v[4:7], v1, s[84:87], 0 offen")
            a.label(lab)
            return
        a("s_load_dwordx2 s[80:81], s[0:1], 48")
        a("s_waitcnt lgkmcnt(0)")
        a("s_mov_b32 s84, s80")
        a("s_mov_b32 s85, s81")
        a("s_mov_b32 s86, 0x100000")
        a("s_mov_b32 s87, 0x00020000")
        a("s_lshl_b32 s82, s2, 3")
        a("s_add_u32 s82, s82, s%d" % S_W)
        a("s_mul_i32 s83, s82, %d" % (NST * 8))
        a("v_mov_b32 v1, s83")
        a("s_mov_b64 exec, 1")
        for i in range(NST):
            a("v_mov_b32 v2, s%d" % (S_ST + 2 * i))
            a("v_mov_b32 v3, s%d" % (S_ST + 2 * i + 1))
            a("buffer_store_dwordx2 v[2:3], v1, s[84:87], 0 offen offset:%d" % (8 * i))
            a("s_nop 1")
        if iters:
            a("s_mov_b64 exec, -1")
            a("s_lshl_b32 s82, s82, 8")
            a("s_add_u32 s82, s82, 0x80000")
            a("v_lshlrev_b32 v1, 2, v0")
            a("v_add_u32 v1, s82, v1")
            a("buffer_store_dword v90, v1, s[84:87], 0 offen")

    a.label(NAME + "_kernel")
    a("s_cmp_ge_u32 s2, 256")
    a("s_cbranch_scc1 L_end")
    stamp(0, True)
    stamp(2)
    a("s_load_dwordx8 s[4:11], s[0:1], 0")
    a("s_load_dwordx2 s[12:13], s[0:1], 32")
    a("s_getpc_b64 %s" % sr(S_PC, 2))
    a.label("L_pc")
    if CPF:
        a("v_lshlrev_b32 v2, 7, v0")
        a("v_min_u32 v2, L_codeend-L_pc-4, v2")
        a("global_load_dword v19, v2, %s" % sr(S_PC, 2))
    a("v_lshrrev_b32 v1, 6, v0")
    a("s_nop 0")
    a("v_readfirstlane_b32 s%d, v1" % S_W)
    a("s_and_b32 s%d, s2, 0xf8" % S_TMP)
    a("s_add_u32 s%d, s%d, L_table-L_pc" % (S_PC, S_PC))
    a("s_addc_u32 s%d, s%d, 0" % (S_PC + 1, S_PC + 1))
    a("s_add_u32 s%d, s%d, s%d" % (S_TMP, S_TMP, S_W))
    a("s_lshl_b32 s%d, s%d, 6" % (S_TMP, S_TMP))
    a("s_load_dwordx16 %s, %s, s%d" % (sr(S_CF, 16), sr(S_PC, 2), S_TMP))
    a("v_and_b32 v0, 63, v0")
    a("s_and_b32 s%d, s2, 7" % S_XB)
    a("s_mul_i32 s%d, s%d, 768" % (S_XB, S_XB))
    a("v_lshrrev_b32 v1, 3, v0")
    a("v_and_b32 v2, 7, v0")
    a("v_bfe_u32 v3, v0, 4, 2")
    a("v_bfe_u32 v4, v0, 4, 1")
    a("v_mul_u32_u24 v1, %d, v1" % RS)
    a("v_xor_b32 v3, v2, v3")
    a("v_lshlrev_b32 v4, 2, v4")
    a("v_xor_b32 v4, v2, v4")
    a("v_min_u32 v2, 5, v2")
    a("v_lshl_add_u32 v5, v3, 4, v1")
    a("v_lshl_add_u32 v7, v4, 4, v1")
    a("v_xor_b32 v6, 64, v5")
    a("v_lshl_add_u32 v8, v2, 7, v1")
    a("s_mov_b32 s%d, 0x00020000" % (SRD_Q + 3))
    a("s_mov_b32 s%d, 0x00020000" % (SRD_KV + 3))
    a("s_mov_b32 s%d, 0x00020000" % (SRD_O + 3))
    a("s_mov_b32 s%d, %d" % (SRD_KV + 2, T * RS))
    a("s_mov_b32 s%d, 0x%x" % (S_C, f32(CSCALE)))
    a("s_mov_b32 s%d, 0x%x" % (S_THR, f32(THR)))
    a("s_mov_b32 s%d, 0" % S_LN)
    a("s_waitcnt lgkmcnt(0)")
    stamp(3)
    a("s_mov_b32 s%d, s%d" % (SRD_Q, S_Q))
    a("s_mov_b32 s%d, s%d" % (SRD_Q + 1, S_Q + 1))
    if XC:
        a("s_mov_b32 s90, %d" % XC)
        a.label("L_xc")
        for i in range(32):
            a("v_add_f32 v100, v100, v100")
        a("s_sub_u32 s90, s90, 1")
        a("s_cmp_lg_u32 s90, 0")
        a("s_cbranch_scc1 L_xc")
    if XM:
        a("s_load_dwordx2 s[80:81], s[0:1], %d" % XMP)
        a("s_waitcnt lgkmcnt(0)")
        a("s_mov_b32 s84, s80")
        a("s_mov_b32 s85, s81")
        a("s_mov_b32 s86, %d" % (0x10000000 if XMP == 48 else T * RS))
        a("s_mov_b32 s87, 0x00020000")
        a("s_lshl_b32 s82, s2, 3")
        a("s_add_u32 s82, s82, s%d" % S_W)
        a("s_lshl_b32 s82, s82, 10")
        a("v_lshlrev_b32 v100, 4, v0")
        for i in range(XM):
            a("s_add_u32 s83, s82, %d" % (i * XMS))
            a("buffer_load_dwordx4 v[104:107], v100, s[84:87], s83 offen nt")
            a("s_waitcnt vmcnt(0)")
    a("s_mov_b32 s%d, s%d" % (SRD_Q + 2, S_NREC))
    a("s_add_u32 s%d, s%d, s%d" % (S_QOFF, S_QOFF, S_XB))
    a("s_lshr_b32 s%d, s%d, 28" % (S_WIN, S_FL))
    a("s_bitcmp1_b32 s%d, 1" % S_FL)
    a("s_cbranch_scc0 L_noq")

    def q_loads(ser):
        for rg in range(4):
            a("s_add_u32 s%d, s%d, %d" % (S_TMP, S_QOFF, rg * 8 * RS))
            for lc in range(3):
                a("s_add_u32 m0, s%d, %d" % (S_QLDS, lc * 4096 + rg * 1024 - lc * 128))
                k = 3 * rg + lc
                if ser and 1 <= k <= 11:
                    lab = a.newlabel("qs")
                    a("s_cmp_lt_u32 s%d, %d" % (S_WIN, k))
                    a("s_cbranch_scc1 %s" % lab)
                    a("s_waitcnt vmcnt(0)")
                    a.label(lab)
                else:
                    a("s_nop 0")
                a("buffer_load_dwordx4 v%d, %s, s%d offen offset:%d %s lds" % (5 + (rg & 1), sr(SRD_Q, 4), S_TMP, lc * 128, qf))
    a("s_cmp_lg_u32 s%d, 0" % S_WIN)
    a("s_cbranch_scc1 L_qser")
    q_loads(False)
    a.label("L_noq")
    stamp(5, early=True)
    a("s_bfe_u32 s%d, s%d, 0x6000a" % (S_NKB, S_FL))
    a("s_bfe_u32 s%d, s%d, 0x60010" % (S_NVAL, S_FL))
    a("s_bfe_u32 s%d, s%d, 0x40016" % (S_LB, S_FL))
    a("s_bfe_u32 s%d, s%d, 0x10002" % (S_ISK, S_FL))
    a("s_bfe_u32 s%d, s%d, 0x30003" % (S_NP, S_FL))
    a("s_mul_i32 s%d, s%d, 3" % (S_NP, S_NP))
    a("s_sub_u32 s%d, s%d, 1" % (S_NF, S_NKB))
    a("s_mov_b32 s%d, s%d" % (SRD_KV + 2, S_NREC))
    a("s_mov_b32 s%d, s%d" % (SRD_O + 2, S_NREC))
    a("s_mov_b32 s%d, s%d" % (SRD_O, S_OUT))
    a("s_mov_b32 s%d, s%d" % (SRD_O + 1, S_OUT + 1))
    a("s_add_u32 s%d, s%d, s%d" % (S_GOFF, S_GOFF, S_XB))
    a("s_bitcmp1_b32 s%d, 6" % S_FL)
    a("s_cselect_b64 vcc, -1, 0")
    a("v_cndmask_b32 v%d, v5, v6, vcc" % V_DE)
    a("v_mov_b32 v%d, v6" % V_DO)
    a("s_cmp_eq_u32 s%d, 0" % S_ISK)
    a("s_cselect_b64 vcc, -1, 0")
    a("s_cselect_b32 s%d, s%d, s%d" % (SRD_KV, S_V, S_K))
    a("s_cselect_b32 s%d, s%d, s%d" % (SRD_KV + 1, S_V + 1, S_K + 1))
    a("v_cndmask_b32 v%d, v%d, v7, vcc" % (V_DE, V_DE))
    a("v_cndmask_b32 v%d, v%d, v7, vcc" % (V_DO, V_DO))
    a("s_mov_b32 s%d, s%d" % (S_NEED, S_ISK))

    def load_body(np_static, win=0, first=False):
        nop = ("s_waitcnt vmcnt(%d)" % (win - 1)) if win else "s_nop 0"
        a("s_cmp_eq_u32 s%d, s%d" % (S_LN, S_NF))
        a("s_cselect_b32 s%d, s%d, s%d" % (S_TMP, S_NF, S_LB))
        a("s_mul_i32 s%d, s%d, %d" % (S_TMP, S_TMP, 32 * RS))
        a("s_add_u32 s%d, s%d, s%d" % (S_TMP, S_TMP, S_GOFF))
        labd = a.newlabel("ldd")
        for rg in range(1 if np_static else 4):
            if rg:
                if rg != 3:
                    a("s_cmp_eq_u32 s%d, %d" % (S_NP, 3 * rg))
                    a("s_cbranch_scc1 %s" % labd)
                a("s_add_u32 s%d, s%d, %d" % (S_TMP, S_TMP, 8 * RS))
            for lc in range(3):
                a("s_add_u32 m0, s%d, %d" % (S_LDST, rg * 1024 + lc * 4096 - lc * 128))
                a(nop)
                a("buffer_load_dwordx4 v%d, %s, s%d offen offset:%d %s lds" % (
                    V_DO if rg & 1 else V_DE, sr(SRD_KV, 4), S_TMP, lc * 128, kvf))
                if first and rg == 0 and lc == 0:
                    lab, top = a.newlabel("fv"), a.newlabel("fvt")
                    a("s_mov_b32 s%d, s%d" % (S_REM, S_WIN))
                    a.label(top)
                    a("s_cmp_eq_u32 s%d, 0" % S_REM)
                    a("s_cbranch_scc1 %s" % lab)
                    a("s_waitcnt vmcnt(0)")
                    a("s_mul_i32 s%d, s%d, %d" % (S_TMP2, S_REM, 32 * RS))
                    a("s_add_u32 s%d, s%d, s%d" % (S_TMP2, S_TMP2, S_TMP))
                    a("buffer_load_dword v19, v%d, %s, s%d offen" % (V_DE, sr(SRD_KV, 4), S_TMP2))
                    a("s_sub_u32 s%d, s%d, 1" % (S_REM, S_REM))
                    a("s_branch %s" % top)
                    a.label(lab)
        a.label(labd)
        a("s_add_u32 s%d, s%d, 1" % (S_LN, S_LN))
        a("s_add_u32 s%d, s%d, 1" % (S_LB, S_LB))
        a("s_cmp_ge_u32 s%d, s%d" % (S_LB, S_NF))
        a("s_cselect_b32 s%d, 0, s%d" % (S_LB, S_LB))
        a("s_add_u32 s%d, s%d, s%d" % (S_LDST, S_LDST, S_STEP))
        a("s_sub_u32 s%d, s%d, %d" % (S_TMP2, S_LDST, RING))
        a("s_cmp_ge_u32 s%d, %d" % (S_LDST, RING))
        a("s_cselect_b32 s%d, s%d, s%d" % (S_LDST, S_TMP2, S_LDST))

    def load_upto(limit_sgpr, np_static, win=0):
        top, done = a.newlabel("lu"), a.newlabel("lud")
        a("s_min_u32 s%d, s%d, s%d" % (limit_sgpr, limit_sgpr, S_NKB))
        a("s_cmp_ge_u32 s%d, s%d" % (S_LN, limit_sgpr))
        a("s_cbranch_scc1 %s" % done)
        a.label(top)
        load_body(np_static, win)
        a("s_cmp_lt_u32 s%d, s%d" % (S_LN, limit_sgpr))
        a("s_cbranch_scc1 %s" % top)
        a.label(done)

    def pre_loads(np_static):
        if np_static is None:
            load_body(None, 0, True)
        load_upto(S_NPRE, np_static)

    def wait_cascade(np_static):
        done = a.newlabel("wc")
        a("s_min_u32 s%d, s%d, s%d" % (S_REM, S_NEED, S_LN))
        a("s_sub_u32 s%d, s%d, s%d" % (S_REM, S_LN, S_REM))
        if np_static is None:
            a("s_mul_i32 s%d, s%d, s%d" % (S_REM, S_REM, S_NP))
            vals = sorted(set([3 * r for r in range(6)] + [6 * r for r in range(6)]), reverse=True)
            cmpv = vals
        else:
            vals = [np_static * r for r in range(5, -1, -1)]
            cmpv = list(range(5, -1, -1))
        for v, c in zip(vals[:-1], cmpv[:-1]):
            a("s_waitcnt vmcnt(%d)" % v)
            a("s_cmp_ge_u32 s%d, %d" % (S_REM, c))
            a("s_cbranch_scc1 %s" % done)
        a("s_waitcnt vmcnt(0)")
        a.label(done)

    a("s_bitcmp1_b32 s%d, 1" % S_FL)
    a("s_cbranch_scc1 L_compute")

    a("s_cmp_eq_u32 s%d, 0" % S_NP)
    a("s_cbranch_scc1 L_idle")
    pre_loads(None)
    stamp(7, early=True)
    wait_cascade(None)
    stamp(6, early=True)
    a("s_barrier")
    stamp(4)
    a("s_mov_b32 s%d, s%d" % (S_TMP3, S_DEPTH))
    a("s_mov_b32 s%d, 0" % S_J)
    if stamps:
        a("v_mov_b32 v90, 0")
    a.label("L_ld_loop")
    a("s_add_u32 s%d, s%d, %d" % (S_LIM, S_LN, RAMP))
    a("s_min_u32 s%d, s%d, s%d" % (S_LIM, S_LIM, S_TMP3))
    load_upto(S_LIM, None)
    a("s_add_u32 s%d, s%d, 1" % (S_NEED, S_NEED))
    wait_cascade(None)
    if stamps:
        a("s_memtime s[88:89]")
        a("s_waitcnt lgkmcnt(0)")
        a("s_add_u32 m0, s%d, 32" % S_J)
        a("s_nop 0")
        a("v_writelane_b32 v90, s88, m0")
    a("s_barrier")
    if stamps:
        a("s_memtime s[88:89]")
        a("s_memrealtime s[94:95]")
        a("s_waitcnt lgkmcnt(0)")
        a("s_mov_b32 m0, s%d" % S_J)
        a("s_nop 0")
        a("v_writelane_b32 v90, s88, m0")
        a("s_add_u32 m0, s%d, 16" % S_J)
        a("s_nop 0")
        a("v_writelane_b32 v90, s94, m0")
    a("s_add_u32 s%d, s%d, 1" % (S_TMP3, S_TMP3))
    a("s_add_u32 s%d, s%d, 1" % (S_J, S_J))
    a("s_cmp_lt_u32 s%d, s%d" % (S_J, S_NKB))
    a("s_cbranch_scc1 L_ld_loop")
    stamp(5)
    stamp(6)
    stamp_flush(True)
    a("s_endpgm")
    a.label("L_idle")
    a("s_add_u32 s%d, s%d, 1" % (S_J, S_NKB))
    a.label("L_idle_loop")
    a("s_barrier")
    a("s_sub_u32 s%d, s%d, 1" % (S_J, S_J))
    a("s_cmp_lg_u32 s%d, 0" % S_J)
    a("s_cbranch_scc1 L_idle_loop")
    a.label("L_end")
    a("s_endpgm")

    a.label("L_qser")
    q_loads(True)
    a("s_branch L_noq")
    a.label("L_compute")
    lab_nl = a.newlabel("nl")
    a("s_cmp_eq_u32 s%d, 0" % S_NP)
    a("s_cbranch_scc1 %s" % lab_nl)
    pre_loads(3)
    a.label(lab_nl)
    r, h, f, h4 = V_T[0], V_T[1], V_T[2], V_T[7]
    a("v_and_b32 v%d, 31, v%d" % (r, V_LANE))
    a("v_lshrrev_b32 v%d, 5, v%d" % (h, V_LANE))
    a("v_lshlrev_b32 v%d, 2, v%d" % (h4, h))
    a("v_bfe_u32 v%d, v%d, 1, 3" % (f, r))
    a("v_xor_b32 v%d, v%d, v%d" % (f, f, h))
    a("v_lshlrev_b32 v%d, 4, v%d" % (f, f))
    a("v_lshl_add_u32 v%d, v%d, 7, v%d" % (V_KA0, r, f))
    rr, c, dh, b = V_T[3], V_T[4], V_T[5], V_T[6]
    a("v_bfe_u32 v%d, v%d, 2, 2" % (rr, V_LANE))
    a("v_and_b32 v%d, 3, v%d" % (c, V_LANE))
    a("v_bfe_u32 v%d, v%d, 4, 1" % (dh, V_LANE))
    a("v_bfe_u32 v%d, v%d, 3, 1" % (b, V_LANE))
    a("v_add_u32 v%d, v%d, v%d" % (rr, rr, h4))
    a("v_lshlrev_b32 v%d, 7, v%d" % (V_VA0, rr))
    a("v_lshl_add_u32 v%d, v%d, 6, v%d" % (V_VA0, b, V_VA0))
    a("v_lshl_add_u32 v%d, v%d, 5, v%d" % (V_VA0, dh, V_VA0))
    a("v_lshl_add_u32 v%d, v%d, 3, v%d" % (V_VA0, c, V_VA0))
    for i in range(48):
        a("v_pk_mov_b32 %s, 0, 0" % vr(V_O + 2 * i, 2)) if False else None
    for i in range(96):
        a("v_mov_b32 v%d, 0" % (V_O + i))
    a("v_mov_b32 v%d, 0" % V_L)
    a("v_add_u32 v%d, s%d, v%d" % (V_KB[0], S_QLDS, V_KA0))
    for j in range(1, 4):
        a("v_xor_b32 v%d, %d, v%d" % (V_KB[j], 32 * j, V_KB[0]))
    stamp(7, early=True)
    wait_cascade(3)
    stamp(6, early=True)
    for ks in range(12):
        a("ds_read_b128 %s, v%d offset:%d" % (vr(V_Q + 4 * ks, 4), V_KB[ks & 3], (ks >> 2) * 4096))
    a("v_add_u32 v%d, s%d, v%d" % (V_KB[0], S_K0, V_KA0))
    for j in range(1, 4):
        a("v_xor_b32 v%d, %d, v%d" % (V_KB[j], 32 * j, V_KB[0]))
    a("s_waitcnt lgkmcnt(0)")
    a("s_barrier")
    stamp(4)
    for ks in range(12):
        a("ds_read_b128 %s, v%d offset:%d" % (vr(POOL + 4 * ks, 4), V_KB[ks & 3], (ks >> 2) * 4096))
    a("s_mov_b32 s%d, 0" % S_J)
    for ks in range(12):
        a("s_waitcnt lgkmcnt(%d)" % (11 - ks))
        a("v_mfma_f32_32x32x16_bf16 %s, %s, %s, %s" % (
            vr(V_S[0], 16), vr(POOL + 4 * ks, 4), vr(V_Q + 4 * ks, 4), "0" if ks == 0 else vr(V_S[0], 16)))

    def block_max(S, mx, t2):
        a("v_max3_f32 v%d, v%d, v%d, v%d" % (mx, S, S + 1, S + 2))
        for i in range(3, 15, 2):
            a("v_max3_f32 v%d, v%d, v%d, v%d" % (mx, mx, S + i, S + i + 1))
        a("v_max_f32 v%d, v%d, v%d" % (mx, mx, S + 15))
        a("v_mov_b32 v%d, v%d" % (t2, mx))
        a("s_nop 1")
        a("v_permlane32_swap_b32 v%d, v%d" % (t2, mx))
        a("s_nop 1")
        a("v_max_f32 v%d, v%d, v%d" % (mx, mx, t2))

    stubs = []

    def sm_seq(par):
        S = V_S[par]
        tm = V_T
        out = []

        def fma(k):
            return ("v_fma_f32 v%d, v%d, s%d, v%d" % (tm[k % 8], S + k, S_C, V_NMC), 1, k // 8, 0)

        def ex(k):
            return ("v_exp_f32 v%d, v%d" % (tm[k % 8], tm[k % 8]), 2, k // 8, 0)

        def cvt(p):
            return ("v_cvt_pk_bf16_f32 v%d, v%d, v%d" % (V_P + p, tm[(2 * p) % 8], tm[(2 * p + 1) % 8]), 1, p // 4,
                    17 if p < 4 else 23)

        def add(k):
            if k == 1:
                return ("v_add_f32 v%d, v%d, v%d" % (V_BS, tm[0], tm[1]), 1, 0, 0)
            return ("ADD %d" % k, 1, k // 8, 0)
        for hf in range(2):
            o = 8 * hf
            p = 4 * hf
            out += [fma(o), fma(o + 1), ex(o), fma(o + 2), ex(o + 1), fma(o + 3), ex(o + 2), fma(o + 4), ex(o + 3)]
            if hf:
                out += [add(o)]
            out += [add(o + 1), fma(o + 5), ex(o + 4), cvt(p), add(o + 2), fma(o + 6), ex(o + 5), cvt(p + 1), add(o + 3),
                    fma(o + 7), ex(o + 6), add(o + 4), ex(o + 7), cvt(p + 2), add(o + 5), add(o + 6), cvt(p + 3),
                    add(o + 7)]
        return out

    def schedule(par, duty):
        gaps = {g: [] for g in range(BG, BG + 26)}
        load = {g: 0.0 for g in range(24)}
        load[BG % 24] += 2
        load[(BG - 2) % 24] += 4
        load[(BG - 1) % 24] += 6
        load[23] += 2

        def put(it, g):
            it.gap = g
            gaps[g].append(it)
            load[g % 24] += it.cost
        put(Item(["MASK %d" % par], 2, 0, 0, "mask"), max(SM0, BG))
        if duty:
            put(Item(["DUTYLD"], 2, 0, 0, "duty"), BG + 2)
            put(Item(["DUTYWAIT"], 6, 0, 0, "duty"), BG + 24 - 4)
        kg = []
        g = BG
        for i in range(12):
            g = max(g, 12 + i)
            while kg.count(g) >= (2 if g < BG + 2 else 1):
                g += 1
            kg.append(g)
            put(Item("ds_read_b128 %s, v%d offset:%d" % (vr(POOL + 4 * i, 4), V_KB[i & 3], (i >> 2) * 4096),
                     1, 0, 0, "K", ("F", i)), g)
            assert g <= 24 + i - 4
        for idx in range(12):
            s, t = divmod(idx, 6)
            for u in range(2):
                put(Item("ds_read_b64_tr_b16 %s, v%d offset:%d" % (
                    vr(POOL + 4 * idx + 2 * u, 2), V_VB[t & 1], HB + (16 * s + 8 * u) * 128 + (t >> 1) * 4096),
                    1, 0, 0, "V%d" % s, ("F", idx)), 24 + idx)
        e, l = max(SM0, BG), SM1
        its = [Item(txt, cost, max(mg, 24 if hf else 0), l, "sm", half=hf) for txt, cost, hf, mg in sm_seq(par)]
        its.append(Item(["CHECK %d 2" % par], 3, 0, l, "chk"))
        tot = sum(v.cost for v in its) + sum(load[g % 24] for g in range(e, l + 1))
        target = tot / (l - e + 1)
        g = e
        exc = 0.0
        for it in its:
            while g < l and (load[g % 24] + it.cost / 2.0 > target + exc or g < it.early):
                exc += target - load[g % 24]
                g += 1
            put(it, g)
        return gaps, load

    def mfma_for(slot, par):
        if slot < 12:
            Sn = V_S[par ^ 1]
            txt = "v_mfma_f32_32x32x16_bf16 %s, %s, %s, %s" % (
                vr(Sn, 16), vr(POOL + 4 * slot, 4), vr(V_Q + 4 * slot, 4), "0" if slot == 0 else vr(Sn, 16))
            return txt, ("F", slot), "qk"
        idx = slot - 12
        s, t = divmod(idx, 6)
        txt = "v_mfma_f32_32x32x16_bf16 %s, %s, %s, %s" % (
            vr(V_O + 16 * t, 16), vr(POOL + 4 * idx, 4), vr(V_P + 4 * s, 4), vr(V_O + 16 * t, 16))
        return txt, ("F", idx), "pv%d" % s

    def emit_lines(lines, tailmode=False):
        for ln in lines:
            if ln.startswith("CHECK"):
                _, par, mode = ln.split()
                stub, back = a.newlabel("slow"), a.newlabel("back")
                a("v_cmp_lt_f32 vcc, s%d, v%d" % (S_THR, V_BS))
                a("s_cbranch_vccnz %s" % stub)
                a.label(back)
                a("v_add_f32 v%d, v%d, v%d" % (V_L, V_L, V_BS))
                stubs.append((stub, "L_slow_%s_%s" % (par, mode), back))
            elif ln.startswith("MASK"):
                _, par = ln.split()
                stub, back = a.newlabel("mstub"), a.newlabel("mback")
                a("s_cmp_eq_u32 s%d, s%d" % (S_J, S_NF))
                a("s_cbranch_scc1 %s" % stub)
                a.label(back)
                stubs.append((stub, "L_mask_%s" % par, back))
            elif ln.startswith("ADD"):
                k = int(ln.split()[1])
                if tailmode and k == 8:
                    a("v_mov_b32 v%d, v%d" % (V_BS, V_T[0]))
                else:
                    a("v_add_f32 v%d, v%d, v%d" % (V_BS, V_BS, V_T[k % 8]))
            elif ln == "DUTYLD":
                stub, back = a.newlabel("dl"), a.newlabel("dlb")
                a("s_cmp_lt_u32 s%d, s%d" % (S_LN, S_NKB))
                a("s_cbranch_scc1 %s" % stub)
                a.label(back)
                stubs.append((stub, "L_dutyld", back))
            elif ln == "DUTYWAIT":
                a("s_add_u32 s%d, s%d, 1" % (S_NEED, S_NEED))
                wait_cascade(3)
            else:
                a(ln)

    def skip_item(it):
        return ("L" in abl and it.writes is not None) or ("S" in abl and it.kind in ("sm", "chk"))

    def emit_stream(seq, outstanding, tailmode=False):
        issued = list(outstanding)
        done = 0
        for idx, e in enumerate(seq):
            if e[0] == "m":
                frag = e[2]
                need = max([k for k, fr in enumerate(issued) if fr == frag], default=-1) + 1
                if need > done:
                    tgt = need
                    cnt = 0
                    for e2 in seq[idx + 1:]:
                        if e2[0] == "m":
                            n2 = max([k for k, fr in enumerate(issued) if fr == e2[2]], default=-1) + 1
                            if n2 > tgt and n2 <= len(issued) - 6 and cnt < 5:
                                tgt = n2
                                cnt += 1
                            else:
                                break
                    n = len(issued) - tgt
                    a("s_waitcnt lgkmcnt(%d)" % min(15, n))
                    done = len(issued) - min(15, n)
                a(e[1])
            elif e[0] == "i":
                it = e[1]
                if skip_item(it):
                    continue
                emit_lines(it.lines, tailmode)
                if it.writes is not None:
                    issued.append(it.writes)
            elif e[0] == "bar":
                a("s_waitcnt lgkmcnt(0)")
                a("s_barrier")
                issued, done = [], 0
            elif e[0] == "raw":
                emit_lines([e[1]], tailmode)
            elif e[0] == "label":
                a.label(e[1])

    def addr_lines():
        return (["v_add_u32 v%d, s%d, v%d" % (V_KB[0], S_SLOT, V_KA0), "v_add_u32 v%d, s%d, v%d" % (V_VB[0], S_SLOT, V_VA0)] +
                ["v_xor_b32 v%d, %d, v%d" % (V_KB[j], 32 * j, V_KB[0]) for j in range(1, 4)] +
                ["v_xor_b32 v%d, 64, v%d" % (V_VB[1], V_VB[0])])

    def compute_path(duty):
        sfx = "d" if duty else "n"
        scheds = [schedule(0, duty), schedule(1, duty)]
        sys.stderr.write("gap loads (%s): %s\n" % (sfx, " ".join("%.0f" % scheds[0][1][g] for g in range(24))))

        def next_items(par):
            return [it for g in range(BG, 24) for it in scheds[par][0][g]]

        def nfr(par):
            return [it.writes for it in next_items(par) if it.writes is not None and not skip_item(it)]

        def body(par):
            cur, nxt = scheds[par][0], scheds[par ^ 1][0]
            seq = []
            for slot in range(24):
                txt, frag, kind = mfma_for(slot, par)
                seq.append(("m", txt, frag))
                for it in cur.get(slot + 24, []):
                    seq.append(("i", it))
                if slot == BG - 2:
                    seq += [("raw", "s_add_u32 s%d, s%d, s%d" % (S_SLOT, S_SLOT, S_STEP)),
                            ("raw", "s_sub_u32 s%d, s%d, %d" % (S_TMP3, S_SLOT, RING)),
                            ("raw", "s_cselect_b32 s%d, s%d, s%d" % (S_SLOT, S_SLOT, S_TMP3)),
                            ("raw", "s_add_u32 s%d, s%d, 1" % (S_J, S_J))]
                if slot == BG - 1:
                    seq += [("raw", x) for x in addr_lines()]
                if slot == BG:
                    seq.append(("bar",))
                if slot >= BG:
                    for it in nxt.get(slot, []):
                        seq.append(("i", it))
            return seq

        def tail(par):
            cur = scheds[par][0]
            rest = [it for g in range(24, BG + 26) for it in cur[g]]
            assert all(it.half != 1 for it in next_items(par)), "second half started too early"
            vreads = [it for it in rest if it.kind in ("V0", "V1")]
            h0 = [it for it in rest if it.kind == "sm" and it.half == 0]
            h1 = [it for it in rest if it.kind == "sm" and it.half == 1]
            seq = []
            v0 = [it for it in vreads if it.kind == "V0"]
            v1 = [it for it in vreads if it.kind == "V1"]
            k = 0
            for it in v0:
                seq.append(("i", it))
                if k < len(h0):
                    seq.append(("i", h0[k]))
                    k += 1
            for it in h0[k:]:
                seq.append(("i", it))
            seq.append(("raw", "CHECK %d 0" % par))
            seq.append(("raw", "s_cmp_le_u32 s%d, 16" % S_NVAL))
            seq.append(("raw", "s_cbranch_scc1 L_short_%s%d" % (sfx, par)))
            k = 0
            kv = 0
            per = (len(h1) + 5) // 6
            for t in range(6):
                txt, frag, kind = mfma_for(12 + t, par)
                seq.append(("m", txt, frag))
                for it in v1[2 * t:2 * t + 2]:
                    seq.append(("i", it))
                for it in h1[k:k + per]:
                    seq.append(("i", it))
                k += per
            seq.append(("raw", "CHECK %d 1" % par))
            for t in range(6):
                txt, frag, kind = mfma_for(18 + t, par)
                seq.append(("m", txt, frag))
            seq.append(("raw", "s_branch L_epi"))
            short = [("label", "L_short_%s%d" % (sfx, par)), ("raw", "s_waitcnt lgkmcnt(0)")]
            for t in range(6):
                txt, frag, kind = mfma_for(12 + t, par)
                short.append(("raw", txt))
            short.append(("raw", "s_branch L_epi"))
            return seq, short

        if duty:
            a("s_add_u32 s%d, s%d, %d" % (S_LIM, S_LN, RAMPD))
            a("s_min_u32 s%d, s%d, s%d" % (S_LIM, S_LIM, S_DEPTH))
            load_upto(S_LIM, 3)
            a("s_add_u32 s%d, s%d, 1" % (S_NEED, S_NEED))
            wait_cascade(3)
        for x in addr_lines():
            a(x)
        a("s_nop 6")
        block_max(V_S[0], V_M, V_T[1])
        a("v_mul_f32 v%d, s%d, v%d" % (V_NMC, S_C, V_M))
        a("v_sub_f32 v%d, 0, v%d" % (V_NMC, V_NMC))
        emit_stream([("bar",)] + [("i", it) for it in next_items(0)], [])
        a.label("L_loop_" + sfx)
        emit_stream(body(0), nfr(0))
        a("s_cmp_eq_u32 s%d, s%d" % (S_J, S_NF))
        a("s_cbranch_scc1 L_tail1_" + sfx)
        emit_stream(body(1), nfr(1))
        a("s_cmp_lg_u32 s%d, s%d" % (S_J, S_NF))
        a("s_cbranch_scc1 L_loop_" + sfx)
        t0, s0 = tail(0)
        t1, s1 = tail(1)
        emit_stream(t0, nfr(0), True)
        a.label("L_tail1_" + sfx)
        emit_stream(t1, nfr(1), True)
        emit_stream(s0, [], True)
        emit_stream(s1, [], True)

    a("s_cmp_lg_u32 s%d, 0" % S_NP)
    a("s_cbranch_scc1 L_duty_path")
    compute_path(False)
    a.label("L_duty_path")
    compute_path(True)

    a.label("L_epi")
    stamp(5)
    a("s_add_u32 s%d, s%d, s%d" % (S_TMP, S_SLOT, S_SCR))
    a("s_sub_u32 s%d, s%d, %d" % (S_TMP2, S_TMP, RING))
    a("s_cselect_b32 s%d, s%d, s%d" % (S_TMP, S_TMP, S_TMP2))
    a("v_mov_b32 v%d, v%d" % (V_T[0], V_L))
    q, hh = V_T[1], V_T[2]
    a("v_and_b32 v%d, 31, v%d" % (q, V_LANE))
    a("v_lshrrev_b32 v%d, 5, v%d" % (hh, V_LANE))
    a("v_permlane32_swap_b32 v%d, v%d" % (V_T[0], V_L))
    a("v_lshlrev_b32 v%d, 7, v%d" % (V_T[3], q))
    a("v_add_f32 v%d, v%d, v%d" % (V_L, V_L, V_T[0]))
    a("v_and_b32 v%d, 7, v%d" % (q, q))
    a("v_rcp_f32 v%d, v%d" % (V_L, V_L))
    a("v_lshl_add_u32 v%d, v%d, 4, v%d" % (V_T[3], q, V_T[3]))
    a("v_lshl_add_u32 v%d, v%d, 3, v%d" % (V_T[3], hh, V_T[3]))
    a("v_mov_b32 v%d, v%d" % (V_M, V_L))
    a("v_add_u32 v%d, s%d, v%d" % (POOL, S_TMP, V_T[3]))
    for c in range(1, 8):
        a("v_xor_b32 v%d, %d, v%d" % (POOL + c, 16 * c, POOL))
    for t in range(6):
        for g in range(4):
            o = V_O + 16 * t + 4 * g
            d = V_P + 2 * ((4 * t + g) % 4)
            a("v_pk_mul_f32 %s, %s, %s" % (vr(o, 2), vr(o, 2), vr(V_L, 2)))
            a("v_pk_mul_f32 %s, %s, %s" % (vr(o + 2, 2), vr(o + 2, 2), vr(V_L, 2)))
            a("v_cvt_pk_bf16_f32 v%d, v%d, v%d" % (d, o, o + 1))
            a("v_cvt_pk_bf16_f32 v%d, v%d, v%d" % (d + 1, o + 2, o + 3))
            c = 4 * t + g
            a("ds_write_b64 v%d, %s offset:%d" % (POOL + (c & 7), vr(d, 2), (c >> 3) * 4096))
    a("v_lshlrev_b32 v%d, 4, v%d" % (V_T[4], V_LANE))
    a("v_add_u32 v%d, s%d, v%d" % (POOL + 8, S_TMP, V_T[4]))
    a("v_lshrrev_b32 v%d, 3, v%d" % (V_T[0], V_LANE))
    a("v_and_b32 v%d, 7, v%d" % (V_T[1], V_LANE))
    a("v_xor_b32 v%d, v%d, v%d" % (V_T[1], V_T[1], V_T[0]))
    a("v_mul_u32_u24 v%d, %d, v%d" % (V_T[0], RS, V_T[0]))
    a("v_lshl_add_u32 v%d, v%d, 4, v%d" % (V_T[0], V_T[1], V_T[0]))
    a("v_add_u32 v%d, s%d, v%d" % (POOL + 9, S_QOFF, V_T[0]))
    for rg in range(1, 4):
        a("v_add_u32 v%d, %d, v%d" % (POOL + 9 + rg, rg * 8 * RS, POOL + 9))
    stamp(6)
    a("s_waitcnt lgkmcnt(0)")
    order = [(rg, lc) for rg in range(4) for lc in range(3)]
    for j, (rg, lc) in enumerate(order):
        a("ds_read_b128 %s, v%d offset:%d" % (vr(V_O + 4 * j, 4), POOL + 8, lc * 4096 + rg * 1024))
    for j, (rg, lc) in enumerate(order):
        a("s_waitcnt lgkmcnt(%d)" % (11 - j))
        a("buffer_store_dwordx4 %s, v%d, %s, 0 offen offset:%d %s" % (
            vr(V_O + 4 * j, 4), POOL + 9 + rg, sr(SRD_O, 4), lc * 128, stf))
    stamp_flush()
    a("s_endpgm")

    for stub, target, back in stubs:
        a.label(stub)
        a("s_call_b64 %s, %s" % (sr(S_RET, 2), target))
        a("s_branch %s" % back)
    a.label("L_dutyld")
    load_body(3)
    a("s_setpc_b64 %s" % sr(S_RET, 2))
    for par in range(2):
        S = V_S[par]
        a.label("L_mask_%d" % par)
        a("s_nop 7")
        a("v_lshrrev_b32 v%d, 5, v%d" % (V_T[1], V_LANE))
        a("v_lshlrev_b32 v%d, 2, v%d" % (V_T[1], V_T[1]))
        a("v_mov_b32 v%d, 0xff800000" % V_T[0])
        for g in range(4):
            for i in range(4):
                a("s_sub_u32 s%d, s%d, %d" % (S_TMP2, S_NVAL, 8 * g + i))
                a("v_cmp_gt_i32 vcc, s%d, v%d" % (S_TMP2, V_T[1]))
                a("s_nop 1")
                a("v_cndmask_b32 v%d, v%d, v%d, vcc" % (S + 4 * g + i, V_T[0], S + 4 * g + i))
        a("s_setpc_b64 %s" % sr(S_RET, 2))
    a.label("L_rescale")
    mx, t2 = V_T[0], V_T[1]
    a("v_max_f32 v%d, v%d, v%d" % (mx, mx, V_M))
    a("v_sub_f32 v%d, v%d, v%d" % (t2, V_M, mx))
    a("v_mul_f32 v%d, s%d, v%d" % (t2, S_C, t2))
    a("v_exp_f32 v%d, v%d" % (t2, t2))
    a("v_mov_b32 v%d, v%d" % (V_M, mx))
    a("v_mul_f32 v%d, s%d, v%d" % (V_NMC, S_C, mx))
    a("v_sub_f32 v%d, 0, v%d" % (V_NMC, V_NMC))
    a("v_mul_f32 v%d, v%d, v%d" % (V_L, V_L, t2))
    for i in range(96):
        a("v_mul_f32 v%d, v%d, v%d" % (V_O + i, V_O + i, t2))
    a("s_setpc_b64 %s" % sr(S_RET2, 2))
    for par in range(2):
        for mode in range(3):
            S = V_S[par]
            a.label("L_slow_%d_%d" % (par, mode))
            a("s_nop 15")
            block_max(S, mx, t2)
            a("s_call_b64 %s, L_rescale" % sr(S_RET2, 2))
            first = True
            for hf in ([0, 1] if mode == 2 else [mode]):
                for k in range(8):
                    a("v_fma_f32 v%d, v%d, s%d, v%d" % (V_T[k], S + 8 * hf + k, S_C, V_NMC))
                for k in range(8):
                    a("v_exp_f32 v%d, v%d" % (V_T[k], V_T[k]))
                a("s_nop 0")
                for p in range(4):
                    a("v_cvt_pk_bf16_f32 v%d, v%d, v%d" % (V_P + 4 * hf + p, V_T[2 * p], V_T[2 * p + 1]))
                for k in range(8):
                    if first:
                        a("v_mov_b32 v%d, v%d" % (V_BS, V_T[k]))
                        first = False
                    else:
                        a("v_add_f32 v%d, v%d, v%d" % (V_BS, V_BS, V_T[k]))
            a("s_setpc_b64 %s" % sr(S_RET, 2))
    a.lines.append(".p2align 6")
    a.lines.append(".type L_table,@object")
    a.label("L_table")
    for d in TABLE:
        a(".long " + ", ".join("0x%x" % x for x in d))
    a.lines.append(".size L_table, %d" % (64 * len(TABLE)))
    a.label("L_codeend")

    hdr = open("cdna_kernels/%s.s.ref" % NAME).read().split("\n")
    out = []
    for ln in hdr:
        if ln.startswith("; @launch"):
            out.append("; @launch grid=(256,1,1) block=(512,1,1) lds=%d" % LDS_TOTAL)
        elif ln.startswith(";"):
            out.append(ln)
        else:
            break
    out += [
        '.amdgcn_target "amdgcn-amd-amdhsa--gfx950"',
        ".text",
        ".globl %s_kernel" % NAME,
        ".p2align 8",
        ".type %s_kernel,@function" % NAME,
    ]
    out += a.lines
    out += [
        '.section .rodata,"a"',
        ".p2align 6",
        ".amdhsa_kernel %s_kernel" % NAME,
        "  .amdhsa_next_free_vgpr 256",
        "  .amdhsa_next_free_sgpr 96",
        "  .amdhsa_accum_offset 256",
        "  .amdhsa_group_segment_fixed_size 0",
        "  .amdhsa_kernarg_size 56",
        "  .amdhsa_user_sgpr_count 2",
        "  .amdhsa_user_sgpr_kernarg_segment_ptr 1",
        "  .amdhsa_system_sgpr_workgroup_id_x 1",
        ".end_amdhsa_kernel",
        "",
    ]
    return "\n".join(out)


def parse_plan(s):
    out = []
    for (seq, parts, _, _, _), x in zip(DEFAULT_PLAN, s.split(",")):
        qg, npre, thr = x.split(".")
        out.append((seq, parts, int(qg), int(npre), int(thr)))
    return out


if __name__ == "__main__":
    dst = sys.argv[1] if len(sys.argv) > 1 and not sys.argv[1].startswith("--") else "cdna_kernels/%s.s" % NAME

    def opt(n, d):
        for x in sys.argv:
            if x.startswith("--" + n + "="):
                return x.split("=", 1)[1].replace("+", " ")
        return d
    plan = parse_plan(opt("plan", "")) if opt("plan", "") else None
    open(dst, "w").write(gen(stamps=(2 if "--dbg" in sys.argv else 1 if "--stamps" in sys.argv else 0), qf=opt("qf", ""), kvf=opt("kvf", ""),
                             stf=opt("stf", ""), BG=int(opt("bg", "14")), rot="--rot" in sys.argv, abl=opt("abl", ""),
                             plan=plan, SM0=int(opt("sm0", "14")), SM1=int(opt("sm1", "35")),
                             RAMP=int(opt("ramp", "1")), NPF=int(opt("npf", "2")),
                             PFWAIT=int(opt("pfwait", "1")), RAMPD=int(opt("rampd", "2")),
                             pfspec=([] if "--nopf" in sys.argv else None),
                             XC=int(opt("xc", "0")), XM=int(opt("xm", "0")), XMS=int(opt("xms", "2097152")), XMP=int(opt("xmp", "48")), CPF=int(opt("cpf", "1")), EARLY=int(opt("early", "0"))))
    print("wrote", dst)
```

```python
import math
import struct
import sys

NAME = "standalone__varlen_attn_packed__ragged"
CU = [0, 238, 376, 669, 835, 1320, 1545, 1865, 2058]
T, H, D = 2058, 16, 192
RS = H * D * 2
HB = 12288
BLK = 2 * HB
NSLOT = 6
LDS_TOTAL = 163840
CSCALE = (D ** -0.5) * math.log2(math.e)
THR = 1024.0


def f32(x):
    return struct.unpack("<I", struct.pack("<f", x))[0]


RING = NSLOT * BLK
NKB = [(CU[i + 1] - CU[i] + 31) // 32 for i in range(8)]

DEFAULT_PLAN = [(4, [4, 4, 4, 4], 0, 3, 0), (7, [7], 0, 2, 0), (3, [6], 3, 1, 0),
                (6, [4, 4, 2], 5, 1, 0), (2, [4, 4, 2], 5, 1, 0), (1, [5], 8, 1, 0), (0, [4, 4], 8, 1, 0),
                (5, [4, 4], 8, 1, 0)]


def make_wgs(plan):
    wgs = []
    for seq, parts, win, npre, rot in plan:
        nf = NKB[seq] - 1
        t0 = 0
        assert sum(parts) == NKB[seq]
        for r, nt in enumerate(parts):
            rr = ((r * nf) // len(parts)) if rot else 0
            if nt == 2:
                wgs.append(dict(seq=seq, t0=t0, nt=4, dual=True, hb=0, rot=rr, win=win, npre=min(npre, 1)))
            else:
                for hb in range(2):
                    wgs.append(dict(seq=seq, t0=t0, nt=nt, dual=False, hb=hb, rot=rr, win=win,
                                    npre=min(npre, 5 - (nt - 1) // 2)))
            t0 += nt
    assert len(wgs) == 32, len(wgs)
    return wgs


def prefetch_list(spec):
    items = []
    for ten, seq, b0, b1 in spec:
        for b in range(b0, b1 + 1):
            for rg in range(4):
                row = CU[seq] + 32 * b + 8 * rg
                if row < CU[seq + 1]:
                    items.append((ten, row))
    return items


def default_pf(n4=4, n7=2, q7=3):
    spec = [("Q", 7, q7, 6), ("K", 7, 0, 0)]
    for b in range(0, max(n4, n7)):
        if b < n4:
            spec += [("K", 4, b + 1, b + 1), ("V", 4, b, b)]
        if b < n7:
            spec += [("K", 7, b + 1, b + 1), ("V", 7, b, b)]
    return spec


def wave_desc(wg, w, pf):
    seq, nt, dual = wg["seq"], wg["nt"], wg["dual"]
    s0, s1 = CU[seq], CU[seq + 1]
    nkb = NKB[seq]
    nval = (s1 - s0) - 32 * (nkb - 1)
    step = 2 * BLK if dual else BLK
    ns = RING // step
    compute = w < nt
    if dual:
        hb = (w >> 1) & 1
        tile = wg["t0"] + (w & 1)
        so = hb * BLK
        qlds = [12 * HB, 9 * HB, 11 * HB, 7 * HB][w & 3]
        if w >= 4:
            isk, nrg, rg0 = 1 - (w & 1), 4, 0
        else:
            isk, nrg, rg0 = 0, 0, 0
    else:
        hb = wg["hb"]
        tile = wg["t0"] + w
        so = 0
        qlds = (12 - w - (1 if w >= 2 else 0)) * HB
        if nt > 4:
            isk, nrg, rg0 = (1 if w < 4 else 0), 1, w & 3
        elif w >= 4:
            isk, nrg, rg0 = (1 if w < 6 else 0), 2, 2 * (w & 1)
        else:
            isk, nrg, rg0 = 0, 0, 0
    role = (3 if nrg else 2) if compute else (1 if nrg else 0)
    d0 = role | (isk << 2) | (nrg << 3) | ((rg0 & 1) << 6) | (wg["win"] << 28) | (nkb << 10) | (nval << 16) | \
        (wg["rot"] << 22) | (len(pf) << 26)
    k0 = RING - step + so
    ldst0 = (k0 if isk else so + HB) + rg0 * 1024
    d = [d0, s1 * RS, (s0 + 32 * tile) * RS + hb * 384, qlds, (s0 + 8 * rg0) * RS + hb * 384, ldst0, step,
         wg["npre"] + isk, ns - 1 + isk, so, k0, step - so + w * HB]
    for ten, row in pf:
        d.append(row * RS | ({"K": 0, "V": 2, "Q": 1}[ten] << 30))
    d += [0] * (16 - len(d))
    return d


def make_table(plan, pfspec, npf):
    wgs = make_wgs(plan)
    items = prefetch_list(pfspec)
    slots = [(j, w) for w in range(8) for j, wg in enumerate(wgs) if wg["win"] > 0 and w < wg["nt"]]
    assign = {}
    for k, it in enumerate(items):
        key = slots[k % len(slots)]
        if len(assign.setdefault(key, [])) < npf:
            assign[key].append(it)
    tab = []
    for j, wg in enumerate(wgs):
        for w in range(8):
            tab.append(wave_desc(wg, w, assign.get((j, w), [])))
    return wgs, tab


class Asm:
    def __init__(self):
        self.lines = []
        self.nlabel = 0

    def __call__(self, s):
        self.lines.append("    " + s)

    def label(self, name):
        self.lines.append(name + ":")

    def newlabel(self, base):
        self.nlabel += 1
        return "L_%s_%d" % (base, self.nlabel)


def vr(lo, n):
    return "v[%d:%d]" % (lo, lo + n - 1)


def sr(lo, n):
    return "s[%d:%d]" % (lo, lo + n - 1)


class Item:
    def __init__(self, lines, cost, early, late, kind, writes=None, half=None):
        self.lines = lines if isinstance(lines, list) else [lines]
        self.cost, self.early, self.late, self.kind = cost, early, late, kind
        self.writes = writes
        self.half = half
        self.gap = None


def gen(stamps=False, qf="nt", kvf="nt", stf="", plan=None, BG=14, rot=False, abl="", SM0=14, SM1=35, RAMP=1, NIMM=1, pfspec=None, NPF=2, PFWAIT=1, RAMPD=2, XC=0, XM=0, XMS=0x200000, XMP=48, CPF=1, EARLY=0, PKMUL=1, ALIGN=0, APAD=0):
    a = Asm()
    WGS, TABLE = make_table(plan or DEFAULT_PLAN, default_pf() if pfspec is None else pfspec, NPF)
    NST = 8
    DBGWG = [0, 70, 133, 255]
    S_ST = 64

    V_LANE = 0
    V_T = list(range(1, 9))
    V_KA0, V_VA0 = 9, 10
    V_KB = [11, 12, 13, 14]
    V_VB = [15, 16]
    V_DE, V_DO = 17, 18
    V_L, V_M, V_BS, V_NMC = 20, 21, 22, 23
    POOL = 24
    V_P = 72
    V_S = [80, 96]
    V_Q = 112
    V_O = 160
    S_Q, S_K, S_V, S_OUT = 4, 6, 8, 12
    S_WIN, S_XB = 14, 15
    SRD_Q, SRD_KV, SRD_O = 16, 20, 24
    S_W = 28
    S_TMP, S_TMP2, S_TMP3, S_LIM = 29, 30, 31, 91
    S_CF = 32
    S_FL, S_NREC, S_QOFF, S_QLDS, S_GOFF, S_LDST, S_STEP, S_NPRE, S_DEPTH, S_SLOT, S_K0, S_SCR = range(32, 44)
    S_PF = 44
    S_NKB, S_NF, S_NVAL, S_J = 48, 49, 50, 51
    S_LN, S_LB, S_ISK, S_NP, S_REM, S_NEED = 52, 53, 54, 55, 62, 63
    S_C, S_THR = 56, 57
    S_RET = 58
    S_RET2 = 60
    S_PC = 92
    S_CORR = 90
    WINS = [0, 4, 2, 1]

    def stamp(i, real=False, early=False):
        if EARLY and i in (5, 6) and not early:
            return
        if early and not EARLY:
            return
        if stamps:
            a(("s_memrealtime %s" if real else "s_memtime %s") % sr(S_ST + 2 * i, 2))
            a("s_waitcnt lgkmcnt(0)")

    def stamp_flush(iters=False):
        if not stamps:
            return
        a("s_waitcnt vmcnt(0)")
        stamp(1, True)
        if not EARLY:
            stamp(7)
        if stamps == 2:
            lab = a.newlabel("dbg")
            a("s_cmp_lg_u32 s%d, 0" % S_W)
            a("s_cbranch_scc1 %s" % lab)
            a("s_mov_b32 s83, 99")
            for k, wg in enumerate(DBGWG):
                a("s_cmp_eq_u32 s2, %d" % wg)
                a("s_cselect_b32 s83, %d, s83" % k)
            a("s_cmp_eq_u32 s83, 99")
            a("s_cbranch_scc1 %s" % lab)
            a("s_load_dwordx2 s[80:81], s[0:1], 40")
            a("s_waitcnt lgkmcnt(0)")
            a("s_mov_b32 s84, s80")
            a("s_mov_b32 s85, s81")
            a("s_mov_b32 s86, 256")
            a("s_mov_b32 s87, 0x00020000")
            a("s_mov_b64 exec, 1")
            a("s_lshl_b32 s83, s83, 4")
            a("v_mov_b32 v1, s83")
            a("v_mov_b32 v4, s%d" % S_ST)
            a("v_mov_b32 v5, s%d" % (S_ST + 2))
            a("s_sub_u32 s82, s%d, s%d" % (S_ST + 8, S_ST + 4))
            a("v_mov_b32 v6, s82")
            a("s_sub_u32 s82, s%d, s%d" % (S_ST + 14, S_ST + 4))
            a("v_mov_b32 v7, s82")
            a("buffer_store_dwordx4 v[4:7], v1, s[84:87], 0 offen")
            a.label(lab)
            return
        a("s_load_dwordx2 s[80:81], s[0:1], 48")
        a("s_waitcnt lgkmcnt(0)")
        a("s_mov_b32 s84, s80")
        a("s_mov_b32 s85, s81")
        a("s_mov_b32 s86, 0x100000")
        a("s_mov_b32 s87, 0x00020000")
        a("s_lshl_b32 s82, s2, 3")
        a("s_add_u32 s82, s82, s%d" % S_W)
        a("s_mul_i32 s83, s82, %d" % (NST * 8))
        a("v_mov_b32 v1, s83")
        a("s_mov_b64 exec, 1")
        for i in range(NST):
            a("v_mov_b32 v2, s%d" % (S_ST + 2 * i))
            a("v_mov_b32 v3, s%d" % (S_ST + 2 * i + 1))
            a("buffer_store_dwordx2 v[2:3], v1, s[84:87], 0 offen offset:%d" % (8 * i))
            a("s_nop 1")
        if iters:
            a("s_mov_b64 exec, -1")
            a("s_lshl_b32 s82, s82, 8")
            a("s_add_u32 s82, s82, 0x80000")
            a("v_lshlrev_b32 v1, 2, v0")
            a("v_add_u32 v1, s82, v1")
            a("buffer_store_dword v90, v1, s[84:87], 0 offen")

    a.label(NAME + "_kernel")
    a("s_cmp_ge_u32 s2, 256")
    a("s_cbranch_scc1 L_end")
    stamp(0, True)
    stamp(2)
    a("s_load_dwordx8 s[4:11], s[0:1], 0")
    a("s_load_dwordx2 s[12:13], s[0:1], 32")
    a("s_getpc_b64 %s" % sr(S_PC, 2))
    a.label("L_pc")
    if CPF:
        a("v_lshlrev_b32 v2, 7, v0")
        a("v_min_u32 v2, L_codeend-L_pc-4, v2")
        a("global_load_dword v19, v2, %s" % sr(S_PC, 2))
    a("v_lshrrev_b32 v1, 6, v0")
    a("s_nop 0")
    a("v_readfirstlane_b32 s%d, v1" % S_W)
    a("s_and_b32 s%d, s2, 0xf8" % S_TMP)
    a("s_add_u32 s%d, s%d, L_table-L_pc" % (S_PC, S_PC))
    a("s_addc_u32 s%d, s%d, 0" % (S_PC + 1, S_PC + 1))
    a("s_add_u32 s%d, s%d, s%d" % (S_TMP, S_TMP, S_W))
    a("s_lshl_b32 s%d, s%d, 6" % (S_TMP, S_TMP))
    a("s_load_dwordx16 %s, %s, s%d" % (sr(S_CF, 16), sr(S_PC, 2), S_TMP))
    a("v_and_b32 v0, 63, v0")
    a("s_and_b32 s%d, s2, 7" % S_XB)
    a("s_mul_i32 s%d, s%d, 768" % (S_XB, S_XB))
    a("v_lshrrev_b32 v1, 3, v0")
    a("v_and_b32 v2, 7, v0")
    a("v_bfe_u32 v3, v0, 4, 2")
    a("v_bfe_u32 v4, v0, 4, 1")
    a("v_mul_u32_u24 v1, %d, v1" % RS)
    a("v_xor_b32 v3, v2, v3")
    a("v_lshlrev_b32 v4, 2, v4")
    a("v_xor_b32 v4, v2, v4")
    a("v_min_u32 v2, 5, v2")
    a("v_lshl_add_u32 v5, v3, 4, v1")
    a("v_lshl_add_u32 v7, v4, 4, v1")
    a("v_xor_b32 v6, 64, v5")
    a("v_lshl_add_u32 v8, v2, 7, v1")
    a("s_mov_b32 s%d, 0x00020000" % (SRD_Q + 3))
    a("s_mov_b32 s%d, 0x00020000" % (SRD_KV + 3))
    a("s_mov_b32 s%d, 0x00020000" % (SRD_O + 3))
    a("s_mov_b32 s%d, %d" % (SRD_KV + 2, T * RS))
    a("s_mov_b32 s%d, 0x%x" % (S_C, f32(CSCALE)))
    a("s_mov_b32 s%d, 0x%x" % (S_THR, f32(THR)))
    a("s_mov_b32 s%d, 0" % S_LN)
    a("s_waitcnt lgkmcnt(0)")
    stamp(3)
    a("s_mov_b32 s%d, s%d" % (SRD_Q, S_Q))
    a("s_mov_b32 s%d, s%d" % (SRD_Q + 1, S_Q + 1))
    if XC:
        a("s_mov_b32 s90, %d" % XC)
        a.label("L_xc")
        for i in range(32):
            a("v_add_f32 v100, v100, v100")
        a("s_sub_u32 s90, s90, 1")
        a("s_cmp_lg_u32 s90, 0")
        a("s_cbranch_scc1 L_xc")
    if XM:
        a("s_load_dwordx2 s[80:81], s[0:1], %d" % XMP)
        a("s_waitcnt lgkmcnt(0)")
        a("s_mov_b32 s84, s80")
        a("s_mov_b32 s85, s81")
        a("s_mov_b32 s86, %d" % (0x10000000 if XMP == 48 else T * RS))
        a("s_mov_b32 s87, 0x00020000")
        a("s_lshl_b32 s82, s2, 3")
        a("s_add_u32 s82, s82, s%d" % S_W)
        a("s_lshl_b32 s82, s82, 10")
        a("v_lshlrev_b32 v100, 4, v0")
        for i in range(XM):
            a("s_add_u32 s83, s82, %d" % (i * XMS))
            a("buffer_load_dwordx4 v[104:107], v100, s[84:87], s83 offen nt")
            a("s_waitcnt vmcnt(0)")
    a("s_mov_b32 s%d, s%d" % (SRD_Q + 2, S_NREC))
    a("s_add_u32 s%d, s%d, s%d" % (S_QOFF, S_QOFF, S_XB))
    a("s_lshr_b32 s%d, s%d, 28" % (S_WIN, S_FL))
    a("s_bitcmp1_b32 s%d, 1" % S_FL)
    a("s_cbranch_scc0 L_noq")

    def q_loads(ser):
        for rg in range(4):
            a("s_add_u32 s%d, s%d, %d" % (S_TMP, S_QOFF, rg * 8 * RS))
            for lc in range(3):
                a("s_add_u32 m0, s%d, %d" % (S_QLDS, lc * 4096 + rg * 1024 - lc * 128))
                k = 3 * rg + lc
                if ser and 1 <= k <= 11:
                    lab = a.newlabel("qs")
                    a("s_cmp_lt_u32 s%d, %d" % (S_WIN, k))
                    a("s_cbranch_scc1 %s" % lab)
                    a("s_waitcnt vmcnt(0)")
                    a.label(lab)
                else:
                    a("s_nop 0")
                a("buffer_load_dwordx4 v%d, %s, s%d offen offset:%d %s lds" % (5 + (rg & 1), sr(SRD_Q, 4), S_TMP, lc * 128, qf))
    a("s_cmp_lg_u32 s%d, 0" % S_WIN)
    a("s_cbranch_scc1 L_qser")
    q_loads(False)
    a.label("L_noq")
    stamp(5, early=True)
    a("s_bfe_u32 s%d, s%d, 0x6000a" % (S_NKB, S_FL))
    a("s_bfe_u32 s%d, s%d, 0x60010" % (S_NVAL, S_FL))
    a("s_bfe_u32 s%d, s%d, 0x40016" % (S_LB, S_FL))
    a("s_bfe_u32 s%d, s%d, 0x10002" % (S_ISK, S_FL))
    a("s_bfe_u32 s%d, s%d, 0x30003" % (S_NP, S_FL))
    a("s_mul_i32 s%d, s%d, 3" % (S_NP, S_NP))
    a("s_sub_u32 s%d, s%d, 1" % (S_NF, S_NKB))
    a("s_mov_b32 s%d, s%d" % (SRD_KV + 2, S_NREC))
    a("s_mov_b32 s%d, s%d" % (SRD_O + 2, S_NREC))
    a("s_mov_b32 s%d, s%d" % (SRD_O, S_OUT))
    a("s_mov_b32 s%d, s%d" % (SRD_O + 1, S_OUT + 1))
    a("s_add_u32 s%d, s%d, s%d" % (S_GOFF, S_GOFF, S_XB))
    a("s_bitcmp1_b32 s%d, 6" % S_FL)
    a("s_cselect_b64 vcc, -1, 0")
    a("v_cndmask_b32 v%d, v5, v6, vcc" % V_DE)
    a("v_mov_b32 v%d, v6" % V_DO)
    a("s_cmp_eq_u32 s%d, 0" % S_ISK)
    a("s_cselect_b64 vcc, -1, 0")
    a("s_cselect_b32 s%d, s%d, s%d" % (SRD_KV, S_V, S_K))
    a("s_cselect_b32 s%d, s%d, s%d" % (SRD_KV + 1, S_V + 1, S_K + 1))
    a("v_cndmask_b32 v%d, v%d, v7, vcc" % (V_DE, V_DE))
    a("v_cndmask_b32 v%d, v%d, v7, vcc" % (V_DO, V_DO))
    a("s_mov_b32 s%d, s%d" % (S_NEED, S_ISK))

    def load_body(np_static, win=0, first=False):
        nop = ("s_waitcnt vmcnt(%d)" % (win - 1)) if win else "s_nop 0"
        a("s_cmp_eq_u32 s%d, s%d" % (S_LN, S_NF))
        a("s_cselect_b32 s%d, s%d, s%d" % (S_TMP, S_NF, S_LB))
        a("s_mul_i32 s%d, s%d, %d" % (S_TMP, S_TMP, 32 * RS))
        a("s_add_u32 s%d, s%d, s%d" % (S_TMP, S_TMP, S_GOFF))
        labd = a.newlabel("ldd")
        for rg in range(1 if np_static else 4):
            if rg:
                if rg != 3:
                    a("s_cmp_eq_u32 s%d, %d" % (S_NP, 3 * rg))
                    a("s_cbranch_scc1 %s" % labd)
                a("s_add_u32 s%d, s%d, %d" % (S_TMP, S_TMP, 8 * RS))
            for lc in range(3):
                a("s_add_u32 m0, s%d, %d" % (S_LDST, rg * 1024 + lc * 4096 - lc * 128))
                a(nop)
                a("buffer_load_dwordx4 v%d, %s, s%d offen offset:%d %s lds" % (
                    V_DO if rg & 1 else V_DE, sr(SRD_KV, 4), S_TMP, lc * 128, kvf))
                if first and rg == 0 and lc == 0:
                    lab, top = a.newlabel("fv"), a.newlabel("fvt")
                    a("s_mov_b32 s%d, s%d" % (S_REM, S_WIN))
                    a.label(top)
                    a("s_cmp_eq_u32 s%d, 0" % S_REM)
                    a("s_cbranch_scc1 %s" % lab)
                    a("s_waitcnt vmcnt(0)")
                    a("s_mul_i32 s%d, s%d, %d" % (S_TMP2, S_REM, 32 * RS))
                    a("s_add_u32 s%d, s%d, s%d" % (S_TMP2, S_TMP2, S_TMP))
                    a("buffer_load_dword v19, v%d, %s, s%d offen" % (V_DE, sr(SRD_KV, 4), S_TMP2))
                    a("s_sub_u32 s%d, s%d, 1" % (S_REM, S_REM))
                    a("s_branch %s" % top)
                    a.label(lab)
        a.label(labd)
        a("s_add_u32 s%d, s%d, 1" % (S_LN, S_LN))
        a("s_add_u32 s%d, s%d, 1" % (S_LB, S_LB))
        a("s_cmp_ge_u32 s%d, s%d" % (S_LB, S_NF))
        a("s_cselect_b32 s%d, 0, s%d" % (S_LB, S_LB))
        a("s_add_u32 s%d, s%d, s%d" % (S_LDST, S_LDST, S_STEP))
        a("s_sub_u32 s%d, s%d, %d" % (S_TMP2, S_LDST, RING))
        a("s_cmp_ge_u32 s%d, %d" % (S_LDST, RING))
        a("s_cselect_b32 s%d, s%d, s%d" % (S_LDST, S_TMP2, S_LDST))

    def load_upto(limit_sgpr, np_static, win=0):
        top, done = a.newlabel("lu"), a.newlabel("lud")
        a("s_min_u32 s%d, s%d, s%d" % (limit_sgpr, limit_sgpr, S_NKB))
        a("s_cmp_ge_u32 s%d, s%d" % (S_LN, limit_sgpr))
        a("s_cbranch_scc1 %s" % done)
        a.label(top)
        load_body(np_static, win)
        a("s_cmp_lt_u32 s%d, s%d" % (S_LN, limit_sgpr))
        a("s_cbranch_scc1 %s" % top)
        a.label(done)

    def pre_loads(np_static):
        if np_static is None:
            load_body(None, 0, True)
        load_upto(S_NPRE, np_static)

    def wait_cascade(np_static):
        done = a.newlabel("wc")
        a("s_min_u32 s%d, s%d, s%d" % (S_REM, S_NEED, S_LN))
        a("s_sub_u32 s%d, s%d, s%d" % (S_REM, S_LN, S_REM))
        if np_static is None:
            a("s_mul_i32 s%d, s%d, s%d" % (S_REM, S_REM, S_NP))
            vals = sorted(set([3 * r for r in range(6)] + [6 * r for r in range(6)]), reverse=True)
            cmpv = vals
        else:
            vals = [np_static * r for r in range(5, -1, -1)]
            cmpv = list(range(5, -1, -1))
        for v, c in zip(vals[:-1], cmpv[:-1]):
            a("s_waitcnt vmcnt(%d)" % v)
            a("s_cmp_ge_u32 s%d, %d" % (S_REM, c))
            a("s_cbranch_scc1 %s" % done)
        a("s_waitcnt vmcnt(0)")
        a.label(done)

    a("s_bitcmp1_b32 s%d, 1" % S_FL)
    a("s_cbranch_scc1 L_compute")

    a("s_cmp_eq_u32 s%d, 0" % S_NP)
    a("s_cbranch_scc1 L_idle")
    pre_loads(None)
    stamp(7, early=True)
    wait_cascade(None)
    stamp(6, early=True)
    a("s_barrier")
    stamp(4)
    a("s_mov_b32 s%d, s%d" % (S_TMP3, S_DEPTH))
    a("s_mov_b32 s%d, 0" % S_J)
    if stamps:
        a("v_mov_b32 v90, 0")
    a.label("L_ld_loop")
    a("s_add_u32 s%d, s%d, %d" % (S_LIM, S_LN, RAMP))
    a("s_min_u32 s%d, s%d, s%d" % (S_LIM, S_LIM, S_TMP3))
    load_upto(S_LIM, None)
    a("s_add_u32 s%d, s%d, 1" % (S_NEED, S_NEED))
    wait_cascade(None)
    if stamps:
        a("s_memtime s[88:89]")
        a("s_waitcnt lgkmcnt(0)")
        a("s_add_u32 m0, s%d, 32" % S_J)
        a("s_nop 0")
        a("v_writelane_b32 v90, s88, m0")
    a("s_barrier")
    if stamps:
        a("s_memtime s[88:89]")
        a("s_memrealtime s[94:95]")
        a("s_waitcnt lgkmcnt(0)")
        a("s_mov_b32 m0, s%d" % S_J)
        a("s_nop 0")
        a("v_writelane_b32 v90, s88, m0")
        a("s_add_u32 m0, s%d, 16" % S_J)
        a("s_nop 0")
        a("v_writelane_b32 v90, s94, m0")
    a("s_add_u32 s%d, s%d, 1" % (S_TMP3, S_TMP3))
    a("s_add_u32 s%d, s%d, 1" % (S_J, S_J))
    a("s_cmp_lt_u32 s%d, s%d" % (S_J, S_NKB))
    a("s_cbranch_scc1 L_ld_loop")
    stamp(5)
    stamp(6)
    stamp_flush(True)
    a("s_endpgm")
    a.label("L_idle")
    a("s_add_u32 s%d, s%d, 1" % (S_J, S_NKB))
    a.label("L_idle_loop")
    a("s_barrier")
    a("s_sub_u32 s%d, s%d, 1" % (S_J, S_J))
    a("s_cmp_lg_u32 s%d, 0" % S_J)
    a("s_cbranch_scc1 L_idle_loop")
    a.label("L_end")
    a("s_endpgm")

    a.label("L_qser")
    a("s_bfe_u32 s%d, s%d, 0x2001a" % (S_TMP3, S_FL))
    for i in range(NPF):
        a("s_cmp_le_u32 s%d, %d" % (S_TMP3, i))
        a("s_cbranch_scc1 L_pfdone")
        a("s_bitcmp1_b32 s%d, 31" % (S_PF + i))
        a("s_cselect_b32 s%d, s%d, s%d" % (SRD_KV, S_V, S_K))
        a("s_cselect_b32 s%d, s%d, s%d" % (SRD_KV + 1, S_V + 1, S_K + 1))
        a("s_bitcmp1_b32 s%d, 30" % (S_PF + i))
        a("s_cselect_b32 s%d, s%d, s%d" % (SRD_KV, S_Q, SRD_KV))
        a("s_cselect_b32 s%d, s%d, s%d" % (SRD_KV + 1, S_Q + 1, SRD_KV + 1))
        a("s_and_b32 s%d, s%d, 0xffffff" % (S_TMP, S_PF + i))
        a("s_add_u32 s%d, s%d, s%d" % (S_TMP, S_TMP, S_XB))
        a("buffer_load_dword v19, v8, %s, s%d offen %s" % (sr(SRD_KV, 4), S_TMP, kvf))
    a.label("L_pfdone")
    q_loads(True)
    a("s_branch L_noq")
    a.label("L_compute")
    lab_nl = a.newlabel("nl")
    a("s_cmp_eq_u32 s%d, 0" % S_NP)
    a("s_cbranch_scc1 %s" % lab_nl)
    pre_loads(3)
    a.label(lab_nl)
    r, h, f, h4 = V_T[0], V_T[1], V_T[2], V_T[7]
    a("v_and_b32 v%d, 31, v%d" % (r, V_LANE))
    a("v_lshrrev_b32 v%d, 5, v%d" % (h, V_LANE))
    a("v_lshlrev_b32 v%d, 2, v%d" % (h4, h))
    a("v_bfe_u32 v%d, v%d, 1, 3" % (f, r))
    a("v_xor_b32 v%d, v%d, v%d" % (f, f, h))
    a("v_lshlrev_b32 v%d, 4, v%d" % (f, f))
    a("v_lshl_add_u32 v%d, v%d, 7, v%d" % (V_KA0, r, f))
    rr, c, dh, b = V_T[3], V_T[4], V_T[5], V_T[6]
    a("v_bfe_u32 v%d, v%d, 2, 2" % (rr, V_LANE))
    a("v_and_b32 v%d, 3, v%d" % (c, V_LANE))
    a("v_bfe_u32 v%d, v%d, 4, 1" % (dh, V_LANE))
    a("v_bfe_u32 v%d, v%d, 3, 1" % (b, V_LANE))
    a("v_add_u32 v%d, v%d, v%d" % (rr, rr, h4))
    a("v_lshlrev_b32 v%d, 7, v%d" % (V_VA0, rr))
    a("v_lshl_add_u32 v%d, v%d, 6, v%d" % (V_VA0, b, V_VA0))
    a("v_lshl_add_u32 v%d, v%d, 5, v%d" % (V_VA0, dh, V_VA0))
    a("v_lshl_add_u32 v%d, v%d, 3, v%d" % (V_VA0, c, V_VA0))
    for i in range(48):
        a("v_pk_mov_b32 %s, 0, 0" % vr(V_O + 2 * i, 2)) if False else None
    for i in range(96):
        a("v_mov_b32 v%d, 0" % (V_O + i))
    a("v_mov_b32 v%d, 0" % V_L)
    a("v_add_u32 v%d, s%d, v%d" % (V_KB[0], S_QLDS, V_KA0))
    for j in range(1, 4):
        a("v_xor_b32 v%d, %d, v%d" % (V_KB[j], 32 * j, V_KB[0]))
    stamp(7, early=True)
    wait_cascade(3)
    stamp(6, early=True)
    for ks in range(12):
        a("ds_read_b128 %s, v%d offset:%d" % (vr(V_Q + 4 * ks, 4), V_KB[ks & 3], (ks >> 2) * 4096))
    a("v_add_u32 v%d, s%d, v%d" % (V_KB[0], S_K0, V_KA0))
    for j in range(1, 4):
        a("v_xor_b32 v%d, %d, v%d" % (V_KB[j], 32 * j, V_KB[0]))
    a("s_waitcnt lgkmcnt(0)")
    a("s_barrier")
    stamp(4)
    for ks in range(12):
        a("ds_read_b128 %s, v%d offset:%d" % (vr(POOL + 4 * ks, 4), V_KB[ks & 3], (ks >> 2) * 4096))
    a("s_mov_b32 s%d, 0" % S_J)
    a("s_mov_b32 s%d, 0" % S_CORR)
    for ks in range(12):
        a("s_waitcnt lgkmcnt(%d)" % (11 - ks))
        a("v_mfma_f32_32x32x16_bf16 %s, %s, %s, %s" % (
            vr(V_S[0], 16), vr(POOL + 4 * ks, 4), vr(V_Q + 4 * ks, 4), "0" if ks == 0 else vr(V_S[0], 16)))

    def block_max(S, mx, t2):
        a("v_max3_f32 v%d, v%d, v%d, v%d" % (mx, S, S + 1, S + 2))
        for i in range(3, 15, 2):
            a("v_max3_f32 v%d, v%d, v%d, v%d" % (mx, mx, S + i, S + i + 1))
        a("v_max_f32 v%d, v%d, v%d" % (mx, mx, S + 15))
        a("v_mov_b32 v%d, v%d" % (t2, mx))
        a("s_nop 1")
        a("v_permlane32_swap_b32 v%d, v%d" % (t2, mx))
        a("s_nop 1")
        a("v_max_f32 v%d, v%d, v%d" % (mx, mx, t2))

    stubs = []

    def sm_seq(par):
        S = V_S[par]
        tm = V_T
        out = []

        def fma(k):
            return ("v_fma_f32 v%d, v%d, s%d, v%d" % (tm[k % 8], S + k, S_C, V_NMC), 1, k // 8, 0)

        def ex(k):
            return ("v_exp_f32 v%d, v%d" % (tm[k % 8], tm[k % 8]), 2, k // 8, 0)

        def cvt(p):
            return ("v_cvt_pk_bf16_f32 v%d, v%d, v%d" % (V_P + p, tm[(2 * p) % 8], tm[(2 * p + 1) % 8]), 1, p // 4,
                    17 if p < 4 else 23)

        def add(k):
            if k == 1:
                return ("v_add_f32 v%d, v%d, v%d" % (V_BS, tm[0], tm[1]), 1, 0, 0)
            return ("ADD %d" % k, 1, k // 8, 0)
        for hf in range(2):
            o = 8 * hf
            p = 4 * hf
            out += [fma(o), fma(o + 1), ex(o), fma(o + 2), ex(o + 1), fma(o + 3), ex(o + 2), fma(o + 4), ex(o + 3)]
            if hf:
                out += [add(o)]
            out += [add(o + 1), fma(o + 5), ex(o + 4), cvt(p), add(o + 2), fma(o + 6), ex(o + 5), cvt(p + 1), add(o + 3),
                    fma(o + 7), ex(o + 6), add(o + 4), ex(o + 7), cvt(p + 2), add(o + 5), add(o + 6), cvt(p + 3),
                    add(o + 7)]
        return out

    def schedule(par, duty):
        gaps = {g: [] for g in range(BG, BG + 26)}
        load = {g: 0.0 for g in range(24)}
        load[BG % 24] += 2
        load[(BG - 2) % 24] += 4
        load[(BG - 1) % 24] += 6
        load[23] += 2

        def put(it, g):
            it.gap = g
            gaps[g].append(it)
            load[g % 24] += it.cost
        put(Item(["MASK %d" % par], 2, 0, 0, "mask"), max(SM0, BG))
        if duty:
            put(Item(["DUTYLD"], 2, 0, 0, "duty"), BG + 2)
            put(Item(["DUTYWAIT"], 6, 0, 0, "duty"), BG + 24 - 4)
        kg = []
        g = BG
        for i in range(12):
            g = max(g, 12 + i)
            while kg.count(g) >= (2 if g < BG + 2 else 1):
                g += 1
            kg.append(g)
            put(Item("ds_read_b128 %s, v%d offset:%d" % (vr(POOL + 4 * i, 4), V_KB[i & 3], (i >> 2) * 4096),
                     1, 0, 0, "K", ("F", i)), g)
            assert g <= 24 + i - 4
        for idx in range(12):
            s, t = divmod(idx, 6)
            for u in range(2):
                put(Item("ds_read_b64_tr_b16 %s, v%d offset:%d" % (
                    vr(POOL + 4 * idx + 2 * u, 2), V_VB[t & 1], HB + (16 * s + 8 * u) * 128 + (t >> 1) * 4096),
                    1, 0, 0, "V%d" % s, ("F", idx)), 24 + idx)
        e, l = max(SM0, BG), SM1
        its = [Item(txt, cost, max(mg, 24 if hf else 0), l, "sm", half=hf) for txt, cost, hf, mg in sm_seq(par)]
        its.append(Item(["CHECK %d 2" % par], 3, 0, l, "chk"))
        tot = sum(v.cost for v in its) + sum(load[g % 24] for g in range(e, l + 1))
        target = tot / (l - e + 1)
        g = e
        exc = 0.0
        for it in its:
            while g < l and (load[g % 24] + it.cost / 2.0 > target + exc or g < it.early):
                exc += target - load[g % 24]
                g += 1
            put(it, g)
        return gaps, load

    def mfma_for(slot, par):
        if slot < 12:
            Sn = V_S[par ^ 1]
            txt = "v_mfma_f32_32x32x16_bf16 %s, %s, %s, %s" % (
                vr(Sn, 16), vr(POOL + 4 * slot, 4), vr(V_Q + 4 * slot, 4), "0" if slot == 0 else vr(Sn, 16))
            return txt, ("F", slot), "qk"
        idx = slot - 12
        s, t = divmod(idx, 6)
        txt = "v_mfma_f32_32x32x16_bf16 %s, %s, %s, %s" % (
            vr(V_O + 16 * t, 16), vr(POOL + 4 * idx, 4), vr(V_P + 4 * s, 4), vr(V_O + 16 * t, 16))
        return txt, ("F", idx), "pv%d" % s

    def emit_lines(lines, tailmode=False):
        for ln in lines:
            if ln.startswith("CHECK"):
                _, par, mode = ln.split()
                stub, back = a.newlabel("slow"), a.newlabel("back")
                a("v_cmp_lt_f32 vcc, s%d, v%d" % (S_THR, V_BS))
                a("s_cbranch_vccnz %s" % stub)
                a.label(back)
                a("v_add_f32 v%d, v%d, v%d" % (V_L, V_L, V_BS))
                stubs.append((stub, "L_slow_%s_%s" % (par, mode), back))
            elif ln.startswith("MASK"):
                _, par = ln.split()
                stub, back = a.newlabel("mstub"), a.newlabel("mback")
                a("s_cmp_eq_u32 s%d, s%d" % (S_J, S_NF))
                a("s_cbranch_scc1 %s" % stub)
                a.label(back)
                stubs.append((stub, "L_mask_%s" % par, back))
            elif ln.startswith("ADD"):
                k = int(ln.split()[1])
                if tailmode and k == 8:
                    a("v_mov_b32 v%d, v%d" % (V_BS, V_T[0]))
                else:
                    a("v_add_f32 v%d, v%d, v%d" % (V_BS, V_BS, V_T[k % 8]))
            elif ln == "DUTYLD":
                stub, back = a.newlabel("dl"), a.newlabel("dlb")
                a("s_cmp_lt_u32 s%d, s%d" % (S_LN, S_NKB))
                a("s_cbranch_scc1 %s" % stub)
                a.label(back)
                stubs.append((stub, "L_dutyld", back))
            elif ln == "DUTYWAIT":
                a("s_add_u32 s%d, s%d, 1" % (S_NEED, S_NEED))
                wait_cascade(3)
            else:
                a(ln)

    def skip_item(it):
        return ("L" in abl and it.writes is not None) or ("S" in abl and it.kind in ("sm", "chk"))

    def emit_stream(seq, outstanding, tailmode=False):
        issued = list(outstanding)
        done = 0
        for idx, e in enumerate(seq):
            if e[0] == "m":
                frag = e[2]
                need = max([k for k, fr in enumerate(issued) if fr == frag], default=-1) + 1
                if need > done:
                    tgt = need
                    cnt = 0
                    for e2 in seq[idx + 1:]:
                        if e2[0] == "m":
                            n2 = max([k for k, fr in enumerate(issued) if fr == e2[2]], default=-1) + 1
                            if n2 > tgt and n2 <= len(issued) - 6 and cnt < 5:
                                tgt = n2
                                cnt += 1
                            else:
                                break
                    n = len(issued) - tgt
                    a("s_waitcnt lgkmcnt(%d)" % min(15, n))
                    done = len(issued) - min(15, n)
                a(e[1])
            elif e[0] == "i":
                it = e[1]
                if skip_item(it):
                    continue
                emit_lines(it.lines, tailmode)
                if it.writes is not None:
                    issued.append(it.writes)
            elif e[0] == "bar":
                a("s_waitcnt lgkmcnt(0)")
                a("s_barrier")
                issued, done = [], 0
            elif e[0] == "raw":
                emit_lines([e[1]], tailmode)
            elif e[0] == "label":
                a.label(e[1])

    def addr_lines():
        return (["v_add_u32 v%d, s%d, v%d" % (V_KB[0], S_SLOT, V_KA0), "v_add_u32 v%d, s%d, v%d" % (V_VB[0], S_SLOT, V_VA0)] +
                ["v_xor_b32 v%d, %d, v%d" % (V_KB[j], 32 * j, V_KB[0]) for j in range(1, 4)] +
                ["v_xor_b32 v%d, 64, v%d" % (V_VB[1], V_VB[0])])

    def compute_path(duty):
        sfx = "d" if duty else "n"
        scheds = [schedule(0, duty), schedule(1, duty)]
        sys.stderr.write("gap loads (%s): %s\n" % (sfx, " ".join("%.0f" % scheds[0][1][g] for g in range(24))))

        def next_items(par):
            return [it for g in range(BG, 24) for it in scheds[par][0][g]]

        def nfr(par):
            return [it.writes for it in next_items(par) if it.writes is not None and not skip_item(it)]

        def body(par):
            cur, nxt = scheds[par][0], scheds[par ^ 1][0]
            seq = []
            for slot in range(24):
                txt, frag, kind = mfma_for(slot, par)
                seq.append(("m", txt, frag))
                for it in cur.get(slot + 24, []):
                    seq.append(("i", it))
                if slot == BG - 2:
                    seq += [("raw", "s_add_u32 s%d, s%d, s%d" % (S_SLOT, S_SLOT, S_STEP)),
                            ("raw", "s_sub_u32 s%d, s%d, %d" % (S_TMP3, S_SLOT, RING)),
                            ("raw", "s_cselect_b32 s%d, s%d, s%d" % (S_SLOT, S_SLOT, S_TMP3)),
                            ("raw", "s_add_u32 s%d, s%d, 1" % (S_J, S_J))]
                if slot == BG - 1:
                    seq += [("raw", x) for x in addr_lines()]
                if slot == BG:
                    seq.append(("bar",))
                if slot >= BG:
                    for it in nxt.get(slot, []):
                        seq.append(("i", it))
            return seq

        def tail(par):
            cur = scheds[par][0]
            rest = [it for g in range(24, BG + 26) for it in cur[g]]
            assert all(it.half != 1 for it in next_items(par)), "second half started too early"
            vreads = [it for it in rest if it.kind in ("V0", "V1")]
            h0 = [it for it in rest if it.kind == "sm" and it.half == 0]
            h1 = [it for it in rest if it.kind == "sm" and it.half == 1]
            seq = []
            v0 = [it for it in vreads if it.kind == "V0"]
            v1 = [it for it in vreads if it.kind == "V1"]
            k = 0
            for it in v0:
                seq.append(("i", it))
                if k < len(h0):
                    seq.append(("i", h0[k]))
                    k += 1
            for it in h0[k:]:
                seq.append(("i", it))
            seq.append(("raw", "CHECK %d 0" % par))
            seq.append(("raw", "s_cmp_le_u32 s%d, 16" % S_NVAL))
            seq.append(("raw", "s_cbranch_scc1 L_short_%s%d" % (sfx, par)))
            k = 0
            kv = 0
            per = (len(h1) + 5) // 6
            for t in range(6):
                txt, frag, kind = mfma_for(12 + t, par)
                seq.append(("m", txt, frag))
                for it in v1[2 * t:2 * t + 2]:
                    seq.append(("i", it))
                for it in h1[k:k + per]:
                    seq.append(("i", it))
                k += per
            seq.append(("raw", "CHECK %d 1" % par))
            for t in range(6):
                txt, frag, kind = mfma_for(18 + t, par)
                seq.append(("m", txt, frag))
            seq.append(("raw", "s_branch L_epi"))
            short = [("label", "L_short_%s%d" % (sfx, par)), ("raw", "s_waitcnt lgkmcnt(0)")]
            for t in range(6):
                txt, frag, kind = mfma_for(12 + t, par)
                short.append(("raw", txt))
            short.append(("raw", "s_branch L_epi"))
            return seq, short

        if duty:
            a("s_add_u32 s%d, s%d, %d" % (S_LIM, S_LN, RAMPD))
            a("s_min_u32 s%d, s%d, s%d" % (S_LIM, S_LIM, S_DEPTH))
            load_upto(S_LIM, 3)
            a("s_add_u32 s%d, s%d, 1" % (S_NEED, S_NEED))
            wait_cascade(3)
        for x in addr_lines():
            a(x)
        a("s_nop 6")
        block_max(V_S[0], V_M, V_T[1])
        a("v_mul_f32 v%d, s%d, v%d" % (V_NMC, S_C, V_M))
        a("v_sub_f32 v%d, 0, v%d" % (V_NMC, V_NMC))
        emit_stream([("bar",)] + [("i", it) for it in next_items(0)], [])
        if ALIGN:
            a("s_branch L_loop_" + sfx)
            a.lines.append(".p2align %d" % ALIGN)
            for _ in range(APAD):
                a("s_nop 0")
        a.label("L_loop_" + sfx)
        emit_stream(body(0), nfr(0))
        a("s_cmp_eq_u32 s%d, s%d" % (S_J, S_NF))
        a("s_cbranch_scc1 L_tail1_" + sfx)
        emit_stream(body(1), nfr(1))
        a("s_cmp_lg_u32 s%d, s%d" % (S_J, S_NF))
        a("s_cbranch_scc1 L_loop_" + sfx)
        t0, s0 = tail(0)
        t1, s1 = tail(1)
        emit_stream(t0, nfr(0), True)
        a.label("L_tail1_" + sfx)
        emit_stream(t1, nfr(1), True)
        emit_stream(s0, [], True)
        emit_stream(s1, [], True)

    a("s_cmp_lg_u32 s%d, 0" % S_NP)
    a("s_cbranch_scc1 L_duty_path")
    compute_path(False)
    a.label("L_duty_path")
    compute_path(True)

    a.label("L_epi")
    stamp(5)
    a("s_add_u32 s%d, s%d, s%d" % (S_TMP, S_SLOT, S_SCR))
    a("s_sub_u32 s%d, s%d, %d" % (S_TMP2, S_TMP, RING))
    a("s_cselect_b32 s%d, s%d, s%d" % (S_TMP, S_TMP, S_TMP2))
    a("v_mov_b32 v%d, v%d" % (V_T[0], V_L))
    q, hh = V_T[1], V_T[2]
    a("v_exp_f32 v%d, v%d" % (V_T[5], V_NMC))
    a("v_cvt_f32_i32 v%d, s%d" % (V_T[6], S_CORR))
    a("v_permlane32_swap_b32 v%d, v%d" % (V_T[0], V_L))
    a("v_and_b32 v%d, 31, v%d" % (q, V_LANE))
    a("v_lshrrev_b32 v%d, 5, v%d" % (hh, V_LANE))
    a("v_add_f32 v%d, v%d, v%d" % (V_L, V_L, V_T[0]))
    a("v_lshlrev_b32 v%d, 7, v%d" % (V_T[3], q))
    a("v_min_f32 v%d, 4.0, v%d" % (V_T[5], V_T[5]))
    a("v_and_b32 v%d, 7, v%d" % (q, q))
    a("v_fma_f32 v%d, v%d, v%d, v%d" % (V_L, V_T[5], V_T[6], V_L))
    a("v_lshl_add_u32 v%d, v%d, 4, v%d" % (V_T[3], q, V_T[3]))
    a("v_rcp_f32 v%d, v%d" % (V_L, V_L))
    a("v_lshl_add_u32 v%d, v%d, 3, v%d" % (V_T[3], hh, V_T[3]))
    a("v_add_u32 v%d, s%d, v%d" % (POOL, S_TMP, V_T[3]))
    a("v_mov_b32 v%d, v%d" % (V_M, V_L))
    for c in range(1, 8):
        a("v_xor_b32 v%d, %d, v%d" % (POOL + c, 16 * c, POOL))
    extra = [
        "v_lshlrev_b32 v%d, 4, v%d" % (V_T[4], V_LANE),
        "v_add_u32 v%d, s%d, v%d" % (POOL + 8, S_TMP, V_T[4]),
        "v_lshrrev_b32 v%d, 3, v%d" % (V_T[0], V_LANE),
        "v_and_b32 v%d, 7, v%d" % (V_T[1], V_LANE),
        "v_xor_b32 v%d, v%d, v%d" % (V_T[1], V_T[1], V_T[0]),
        "v_mul_u32_u24 v%d, %d, v%d" % (V_T[0], RS, V_T[0]),
        "v_lshl_add_u32 v%d, v%d, 4, v%d" % (V_T[0], V_T[1], V_T[0]),
        "v_add_u32 v%d, s%d, v%d" % (POOL + 9, S_QOFF, V_T[0])] + [
        "v_add_u32 v%d, %d, v%d" % (POOL + 9 + rg, rg * 8 * RS, POOL + 9) for rg in range(1, 4)]

    def conv(c):
        t, g = divmod(c, 4)
        o = V_O + 16 * t + 4 * g
        d = V_P + 2 * (c % 4)
        if PKMUL:
            a("v_pk_mul_f32 %s, %s, %s" % (vr(o, 2), vr(o, 2), vr(V_L, 2)))
            a("v_pk_mul_f32 %s, %s, %s" % (vr(o + 2, 2), vr(o + 2, 2), vr(V_L, 2)))
        else:
            for i in range(4):
                a("v_mul_f32 v%d, v%d, v%d" % (o + i, o + i, V_L))
        a("v_cvt_pk_bf16_f32 v%d, v%d, v%d" % (d, o, o + 1))
        a("v_cvt_pk_bf16_f32 v%d, v%d, v%d" % (d + 1, o + 2, o + 3))
        a("ds_write_b64 v%d, %s offset:%d" % (POOL + (c & 7), vr(d, 2), (c >> 3) * 4096))

    RB = V_S[0]
    for lc in range(3):
        for c in range(8 * lc, 8 * lc + 8):
            conv(c)
            if lc == 0 and extra:
                a(extra.pop(0))
                if extra:
                    a(extra.pop(0))
            if lc > 0 and c == 8 * lc + 2:
                for rg in range(4):
                    a("s_waitcnt lgkmcnt(%d)" % (3 + 3 - rg))
                    a("buffer_store_dwordx4 %s, v%d, %s, 0 offen offset:%d %s" % (
                        vr(RB + 16 * ((lc - 1) & 1) + 4 * rg, 4), POOL + 9 + rg, sr(SRD_O, 4), (lc - 1) * 128, stf))
        for rg in range(4):
            a("ds_read_b128 %s, v%d offset:%d" % (vr(RB + 16 * (lc & 1) + 4 * rg, 4), POOL + 8, lc * 4096 + rg * 1024))
    stamp(6)
    for rg in range(4):
        a("s_waitcnt lgkmcnt(%d)" % (3 - rg))
        a("buffer_store_dwordx4 %s, v%d, %s, 0 offen offset:%d %s" % (
            vr(RB + 4 * rg, 4), POOL + 9 + rg, sr(SRD_O, 4), 2 * 128, stf))
    stamp_flush()
    a("s_endpgm")

    for stub, target, back in stubs:
        a.label(stub)
        a("s_call_b64 %s, %s" % (sr(S_RET, 2), target))
        a("s_branch %s" % back)
    a.label("L_dutyld")
    load_body(3)
    a("s_setpc_b64 %s" % sr(S_RET, 2))
    def mask_code(S):
        a("v_lshrrev_b32 v%d, 5, v%d" % (V_T[1], V_LANE))
        a("v_lshlrev_b32 v%d, 2, v%d" % (V_T[1], V_T[1]))
        a("v_mov_b32 v%d, 0xff800000" % V_T[0])
        a("s_mov_b32 s%d, 0" % S_CORR)
        for g in range(4):
            for i in range(4):
                a("s_sub_u32 s%d, s%d, %d" % (S_TMP2, S_NVAL, 8 * g + i))
                a("v_cmp_gt_i32 vcc, s%d, v%d" % (S_TMP2, V_T[1]))
                a("s_nop 1")
                a("v_cndmask_b32 v%d, v%d, v%d, vcc" % (S + 4 * g + i, V_T[0], S + 4 * g + i))

    for par in range(2):
        S = V_S[par]
        a.label("L_mask_%d" % par)
        a("s_cmp_eq_u32 s%d, 32" % S_NVAL)
        a("s_cbranch_scc1 L_mask_ret")
        a("s_cmp_gt_u32 s%d, 16" % S_NVAL)
        a("s_cbranch_scc1 L_mask_full_%d" % par)
        a("v_cmp_nge_f32 vcc, 2.0, v%d" % V_NMC)
        a("s_cbranch_vccnz L_mask_full_%d" % par)
        a("s_sub_u32 s%d, s%d, 16" % (S_CORR, S_NVAL))
        a("s_setpc_b64 %s" % sr(S_RET, 2))
        a.label("L_mask_full_%d" % par)
        a("s_nop 3")
        mask_code(S)
        a("s_setpc_b64 %s" % sr(S_RET, 2))
    a.label("L_mask_ret")
    a("s_setpc_b64 %s" % sr(S_RET, 2))
    a.label("L_rescale")
    mx, t2 = V_T[0], V_T[1]
    a("v_max_f32 v%d, v%d, v%d" % (mx, mx, V_M))
    a("v_sub_f32 v%d, v%d, v%d" % (t2, V_M, mx))
    a("v_mul_f32 v%d, s%d, v%d" % (t2, S_C, t2))
    a("v_exp_f32 v%d, v%d" % (t2, t2))
    a("v_mov_b32 v%d, v%d" % (V_M, mx))
    a("v_mul_f32 v%d, s%d, v%d" % (V_NMC, S_C, mx))
    a("v_sub_f32 v%d, 0, v%d" % (V_NMC, V_NMC))
    a("v_mul_f32 v%d, v%d, v%d" % (V_L, V_L, t2))
    for i in range(96):
        a("v_mul_f32 v%d, v%d, v%d" % (V_O + i, V_O + i, t2))
    a("s_setpc_b64 %s" % sr(S_RET2, 2))
    for par in range(2):
        for mode in range(3):
            S = V_S[par]
            a.label("L_slow_%d_%d" % (par, mode))
            a("s_nop 15")
            if mode == 0:
                mask_code(S)
            block_max(S, mx, t2)
            a("s_call_b64 %s, L_rescale" % sr(S_RET2, 2))
            first = True
            for hf in ([0, 1] if mode == 2 else [mode]):
                for k in range(8):
                    a("v_fma_f32 v%d, v%d, s%d, v%d" % (V_T[k], S + 8 * hf + k, S_C, V_NMC))
                for k in range(8):
                    a("v_exp_f32 v%d, v%d" % (V_T[k], V_T[k]))
                a("s_nop 0")
                for p in range(4):
                    a("v_cvt_pk_bf16_f32 v%d, v%d, v%d" % (V_P + 4 * hf + p, V_T[2 * p], V_T[2 * p + 1]))
                for k in range(8):
                    if first:
                        a("v_mov_b32 v%d, v%d" % (V_BS, V_T[k]))
                        first = False
                    else:
                        a("v_add_f32 v%d, v%d, v%d" % (V_BS, V_BS, V_T[k]))
            a("s_setpc_b64 %s" % sr(S_RET, 2))
    a.lines.append(".p2align 6")
    a.lines.append(".type L_table,@object")
    a.label("L_table")
    for d in TABLE:
        a(".long " + ", ".join("0x%x" % x for x in d))
    a.lines.append(".size L_table, %d" % (64 * len(TABLE)))
    a.label("L_codeend")

    hdr = open("cdna_kernels/%s.s.ref" % NAME).read().split("\n")
    out = []
    for ln in hdr:
        if ln.startswith("; @launch"):
            out.append("; @launch grid=(256,1,1) block=(512,1,1) lds=%d" % LDS_TOTAL)
        elif ln.startswith(";"):
            out.append(ln)
        else:
            break
    out += [
        '.amdgcn_target "amdgcn-amd-amdhsa--gfx950"',
        ".text",
        ".globl %s_kernel" % NAME,
        ".p2align 8",
        ".type %s_kernel,@function" % NAME,
    ]
    out += a.lines
    out += [
        '.section .rodata,"a"',
        ".p2align 6",
        ".amdhsa_kernel %s_kernel" % NAME,
        "  .amdhsa_next_free_vgpr 256",
        "  .amdhsa_next_free_sgpr 96",
        "  .amdhsa_accum_offset 256",
        "  .amdhsa_group_segment_fixed_size 0",
        "  .amdhsa_kernarg_size 56",
        "  .amdhsa_user_sgpr_count 2",
        "  .amdhsa_user_sgpr_kernarg_segment_ptr 1",
        "  .amdhsa_system_sgpr_workgroup_id_x 1",
        ".end_amdhsa_kernel",
        "",
    ]
    return "\n".join(out)


def parse_plan(s):
    out = []
    for (seq, parts, _, _, _), x in zip(DEFAULT_PLAN, s.split(",")):
        qg, npre, thr = x.split(".")
        out.append((seq, parts, int(qg), int(npre), int(thr)))
    return out


if __name__ == "__main__":
    dst = sys.argv[1] if len(sys.argv) > 1 and not sys.argv[1].startswith("--") else "cdna_kernels/%s.s" % NAME

    def opt(n, d):
        for x in sys.argv:
            if x.startswith("--" + n + "="):
                return x.split("=", 1)[1].replace("+", " ")
        return d
    plan = parse_plan(opt("plan", "")) if opt("plan", "") else None
    open(dst, "w").write(gen(stamps=(2 if "--dbg" in sys.argv else 1 if "--stamps" in sys.argv else 0), qf=opt("qf", ""), kvf=opt("kvf", ""),
                             stf=opt("stf", ""), BG=int(opt("bg", "14")), rot="--rot" in sys.argv, abl=opt("abl", ""),
                             plan=plan, SM0=int(opt("sm0", "14")), SM1=int(opt("sm1", "35")),
                             RAMP=int(opt("ramp", "2")), NPF=int(opt("npf", "2")),
                             PFWAIT=int(opt("pfwait", "1")), RAMPD=int(opt("rampd", "2")),
                             pfspec=([] if "--nopf" in sys.argv else default_pf(*[int(x) for x in opt("pf", "4.2.3").split(".")])),
                             XC=int(opt("xc", "0")), XM=int(opt("xm", "0")), XMS=int(opt("xms", "2097152")), XMP=int(opt("xmp", "48")), CPF=int(opt("cpf", "1")), EARLY=int(opt("early", "0")), PKMUL=int(opt("pkmul", "1")),
                             ALIGN=int(opt("align", "0")), APAD=int(opt("apad", "0"))))
    print("wrote", dst)
```

```python
import math
import struct
import sys

NAME = "standalone__varlen_attn_packed__ragged"
CU = [0, 238, 376, 669, 835, 1320, 1545, 1865, 2058]
T, H, D = 2058, 16, 192
RS = H * D * 2
HB = 12288
BLK = 2 * HB
NSLOT = 6
LDS_TOTAL = 163840
CSCALE = (D ** -0.5) * math.log2(math.e)
THR = 1024.0


def f32(x):
    return struct.unpack("<I", struct.pack("<f", x))[0]


RING = NSLOT * BLK
NKB = [(CU[i + 1] - CU[i] + 31) // 32 for i in range(8)]

DEFAULT_PLAN = [(4, [4, 4, 4, 4], 0, 3, 0), (7, [7], 0, 2, 0), (3, [6], 3, 1, 0),
                (6, [4, 4, 2], 5, 1, 0), (2, [4, 4, 2], 5, 1, 0), (1, [5], 8, 1, 0), (0, [4, 4], 8, 1, 0),
                (5, [4, 4], 8, 1, 0)]


def make_wgs(plan):
    wgs = []
    for seq, parts, win, npre, rot in plan:
        nf = NKB[seq] - 1
        t0 = 0
        assert sum(parts) == NKB[seq]
        for r, nt in enumerate(parts):
            rr = ((r * nf) // len(parts)) if rot else 0
            if nt == 2:
                wgs.append(dict(seq=seq, t0=t0, nt=4, dual=True, hb=0, rot=rr, win=win, npre=min(npre, 1)))
            else:
                for hb in range(2):
                    wgs.append(dict(seq=seq, t0=t0, nt=nt, dual=False, hb=hb, rot=rr, win=win,
                                    npre=min(npre, 5 - (nt - 1) // 2)))
            t0 += nt
    assert len(wgs) == 32, len(wgs)
    return wgs


def prefetch_list(spec):
    items = []
    for ten, seq, b0, b1 in spec:
        for b in range(b0, b1 + 1):
            for rg in range(4):
                row = CU[seq] + 32 * b + 8 * rg
                if row < CU[seq + 1]:
                    items.append((ten, row))
    return items


def default_pf(n4=4, n7=2, q7=3):
    spec = [("Q", 7, q7, 6), ("K", 7, 0, 0)]
    for b in range(0, max(n4, n7)):
        if b < n4:
            spec += [("K", 4, b + 1, b + 1), ("V", 4, b, b)]
        if b < n7:
            spec += [("K", 7, b + 1, b + 1), ("V", 7, b, b)]
    return spec


def wave_desc(wg, w, pf):
    seq, nt, dual = wg["seq"], wg["nt"], wg["dual"]
    s0, s1 = CU[seq], CU[seq + 1]
    nkb = NKB[seq]
    nval = (s1 - s0) - 32 * (nkb - 1)
    step = 2 * BLK if dual else BLK
    ns = RING // step
    compute = w < nt
    if dual:
        hb = (w >> 1) & 1
        tile = wg["t0"] + (w & 1)
        so = hb * BLK
        qlds = [12 * HB, 9 * HB, 11 * HB, 7 * HB][w & 3]
        if w >= 4:
            isk, nrg, rg0 = 1 - (w & 1), 4, 0
        else:
            isk, nrg, rg0 = 0, 0, 0
    else:
        hb = wg["hb"]
        tile = wg["t0"] + w
        so = 0
        qlds = (12 - w - (1 if w >= 2 else 0)) * HB
        if nt > 4:
            isk, nrg, rg0 = (1 if w < 4 else 0), 1, w & 3
        elif w >= 4:
            isk, nrg, rg0 = (1 if w < 6 else 0), 2, 2 * (w & 1)
        else:
            isk, nrg, rg0 = 0, 0, 0
    role = (3 if nrg else 2) if compute else (1 if nrg else 0)
    d0 = role | (isk << 2) | (nrg << 3) | ((rg0 & 1) << 6) | (wg["win"] << 28) | (nkb << 10) | (nval << 16) | \
        (wg["rot"] << 22) | (len(pf) << 26)
    k0 = RING - step + so
    ldst0 = (k0 if isk else so + HB) + rg0 * 1024
    d = [d0, s1 * RS, (s0 + 32 * tile) * RS + hb * 384, qlds, (s0 + 8 * rg0) * RS + hb * 384, ldst0, step,
         wg["npre"] + isk, ns - 1 + isk, so, k0, step - so + w * HB]
    for ten, row in pf:
        d.append(row * RS | ({"K": 0, "V": 2, "Q": 1}[ten] << 30))
    d += [0] * (16 - len(d))
    return d


def make_table(plan, pfspec, npf):
    wgs = make_wgs(plan)
    items = prefetch_list(pfspec)
    slots = [(j, w) for w in range(8) for j, wg in enumerate(wgs) if wg["win"] > 0 and w < wg["nt"]]
    assign = {}
    for k, it in enumerate(items):
        key = slots[k % len(slots)]
        if len(assign.setdefault(key, [])) < npf:
            assign[key].append(it)
    tab = []
    for j, wg in enumerate(wgs):
        for w in range(8):
            tab.append(wave_desc(wg, w, assign.get((j, w), [])))
    return wgs, tab


class Asm:
    def __init__(self):
        self.lines = []
        self.nlabel = 0

    def __call__(self, s):
        self.lines.append("    " + s)

    def label(self, name):
        self.lines.append(name + ":")

    def newlabel(self, base):
        self.nlabel += 1
        return "L_%s_%d" % (base, self.nlabel)


def vr(lo, n):
    return "v[%d:%d]" % (lo, lo + n - 1)


def sr(lo, n):
    return "s[%d:%d]" % (lo, lo + n - 1)


class Item:
    def __init__(self, lines, cost, early, late, kind, writes=None, half=None):
        self.lines = lines if isinstance(lines, list) else [lines]
        self.cost, self.early, self.late, self.kind = cost, early, late, kind
        self.writes = writes
        self.half = half
        self.gap = None


def gen(stamps=False, qf="nt", kvf="nt", stf="", plan=None, BG=14, rot=False, abl="", SM0=14, SM1=35, RAMP=1, NIMM=1, pfspec=None, NPF=2, PFWAIT=1, RAMPD=2, XC=0, XM=0, XMS=0x200000, XMP=48, CPF=1, EARLY=0, PKMUL=1, ALIGN=6, APAD=0, A8=1):
    a = Asm()
    WGS, TABLE = make_table(plan or DEFAULT_PLAN, default_pf() if pfspec is None else pfspec, NPF)
    NST = 8
    DBGWG = [0, 70, 133, 255]
    S_ST = 64

    V_LANE = 0
    V_T = list(range(1, 9))
    V_KA0, V_VA0 = 9, 10
    V_KB = [11, 12, 13, 14]
    V_VB = [15, 16]
    V_DE, V_DO = 17, 18
    V_L, V_M, V_BS, V_NMC = 20, 21, 22, 23
    POOL = 24
    V_P = 72
    V_S = [80, 96]
    V_Q = 112
    V_O = 160
    S_Q, S_K, S_V, S_OUT = 4, 6, 8, 12
    S_WIN, S_XB = 14, 15
    SRD_Q, SRD_KV, SRD_O = 16, 20, 24
    S_W = 28
    S_TMP, S_TMP2, S_TMP3, S_LIM = 29, 30, 31, 91
    S_CF = 32
    S_FL, S_NREC, S_QOFF, S_QLDS, S_GOFF, S_LDST, S_STEP, S_NPRE, S_DEPTH, S_SLOT, S_K0, S_SCR = range(32, 44)
    S_PF = 44
    S_NKB, S_NF, S_NVAL, S_J = 48, 49, 50, 51
    S_LN, S_LB, S_ISK, S_NP, S_REM, S_NEED = 52, 53, 54, 55, 62, 63
    S_C, S_THR = 56, 57
    S_RET = 58
    S_RET2 = 60
    S_PC = 92
    S_CORR = 90
    WINS = [0, 4, 2, 1]

    def stamp(i, real=False, early=False):
        if EARLY and i in (5, 6) and not early:
            return
        if early and not EARLY:
            return
        if stamps:
            a(("s_memrealtime %s" if real else "s_memtime %s") % sr(S_ST + 2 * i, 2))
            a("s_waitcnt lgkmcnt(0)")

    def stamp_flush(iters=False):
        if not stamps:
            return
        a("s_waitcnt vmcnt(0)")
        stamp(1, True)
        if not EARLY:
            stamp(7)
        if stamps == 2:
            lab = a.newlabel("dbg")
            a("s_cmp_lg_u32 s%d, 0" % S_W)
            a("s_cbranch_scc1 %s" % lab)
            a("s_mov_b32 s83, 99")
            for k, wg in enumerate(DBGWG):
                a("s_cmp_eq_u32 s2, %d" % wg)
                a("s_cselect_b32 s83, %d, s83" % k)
            a("s_cmp_eq_u32 s83, 99")
            a("s_cbranch_scc1 %s" % lab)
            a("s_load_dwordx2 s[80:81], s[0:1], 40")
            a("s_waitcnt lgkmcnt(0)")
            a("s_mov_b32 s84, s80")
            a("s_mov_b32 s85, s81")
            a("s_mov_b32 s86, 256")
            a("s_mov_b32 s87, 0x00020000")
            a("s_mov_b64 exec, 1")
            a("s_lshl_b32 s83, s83, 4")
            a("v_mov_b32 v1, s83")
            a("v_mov_b32 v4, s%d" % S_ST)
            a("v_mov_b32 v5, s%d" % (S_ST + 2))
            a("s_sub_u32 s82, s%d, s%d" % (S_ST + 8, S_ST + 4))
            a("v_mov_b32 v6, s82")
            a("s_sub_u32 s82, s%d, s%d" % (S_ST + 14, S_ST + 4))
            a("v_mov_b32 v7, s82")
            a("buffer_store_dwordx4 v[4:7], v1, s[84:87], 0 offen")
            a.label(lab)
            return
        a("s_load_dwordx2 s[80:81], s[0:1], 48")
        a("s_waitcnt lgkmcnt(0)")
        a("s_mov_b32 s84, s80")
        a("s_mov_b32 s85, s81")
        a("s_mov_b32 s86, 0x100000")
        a("s_mov_b32 s87, 0x00020000")
        a("s_lshl_b32 s82, s2, 3")
        a("s_add_u32 s82, s82, s%d" % S_W)
        a("s_mul_i32 s83, s82, %d" % (NST * 8))
        a("v_mov_b32 v1, s83")
        a("s_mov_b64 exec, 1")
        for i in range(NST):
            a("v_mov_b32 v2, s%d" % (S_ST + 2 * i))
            a("v_mov_b32 v3, s%d" % (S_ST + 2 * i + 1))
            a("buffer_store_dwordx2 v[2:3], v1, s[84:87], 0 offen offset:%d" % (8 * i))
            a("s_nop 1")
        if iters:
            a("s_mov_b64 exec, -1")
            a("s_lshl_b32 s82, s82, 8")
            a("s_add_u32 s82, s82, 0x80000")
            a("v_lshlrev_b32 v1, 2, v0")
            a("v_add_u32 v1, s82, v1")
            a("buffer_store_dword v90, v1, s[84:87], 0 offen")

    a.label(NAME + "_kernel")
    a("s_cmp_ge_u32 s2, 256")
    a("s_cbranch_scc1 L_end")
    stamp(0, True)
    stamp(2)
    a("s_load_dwordx8 s[4:11], s[0:1], 0")
    a("s_load_dwordx2 s[12:13], s[0:1], 32")
    a("s_getpc_b64 %s" % sr(S_PC, 2))
    a.label("L_pc")
    if CPF:
        a("v_lshlrev_b32 v2, 7, v0")
        a("v_min_u32 v2, L_codeend-L_pc-4, v2")
        a("global_load_dword v19, v2, %s" % sr(S_PC, 2))
    a("v_lshrrev_b32 v1, 6, v0")
    a("s_nop 0")
    a("v_readfirstlane_b32 s%d, v1" % S_W)
    a("s_and_b32 s%d, s2, 0xf8" % S_TMP)
    a("s_add_u32 s%d, s%d, L_table-L_pc" % (S_PC, S_PC))
    a("s_addc_u32 s%d, s%d, 0" % (S_PC + 1, S_PC + 1))
    a("s_add_u32 s%d, s%d, s%d" % (S_TMP, S_TMP, S_W))
    a("s_lshl_b32 s%d, s%d, 6" % (S_TMP, S_TMP))
    a("s_load_dwordx16 %s, %s, s%d" % (sr(S_CF, 16), sr(S_PC, 2), S_TMP))
    a("v_and_b32 v0, 63, v0")
    a("s_and_b32 s%d, s2, 7" % S_XB)
    a("s_mul_i32 s%d, s%d, 768" % (S_XB, S_XB))
    a("v_lshrrev_b32 v1, 3, v0")
    a("v_and_b32 v2, 7, v0")
    a("v_bfe_u32 v3, v0, 4, 2")
    a("v_bfe_u32 v4, v0, 4, 1")
    a("v_mul_u32_u24 v1, %d, v1" % RS)
    a("v_xor_b32 v3, v2, v3")
    a("v_lshlrev_b32 v4, 2, v4")
    a("v_xor_b32 v4, v2, v4")
    a("v_min_u32 v2, 5, v2")
    a("v_lshl_add_u32 v5, v3, 4, v1")
    a("v_lshl_add_u32 v7, v4, 4, v1")
    a("v_xor_b32 v6, 64, v5")
    a("v_lshl_add_u32 v8, v2, 7, v1")
    a("s_mov_b32 s%d, 0x00020000" % (SRD_Q + 3))
    a("s_mov_b32 s%d, 0x00020000" % (SRD_KV + 3))
    a("s_mov_b32 s%d, 0x00020000" % (SRD_O + 3))
    a("s_mov_b32 s%d, %d" % (SRD_KV + 2, T * RS))
    a("s_mov_b32 s%d, 0x%x" % (S_C, f32(CSCALE)))
    a("s_mov_b32 s%d, 0x%x" % (S_THR, f32(THR)))
    a("s_mov_b32 s%d, 0" % S_LN)
    a("s_waitcnt lgkmcnt(0)")
    stamp(3)
    a("s_mov_b32 s%d, s%d" % (SRD_Q, S_Q))
    a("s_mov_b32 s%d, s%d" % (SRD_Q + 1, S_Q + 1))
    if XC:
        a("s_mov_b32 s90, %d" % XC)
        a.label("L_xc")
        for i in range(32):
            a("v_add_f32 v100, v100, v100")
        a("s_sub_u32 s90, s90, 1")
        a("s_cmp_lg_u32 s90, 0")
        a("s_cbranch_scc1 L_xc")
    if XM:
        a("s_load_dwordx2 s[80:81], s[0:1], %d" % XMP)
        a("s_waitcnt lgkmcnt(0)")
        a("s_mov_b32 s84, s80")
        a("s_mov_b32 s85, s81")
        a("s_mov_b32 s86, %d" % (0x10000000 if XMP == 48 else T * RS))
        a("s_mov_b32 s87, 0x00020000")
        a("s_lshl_b32 s82, s2, 3")
        a("s_add_u32 s82, s82, s%d" % S_W)
        a("s_lshl_b32 s82, s82, 10")
        a("v_lshlrev_b32 v100, 4, v0")
        for i in range(XM):
            a("s_add_u32 s83, s82, %d" % (i * XMS))
            a("buffer_load_dwordx4 v[104:107], v100, s[84:87], s83 offen nt")
            a("s_waitcnt vmcnt(0)")
    a("s_mov_b32 s%d, s%d" % (SRD_Q + 2, S_NREC))
    a("s_add_u32 s%d, s%d, s%d" % (S_QOFF, S_QOFF, S_XB))
    a("s_lshr_b32 s%d, s%d, 28" % (S_WIN, S_FL))
    a("s_bitcmp1_b32 s%d, 1" % S_FL)
    a("s_cbranch_scc0 L_noq")

    def q_loads(ser):
        for rg in range(4):
            a("s_add_u32 s%d, s%d, %d" % (S_TMP, S_QOFF, rg * 8 * RS))
            for lc in range(3):
                a("s_add_u32 m0, s%d, %d" % (S_QLDS, lc * 4096 + rg * 1024 - lc * 128))
                k = 3 * rg + lc
                if ser and 1 <= k <= 11:
                    lab = a.newlabel("qs")
                    a("s_cmp_lt_u32 s%d, %d" % (S_WIN, k))
                    a("s_cbranch_scc1 %s" % lab)
                    a("s_waitcnt vmcnt(0)")
                    a.label(lab)
                else:
                    a("s_nop 0")
                a("buffer_load_dwordx4 v%d, %s, s%d offen offset:%d %s lds" % (5 + (rg & 1), sr(SRD_Q, 4), S_TMP, lc * 128, qf))
    a("s_cmp_lg_u32 s%d, 0" % S_WIN)
    a("s_cbranch_scc1 L_qser")
    q_loads(False)
    a.label("L_noq")
    stamp(5, early=True)
    a("s_bfe_u32 s%d, s%d, 0x6000a" % (S_NKB, S_FL))
    a("s_bfe_u32 s%d, s%d, 0x60010" % (S_NVAL, S_FL))
    a("s_bfe_u32 s%d, s%d, 0x40016" % (S_LB, S_FL))
    a("s_bfe_u32 s%d, s%d, 0x10002" % (S_ISK, S_FL))
    a("s_bfe_u32 s%d, s%d, 0x30003" % (S_NP, S_FL))
    a("s_mul_i32 s%d, s%d, 3" % (S_NP, S_NP))
    a("s_sub_u32 s%d, s%d, 1" % (S_NF, S_NKB))
    a("s_mov_b32 s%d, s%d" % (SRD_KV + 2, S_NREC))
    a("s_mov_b32 s%d, s%d" % (SRD_O + 2, S_NREC))
    a("s_mov_b32 s%d, s%d" % (SRD_O, S_OUT))
    a("s_mov_b32 s%d, s%d" % (SRD_O + 1, S_OUT + 1))
    a("s_add_u32 s%d, s%d, s%d" % (S_GOFF, S_GOFF, S_XB))
    a("s_bitcmp1_b32 s%d, 6" % S_FL)
    a("s_cselect_b64 vcc, -1, 0")
    a("v_cndmask_b32 v%d, v5, v6, vcc" % V_DE)
    a("v_mov_b32 v%d, v6" % V_DO)
    a("s_cmp_eq_u32 s%d, 0" % S_ISK)
    a("s_cselect_b64 vcc, -1, 0")
    a("s_cselect_b32 s%d, s%d, s%d" % (SRD_KV, S_V, S_K))
    a("s_cselect_b32 s%d, s%d, s%d" % (SRD_KV + 1, S_V + 1, S_K + 1))
    a("v_cndmask_b32 v%d, v%d, v7, vcc" % (V_DE, V_DE))
    a("v_cndmask_b32 v%d, v%d, v7, vcc" % (V_DO, V_DO))
    a("s_mov_b32 s%d, s%d" % (S_NEED, S_ISK))

    def load_body(np_static, win=0, first=False):
        nop = ("s_waitcnt vmcnt(%d)" % (win - 1)) if win else "s_nop 0"
        a("s_cmp_eq_u32 s%d, s%d" % (S_LN, S_NF))
        a("s_cselect_b32 s%d, s%d, s%d" % (S_TMP, S_NF, S_LB))
        a("s_mul_i32 s%d, s%d, %d" % (S_TMP, S_TMP, 32 * RS))
        a("s_add_u32 s%d, s%d, s%d" % (S_TMP, S_TMP, S_GOFF))
        labd = a.newlabel("ldd")
        for rg in range(1 if np_static else 4):
            if rg:
                if rg != 3:
                    a("s_cmp_eq_u32 s%d, %d" % (S_NP, 3 * rg))
                    a("s_cbranch_scc1 %s" % labd)
                a("s_add_u32 s%d, s%d, %d" % (S_TMP, S_TMP, 8 * RS))
            for lc in range(3):
                a("s_add_u32 m0, s%d, %d" % (S_LDST, rg * 1024 + lc * 4096 - lc * 128))
                a(nop)
                a("buffer_load_dwordx4 v%d, %s, s%d offen offset:%d %s lds" % (
                    V_DO if rg & 1 else V_DE, sr(SRD_KV, 4), S_TMP, lc * 128, kvf))
                if first and rg == 0 and lc == 0:
                    lab, top = a.newlabel("fv"), a.newlabel("fvt")
                    a("s_mov_b32 s%d, s%d" % (S_REM, S_WIN))
                    a.label(top)
                    a("s_cmp_eq_u32 s%d, 0" % S_REM)
                    a("s_cbranch_scc1 %s" % lab)
                    a("s_waitcnt vmcnt(0)")
                    a("s_mul_i32 s%d, s%d, %d" % (S_TMP2, S_REM, 32 * RS))
                    a("s_add_u32 s%d, s%d, s%d" % (S_TMP2, S_TMP2, S_TMP))
                    a("buffer_load_dword v19, v%d, %s, s%d offen" % (V_DE, sr(SRD_KV, 4), S_TMP2))
                    a("s_sub_u32 s%d, s%d, 1" % (S_REM, S_REM))
                    a("s_branch %s" % top)
                    a.label(lab)
        a.label(labd)
        a("s_add_u32 s%d, s%d, 1" % (S_LN, S_LN))
        a("s_add_u32 s%d, s%d, 1" % (S_LB, S_LB))
        a("s_cmp_ge_u32 s%d, s%d" % (S_LB, S_NF))
        a("s_cselect_b32 s%d, 0, s%d" % (S_LB, S_LB))
        a("s_add_u32 s%d, s%d, s%d" % (S_LDST, S_LDST, S_STEP))
        a("s_sub_u32 s%d, s%d, %d" % (S_TMP2, S_LDST, RING))
        a("s_cmp_ge_u32 s%d, %d" % (S_LDST, RING))
        a("s_cselect_b32 s%d, s%d, s%d" % (S_LDST, S_TMP2, S_LDST))

    def load_upto(limit_sgpr, np_static, win=0):
        top, done = a.newlabel("lu"), a.newlabel("lud")
        a("s_min_u32 s%d, s%d, s%d" % (limit_sgpr, limit_sgpr, S_NKB))
        a("s_cmp_ge_u32 s%d, s%d" % (S_LN, limit_sgpr))
        a("s_cbranch_scc1 %s" % done)
        a.label(top)
        load_body(np_static, win)
        a("s_cmp_lt_u32 s%d, s%d" % (S_LN, limit_sgpr))
        a("s_cbranch_scc1 %s" % top)
        a.label(done)

    def pre_loads(np_static):
        if np_static is None:
            load_body(None, 0, True)
        load_upto(S_NPRE, np_static)

    def wait_cascade(np_static):
        done = a.newlabel("wc")
        a("s_min_u32 s%d, s%d, s%d" % (S_REM, S_NEED, S_LN))
        a("s_sub_u32 s%d, s%d, s%d" % (S_REM, S_LN, S_REM))
        if np_static is None:
            a("s_mul_i32 s%d, s%d, s%d" % (S_REM, S_REM, S_NP))
            vals = sorted(set([3 * r for r in range(6)] + [6 * r for r in range(6)]), reverse=True)
            cmpv = vals
        else:
            vals = [np_static * r for r in range(5, -1, -1)]
            cmpv = list(range(5, -1, -1))
        for v, c in zip(vals[:-1], cmpv[:-1]):
            a("s_waitcnt vmcnt(%d)" % v)
            a("s_cmp_ge_u32 s%d, %d" % (S_REM, c))
            a("s_cbranch_scc1 %s" % done)
        a("s_waitcnt vmcnt(0)")
        a.label(done)

    a("s_bitcmp1_b32 s%d, 1" % S_FL)
    a("s_cbranch_scc1 L_compute")

    a("s_cmp_eq_u32 s%d, 0" % S_NP)
    a("s_cbranch_scc1 L_idle")
    pre_loads(None)
    stamp(7, early=True)
    wait_cascade(None)
    stamp(6, early=True)
    a("s_barrier")
    stamp(4)
    a("s_mov_b32 s%d, s%d" % (S_TMP3, S_DEPTH))
    a("s_mov_b32 s%d, 0" % S_J)
    if stamps:
        a("v_mov_b32 v90, 0")
    a.label("L_ld_loop")
    a("s_add_u32 s%d, s%d, %d" % (S_LIM, S_LN, RAMP))
    a("s_min_u32 s%d, s%d, s%d" % (S_LIM, S_LIM, S_TMP3))
    load_upto(S_LIM, None)
    a("s_add_u32 s%d, s%d, 1" % (S_NEED, S_NEED))
    wait_cascade(None)
    if stamps:
        a("s_memtime s[88:89]")
        a("s_waitcnt lgkmcnt(0)")
        a("s_add_u32 m0, s%d, 32" % S_J)
        a("s_nop 0")
        a("v_writelane_b32 v90, s88, m0")
    a("s_barrier")
    if stamps:
        a("s_memtime s[88:89]")
        a("s_memrealtime s[94:95]")
        a("s_waitcnt lgkmcnt(0)")
        a("s_mov_b32 m0, s%d" % S_J)
        a("s_nop 0")
        a("v_writelane_b32 v90, s88, m0")
        a("s_add_u32 m0, s%d, 16" % S_J)
        a("s_nop 0")
        a("v_writelane_b32 v90, s94, m0")
    a("s_add_u32 s%d, s%d, 1" % (S_TMP3, S_TMP3))
    a("s_add_u32 s%d, s%d, 1" % (S_J, S_J))
    a("s_cmp_lt_u32 s%d, s%d" % (S_J, S_NKB))
    a("s_cbranch_scc1 L_ld_loop")
    stamp(5)
    stamp(6)
    stamp_flush(True)
    a("s_endpgm")
    a.label("L_idle")
    a("s_add_u32 s%d, s%d, 1" % (S_J, S_NKB))
    a.label("L_idle_loop")
    a("s_barrier")
    a("s_sub_u32 s%d, s%d, 1" % (S_J, S_J))
    a("s_cmp_lg_u32 s%d, 0" % S_J)
    a("s_cbranch_scc1 L_idle_loop")
    a.label("L_end")
    a("s_endpgm")

    a.label("L_qser")
    a("s_bfe_u32 s%d, s%d, 0x2001a" % (S_TMP3, S_FL))
    for i in range(NPF):
        a("s_cmp_le_u32 s%d, %d" % (S_TMP3, i))
        a("s_cbranch_scc1 L_pfdone")
        a("s_bitcmp1_b32 s%d, 31" % (S_PF + i))
        a("s_cselect_b32 s%d, s%d, s%d" % (SRD_KV, S_V, S_K))
        a("s_cselect_b32 s%d, s%d, s%d" % (SRD_KV + 1, S_V + 1, S_K + 1))
        a("s_bitcmp1_b32 s%d, 30" % (S_PF + i))
        a("s_cselect_b32 s%d, s%d, s%d" % (SRD_KV, S_Q, SRD_KV))
        a("s_cselect_b32 s%d, s%d, s%d" % (SRD_KV + 1, S_Q + 1, SRD_KV + 1))
        a("s_and_b32 s%d, s%d, 0xffffff" % (S_TMP, S_PF + i))
        a("s_add_u32 s%d, s%d, s%d" % (S_TMP, S_TMP, S_XB))
        a("buffer_load_dword v19, v8, %s, s%d offen %s" % (sr(SRD_KV, 4), S_TMP, kvf))
    a.label("L_pfdone")
    q_loads(True)
    a("s_branch L_noq")
    a.label("L_compute")
    lab_nl = a.newlabel("nl")
    a("s_cmp_eq_u32 s%d, 0" % S_NP)
    a("s_cbranch_scc1 %s" % lab_nl)
    pre_loads(3)
    a.label(lab_nl)
    r, h, f, h4 = V_T[0], V_T[1], V_T[2], V_T[7]
    a("v_and_b32 v%d, 31, v%d" % (r, V_LANE))
    a("v_lshrrev_b32 v%d, 5, v%d" % (h, V_LANE))
    a("v_lshlrev_b32 v%d, 2, v%d" % (h4, h))
    a("v_bfe_u32 v%d, v%d, 1, 3" % (f, r))
    a("v_xor_b32 v%d, v%d, v%d" % (f, f, h))
    a("v_lshlrev_b32 v%d, 4, v%d" % (f, f))
    a("v_lshl_add_u32 v%d, v%d, 7, v%d" % (V_KA0, r, f))
    rr, c, dh, b = V_T[3], V_T[4], V_T[5], V_T[6]
    a("v_bfe_u32 v%d, v%d, 2, 2" % (rr, V_LANE))
    a("v_and_b32 v%d, 3, v%d" % (c, V_LANE))
    a("v_bfe_u32 v%d, v%d, 4, 1" % (dh, V_LANE))
    a("v_bfe_u32 v%d, v%d, 3, 1" % (b, V_LANE))
    a("v_add_u32 v%d, v%d, v%d" % (rr, rr, h4))
    a("v_lshlrev_b32 v%d, 7, v%d" % (V_VA0, rr))
    a("v_lshl_add_u32 v%d, v%d, 6, v%d" % (V_VA0, b, V_VA0))
    a("v_lshl_add_u32 v%d, v%d, 5, v%d" % (V_VA0, dh, V_VA0))
    a("v_lshl_add_u32 v%d, v%d, 3, v%d" % (V_VA0, c, V_VA0))
    for i in range(48):
        a("v_pk_mov_b32 %s, 0, 0" % vr(V_O + 2 * i, 2)) if False else None
    for i in range(96):
        a("v_mov_b32 v%d, 0" % (V_O + i))
    a("v_mov_b32 v%d, 0" % V_L)
    a("v_add_u32 v%d, s%d, v%d" % (V_KB[0], S_QLDS, V_KA0))
    for j in range(1, 4):
        a("v_xor_b32 v%d, %d, v%d" % (V_KB[j], 32 * j, V_KB[0]))
    stamp(7, early=True)
    wait_cascade(3)
    stamp(6, early=True)
    for ks in range(12):
        a("ds_read_b128 %s, v%d offset:%d" % (vr(V_Q + 4 * ks, 4), V_KB[ks & 3], (ks >> 2) * 4096))
    a("v_add_u32 v%d, s%d, v%d" % (V_KB[0], S_K0, V_KA0))
    for j in range(1, 4):
        a("v_xor_b32 v%d, %d, v%d" % (V_KB[j], 32 * j, V_KB[0]))
    a("s_waitcnt lgkmcnt(0)")
    a("s_barrier")
    stamp(4)
    for ks in range(12):
        a("ds_read_b128 %s, v%d offset:%d" % (vr(POOL + 4 * ks, 4), V_KB[ks & 3], (ks >> 2) * 4096))
    a("s_mov_b32 s%d, 0" % S_J)
    a("s_mov_b32 s%d, 0" % S_CORR)
    for ks in range(12):
        a("s_waitcnt lgkmcnt(%d)" % (11 - ks))
        a("v_mfma_f32_32x32x16_bf16 %s, %s, %s, %s" % (
            vr(V_S[0], 16), vr(POOL + 4 * ks, 4), vr(V_Q + 4 * ks, 4), "0" if ks == 0 else vr(V_S[0], 16)))

    def block_max(S, mx, t2):
        a("v_max3_f32 v%d, v%d, v%d, v%d" % (mx, S, S + 1, S + 2))
        for i in range(3, 15, 2):
            a("v_max3_f32 v%d, v%d, v%d, v%d" % (mx, mx, S + i, S + i + 1))
        a("v_max_f32 v%d, v%d, v%d" % (mx, mx, S + 15))
        a("v_mov_b32 v%d, v%d" % (t2, mx))
        a("s_nop 1")
        a("v_permlane32_swap_b32 v%d, v%d" % (t2, mx))
        a("s_nop 1")
        a("v_max_f32 v%d, v%d, v%d" % (mx, mx, t2))

    stubs = []

    def sm_seq(par):
        S = V_S[par]
        tm = V_T
        out = []

        def fma(k):
            return ("v_fma_f32 v%d, v%d, s%d, v%d" % (tm[k % 8], S + k, S_C, V_NMC), 1, k // 8, 0)

        def ex(k):
            return ("v_exp_f32 v%d, v%d" % (tm[k % 8], tm[k % 8]), 2, k // 8, 0)

        def cvt(p):
            return ("v_cvt_pk_bf16_f32 v%d, v%d, v%d" % (V_P + p, tm[(2 * p) % 8], tm[(2 * p + 1) % 8]), 1, p // 4,
                    17 if p < 4 else 23)

        def add(k):
            if k == 1:
                return ("v_add_f32 v%d, v%d, v%d" % (V_BS, tm[0], tm[1]), 1, 0, 0)
            return ("ADD %d" % k, 1, k // 8, 0)
        for hf in range(2):
            o = 8 * hf
            p = 4 * hf
            out += [fma(o), fma(o + 1), ex(o), fma(o + 2), ex(o + 1), fma(o + 3), ex(o + 2), fma(o + 4), ex(o + 3)]
            if hf:
                out += [add(o)]
            out += [add(o + 1), fma(o + 5), ex(o + 4), cvt(p), add(o + 2), fma(o + 6), ex(o + 5), cvt(p + 1), add(o + 3),
                    fma(o + 7), ex(o + 6), add(o + 4), ex(o + 7), cvt(p + 2), add(o + 5), add(o + 6), cvt(p + 3),
                    add(o + 7)]
        return out

    def schedule(par, duty):
        gaps = {g: [] for g in range(BG, BG + 26)}
        load = {g: 0.0 for g in range(24)}
        load[BG % 24] += 2
        load[(BG - 2) % 24] += 4
        load[(BG - 1) % 24] += 6
        load[23] += 2

        def put(it, g):
            it.gap = g
            gaps[g].append(it)
            load[g % 24] += it.cost
        put(Item(["MASK %d" % par], 2, 0, 0, "mask"), max(SM0, BG))
        if duty:
            put(Item(["DUTYLD"], 2, 0, 0, "duty"), BG + 2)
            put(Item(["DUTYWAIT"], 6, 0, 0, "duty"), BG + 24 - 4)
        kg = []
        g = BG
        for i in range(12):
            g = max(g, 12 + i)
            while kg.count(g) >= (2 if g < BG + 2 else 1):
                g += 1
            kg.append(g)
            put(Item("ds_read_b128 %s, v%d offset:%d" % (vr(POOL + 4 * i, 4), V_KB[i & 3], (i >> 2) * 4096),
                     1, 0, 0, "K", ("F", i)), g)
            assert g <= 24 + i - 4
        for idx in range(12):
            s, t = divmod(idx, 6)
            for u in range(2):
                put(Item("ds_read_b64_tr_b16 %s, v%d offset:%d" % (
                    vr(POOL + 4 * idx + 2 * u, 2), V_VB[t & 1], HB + (16 * s + 8 * u) * 128 + (t >> 1) * 4096),
                    1, 0, 0, "V%d" % s, ("F", idx)), 24 + idx)
        e, l = max(SM0, BG), SM1
        its = [Item(txt, cost, max(mg, 24 if hf else 0), l, "sm", half=hf) for txt, cost, hf, mg in sm_seq(par)]
        its.append(Item(["CHECK %d 2" % par], 3, 0, l, "chk"))
        tot = sum(v.cost for v in its) + sum(load[g % 24] for g in range(e, l + 1))
        target = tot / (l - e + 1)
        g = e
        exc = 0.0
        for it in its:
            while g < l and (load[g % 24] + it.cost / 2.0 > target + exc or g < it.early):
                exc += target - load[g % 24]
                g += 1
            put(it, g)
        return gaps, load

    def mfma_for(slot, par):
        if slot < 12:
            Sn = V_S[par ^ 1]
            txt = "v_mfma_f32_32x32x16_bf16 %s, %s, %s, %s" % (
                vr(Sn, 16), vr(POOL + 4 * slot, 4), vr(V_Q + 4 * slot, 4), "0" if slot == 0 else vr(Sn, 16))
            return txt, ("F", slot), "qk"
        idx = slot - 12
        s, t = divmod(idx, 6)
        txt = "v_mfma_f32_32x32x16_bf16 %s, %s, %s, %s" % (
            vr(V_O + 16 * t, 16), vr(POOL + 4 * idx, 4), vr(V_P + 4 * s, 4), vr(V_O + 16 * t, 16))
        return txt, ("F", idx), "pv%d" % s

    def emit_lines(lines, tailmode=False):
        for ln in lines:
            if ln.startswith("CHECK"):
                _, par, mode = ln.split()
                stub, back = a.newlabel("slow"), a.newlabel("back")
                a("v_cmp_lt_f32 vcc, s%d, v%d" % (S_THR, V_BS))
                a("s_cbranch_vccnz %s" % stub)
                a.label(back)
                a("v_add_f32 v%d, v%d, v%d" % (V_L, V_L, V_BS))
                stubs.append((stub, "L_slow_%s_%s" % (par, mode), back))
            elif ln.startswith("MASK"):
                _, par = ln.split()
                stub, back = a.newlabel("mstub"), a.newlabel("mback")
                a("s_cmp_eq_u32 s%d, s%d" % (S_J, S_NF))
                a("s_cbranch_scc1 %s" % stub)
                a.label(back)
                stubs.append((stub, "L_mask_%s" % par, back))
            elif ln.startswith("ADD"):
                k = int(ln.split()[1])
                if tailmode and k == 8:
                    a("v_mov_b32 v%d, v%d" % (V_BS, V_T[0]))
                else:
                    a("v_add_f32 v%d, v%d, v%d" % (V_BS, V_BS, V_T[k % 8]))
            elif ln == "DUTYLD":
                stub, back = a.newlabel("dl"), a.newlabel("dlb")
                a("s_cmp_lt_u32 s%d, s%d" % (S_LN, S_NKB))
                a("s_cbranch_scc1 %s" % stub)
                a.label(back)
                stubs.append((stub, "L_dutyld", back))
            elif ln == "DUTYWAIT":
                a("s_add_u32 s%d, s%d, 1" % (S_NEED, S_NEED))
                wait_cascade(3)
            else:
                a(ln)

    def skip_item(it):
        return ("L" in abl and it.writes is not None) or ("S" in abl and it.kind in ("sm", "chk"))

    def emit_stream(seq, outstanding, tailmode=False):
        issued = list(outstanding)
        done = 0
        for idx, e in enumerate(seq):
            if e[0] == "m":
                frag = e[2]
                need = max([k for k, fr in enumerate(issued) if fr == frag], default=-1) + 1
                if need > done:
                    tgt = need
                    cnt = 0
                    for e2 in seq[idx + 1:]:
                        if e2[0] == "m":
                            n2 = max([k for k, fr in enumerate(issued) if fr == e2[2]], default=-1) + 1
                            if n2 > tgt and n2 <= len(issued) - 6 and cnt < 5:
                                tgt = n2
                                cnt += 1
                            else:
                                break
                    n = len(issued) - tgt
                    a("s_waitcnt lgkmcnt(%d)" % min(15, n))
                    done = len(issued) - min(15, n)
                a(e[1])
            elif e[0] == "i":
                it = e[1]
                if skip_item(it):
                    continue
                emit_lines(it.lines, tailmode)
                if it.writes is not None:
                    issued.append(it.writes)
            elif e[0] == "bar":
                a("s_waitcnt lgkmcnt(0)")
                a("s_barrier")
                issued, done = [], 0
            elif e[0] == "raw":
                emit_lines([e[1]], tailmode)
            elif e[0] == "label":
                a.label(e[1])

    def addr_lines():
        return (["v_add_u32 v%d, s%d, v%d" % (V_KB[0], S_SLOT, V_KA0), "v_add_u32 v%d, s%d, v%d" % (V_VB[0], S_SLOT, V_VA0)] +
                ["v_xor_b32 v%d, %d, v%d" % (V_KB[j], 32 * j, V_KB[0]) for j in range(1, 4)] +
                ["v_xor_b32 v%d, 64, v%d" % (V_VB[1], V_VB[0])])

    def compute_path(duty):
        sfx = "d" if duty else "n"
        scheds = [schedule(0, duty), schedule(1, duty)]
        sys.stderr.write("gap loads (%s): %s\n" % (sfx, " ".join("%.0f" % scheds[0][1][g] for g in range(24))))

        def next_items(par):
            return [it for g in range(BG, 24) for it in scheds[par][0][g]]

        def nfr(par):
            return [it.writes for it in next_items(par) if it.writes is not None and not skip_item(it)]

        def body(par):
            cur, nxt = scheds[par][0], scheds[par ^ 1][0]
            seq = []
            for slot in range(24):
                txt, frag, kind = mfma_for(slot, par)
                seq.append(("m", txt, frag))
                for it in cur.get(slot + 24, []):
                    seq.append(("i", it))
                if slot == BG - 2:
                    seq += [("raw", "s_add_u32 s%d, s%d, s%d" % (S_SLOT, S_SLOT, S_STEP)),
                            ("raw", "s_sub_u32 s%d, s%d, %d" % (S_TMP3, S_SLOT, RING)),
                            ("raw", "s_cselect_b32 s%d, s%d, s%d" % (S_SLOT, S_SLOT, S_TMP3)),
                            ("raw", "s_add_u32 s%d, s%d, 1" % (S_J, S_J))]
                if slot == BG - 1:
                    seq += [("raw", x) for x in addr_lines()]
                if slot == BG:
                    seq.append(("bar",))
                if slot >= BG:
                    for it in nxt.get(slot, []):
                        seq.append(("i", it))
            return seq

        def tail(par):
            cur = scheds[par][0]
            rest = [it for g in range(24, BG + 26) for it in cur[g]]
            assert all(it.half != 1 for it in next_items(par)), "second half started too early"
            vreads = [it for it in rest if it.kind in ("V0", "V1")]
            h0 = [it for it in rest if it.kind == "sm" and it.half == 0]
            h1 = [it for it in rest if it.kind == "sm" and it.half == 1]
            seq = []
            v0 = [it for it in vreads if it.kind == "V0"]
            v1 = [it for it in vreads if it.kind == "V1"]
            k = 0
            for it in v0:
                seq.append(("i", it))
                if k < len(h0):
                    seq.append(("i", h0[k]))
                    k += 1
            for it in h0[k:]:
                seq.append(("i", it))
            seq.append(("raw", "CHECK %d 0" % par))
            seq.append(("raw", "s_cmp_le_u32 s%d, 16" % S_NVAL))
            seq.append(("raw", "s_cbranch_scc1 L_short_%s%d" % (sfx, par)))
            k = 0
            kv = 0
            per = (len(h1) + 5) // 6
            for t in range(6):
                txt, frag, kind = mfma_for(12 + t, par)
                seq.append(("m", txt, frag))
                for it in v1[2 * t:2 * t + 2]:
                    seq.append(("i", it))
                for it in h1[k:k + per]:
                    seq.append(("i", it))
                k += per
            seq.append(("raw", "CHECK %d 1" % par))
            for t in range(6):
                txt, frag, kind = mfma_for(18 + t, par)
                seq.append(("m", txt, frag))
            seq.append(("raw", "s_branch L_epi"))
            short = [("label", "L_short_%s%d" % (sfx, par)), ("raw", "s_waitcnt lgkmcnt(0)")]
            for t in range(6):
                txt, frag, kind = mfma_for(12 + t, par)
                short.append(("raw", txt))
            short.append(("raw", "s_branch L_epi"))
            return seq, short

        if duty:
            a("s_add_u32 s%d, s%d, %d" % (S_LIM, S_LN, RAMPD))
            a("s_min_u32 s%d, s%d, s%d" % (S_LIM, S_LIM, S_DEPTH))
            load_upto(S_LIM, 3)
            a("s_add_u32 s%d, s%d, 1" % (S_NEED, S_NEED))
            wait_cascade(3)
        for x in addr_lines():
            a(x)
        a("s_nop 6")
        block_max(V_S[0], V_M, V_T[1])
        a("v_mul_f32 v%d, s%d, v%d" % (V_NMC, S_C, V_M))
        a("v_sub_f32 v%d, 0, v%d" % (V_NMC, V_NMC))
        emit_stream([("bar",)] + [("i", it) for it in next_items(0)], [])
        if ALIGN:
            a("s_branch L_loop_" + sfx)
            a.lines.append(".p2align %d" % ALIGN)
            for _ in range(APAD):
                a("s_nop 0")
        a.label("L_loop_" + sfx)
        a("; ALIGN8_BEGIN")
        emit_stream(body(0), nfr(0))
        a("s_cmp_eq_u32 s%d, s%d" % (S_J, S_NF))
        a("s_cbranch_scc1 L_tail1_" + sfx)
        emit_stream(body(1), nfr(1))
        a("s_cmp_lg_u32 s%d, s%d" % (S_J, S_NF))
        a("s_cbranch_scc1 L_loop_" + sfx)
        a("; ALIGN8_END")
        t0, s0 = tail(0)
        t1, s1 = tail(1)
        emit_stream(t0, nfr(0), True)
        a.label("L_tail1_" + sfx)
        emit_stream(t1, nfr(1), True)
        emit_stream(s0, [], True)
        emit_stream(s1, [], True)

    a("s_cmp_lg_u32 s%d, 0" % S_NP)
    a("s_cbranch_scc1 L_duty_path")
    compute_path(False)
    a.label("L_duty_path")
    compute_path(True)

    a.label("L_epi")
    stamp(5)
    a("s_add_u32 s%d, s%d, s%d" % (S_TMP, S_SLOT, S_SCR))
    a("s_sub_u32 s%d, s%d, %d" % (S_TMP2, S_TMP, RING))
    a("s_cselect_b32 s%d, s%d, s%d" % (S_TMP, S_TMP, S_TMP2))
    a("v_mov_b32 v%d, v%d" % (V_T[0], V_L))
    q, hh = V_T[1], V_T[2]
    a("v_exp_f32 v%d, v%d" % (V_T[5], V_NMC))
    a("v_cvt_f32_i32 v%d, s%d" % (V_T[6], S_CORR))
    a("v_permlane32_swap_b32 v%d, v%d" % (V_T[0], V_L))
    a("v_and_b32 v%d, 31, v%d" % (q, V_LANE))
    a("v_lshrrev_b32 v%d, 5, v%d" % (hh, V_LANE))
    a("v_add_f32 v%d, v%d, v%d" % (V_L, V_L, V_T[0]))
    a("v_lshlrev_b32 v%d, 7, v%d" % (V_T[3], q))
    a("v_min_f32 v%d, 4.0, v%d" % (V_T[5], V_T[5]))
    a("v_and_b32 v%d, 7, v%d" % (q, q))
    a("v_fma_f32 v%d, v%d, v%d, v%d" % (V_L, V_T[5], V_T[6], V_L))
    a("v_lshl_add_u32 v%d, v%d, 4, v%d" % (V_T[3], q, V_T[3]))
    a("v_rcp_f32 v%d, v%d" % (V_L, V_L))
    a("v_lshl_add_u32 v%d, v%d, 3, v%d" % (V_T[3], hh, V_T[3]))
    a("v_add_u32 v%d, s%d, v%d" % (POOL, S_TMP, V_T[3]))
    a("v_mov_b32 v%d, v%d" % (V_M, V_L))
    for c in range(1, 8):
        a("v_xor_b32 v%d, %d, v%d" % (POOL + c, 16 * c, POOL))
    extra = [
        "v_lshlrev_b32 v%d, 4, v%d" % (V_T[4], V_LANE),
        "v_add_u32 v%d, s%d, v%d" % (POOL + 8, S_TMP, V_T[4]),
        "v_lshrrev_b32 v%d, 3, v%d" % (V_T[0], V_LANE),
        "v_and_b32 v%d, 7, v%d" % (V_T[1], V_LANE),
        "v_xor_b32 v%d, v%d, v%d" % (V_T[1], V_T[1], V_T[0]),
        "v_mul_u32_u24 v%d, %d, v%d" % (V_T[0], RS, V_T[0]),
        "v_lshl_add_u32 v%d, v%d, 4, v%d" % (V_T[0], V_T[1], V_T[0]),
        "v_add_u32 v%d, s%d, v%d" % (POOL + 9, S_QOFF, V_T[0])] + [
        "v_add_u32 v%d, %d, v%d" % (POOL + 9 + rg, rg * 8 * RS, POOL + 9) for rg in range(1, 4)]

    def conv(c):
        t, g = divmod(c, 4)
        o = V_O + 16 * t + 4 * g
        d = V_P + 2 * (c % 4)
        if PKMUL:
            a("v_pk_mul_f32 %s, %s, %s" % (vr(o, 2), vr(o, 2), vr(V_L, 2)))
            a("v_pk_mul_f32 %s, %s, %s" % (vr(o + 2, 2), vr(o + 2, 2), vr(V_L, 2)))
        else:
            for i in range(4):
                a("v_mul_f32 v%d, v%d, v%d" % (o + i, o + i, V_L))
        a("v_cvt_pk_bf16_f32 v%d, v%d, v%d" % (d, o, o + 1))
        a("v_cvt_pk_bf16_f32 v%d, v%d, v%d" % (d + 1, o + 2, o + 3))
        a("ds_write_b64 v%d, %s offset:%d" % (POOL + (c & 7), vr(d, 2), (c >> 3) * 4096))

    RB = V_S[0]
    for lc in range(3):
        for c in range(8 * lc, 8 * lc + 8):
            conv(c)
            if lc == 0 and extra:
                a(extra.pop(0))
                if extra:
                    a(extra.pop(0))
            if lc > 0 and c == 8 * lc + 2:
                for rg in range(4):
                    a("s_waitcnt lgkmcnt(%d)" % (3 + 3 - rg))
                    a("buffer_store_dwordx4 %s, v%d, %s, 0 offen offset:%d %s" % (
                        vr(RB + 16 * ((lc - 1) & 1) + 4 * rg, 4), POOL + 9 + rg, sr(SRD_O, 4), (lc - 1) * 128, stf))
        for rg in range(4):
            a("ds_read_b128 %s, v%d offset:%d" % (vr(RB + 16 * (lc & 1) + 4 * rg, 4), POOL + 8, lc * 4096 + rg * 1024))
    stamp(6)
    for rg in range(4):
        a("s_waitcnt lgkmcnt(%d)" % (3 - rg))
        a("buffer_store_dwordx4 %s, v%d, %s, 0 offen offset:%d %s" % (
            vr(RB + 4 * rg, 4), POOL + 9 + rg, sr(SRD_O, 4), 2 * 128, stf))
    stamp_flush()
    a("s_endpgm")

    for stub, target, back in stubs:
        a.label(stub)
        a("s_call_b64 %s, %s" % (sr(S_RET, 2), target))
        a("s_branch %s" % back)
    a.label("L_dutyld")
    load_body(3)
    a("s_setpc_b64 %s" % sr(S_RET, 2))
    def mask_code(S):
        a("v_lshrrev_b32 v%d, 5, v%d" % (V_T[1], V_LANE))
        a("v_lshlrev_b32 v%d, 2, v%d" % (V_T[1], V_T[1]))
        a("v_mov_b32 v%d, 0xff800000" % V_T[0])
        a("s_mov_b32 s%d, 0" % S_CORR)
        for g in range(4):
            for i in range(4):
                a("s_sub_u32 s%d, s%d, %d" % (S_TMP2, S_NVAL, 8 * g + i))
                a("v_cmp_gt_i32 vcc, s%d, v%d" % (S_TMP2, V_T[1]))
                a("s_nop 1")
                a("v_cndmask_b32 v%d, v%d, v%d, vcc" % (S + 4 * g + i, V_T[0], S + 4 * g + i))

    for par in range(2):
        S = V_S[par]
        a.label("L_mask_%d" % par)
        a("s_cmp_eq_u32 s%d, 32" % S_NVAL)
        a("s_cbranch_scc1 L_mask_ret")
        a("s_cmp_gt_u32 s%d, 16" % S_NVAL)
        a("s_cbranch_scc1 L_mask_full_%d" % par)
        a("v_cmp_nge_f32 vcc, 2.0, v%d" % V_NMC)
        a("s_cbranch_vccnz L_mask_full_%d" % par)
        a("s_sub_u32 s%d, s%d, 16" % (S_CORR, S_NVAL))
        a("s_setpc_b64 %s" % sr(S_RET, 2))
        a.label("L_mask_full_%d" % par)
        a("s_nop 3")
        mask_code(S)
        a("s_setpc_b64 %s" % sr(S_RET, 2))
    a.label("L_mask_ret")
    a("s_setpc_b64 %s" % sr(S_RET, 2))
    a.label("L_rescale")
    mx, t2 = V_T[0], V_T[1]
    a("v_max_f32 v%d, v%d, v%d" % (mx, mx, V_M))
    a("v_sub_f32 v%d, v%d, v%d" % (t2, V_M, mx))
    a("v_mul_f32 v%d, s%d, v%d" % (t2, S_C, t2))
    a("v_exp_f32 v%d, v%d" % (t2, t2))
    a("v_mov_b32 v%d, v%d" % (V_M, mx))
    a("v_mul_f32 v%d, s%d, v%d" % (V_NMC, S_C, mx))
    a("v_sub_f32 v%d, 0, v%d" % (V_NMC, V_NMC))
    a("v_mul_f32 v%d, v%d, v%d" % (V_L, V_L, t2))
    for i in range(96):
        a("v_mul_f32 v%d, v%d, v%d" % (V_O + i, V_O + i, t2))
    a("s_setpc_b64 %s" % sr(S_RET2, 2))
    for par in range(2):
        for mode in range(3):
            S = V_S[par]
            a.label("L_slow_%d_%d" % (par, mode))
            a("s_nop 15")
            if mode == 0:
                mask_code(S)
            block_max(S, mx, t2)
            a("s_call_b64 %s, L_rescale" % sr(S_RET2, 2))
            first = True
            for hf in ([0, 1] if mode == 2 else [mode]):
                for k in range(8):
                    a("v_fma_f32 v%d, v%d, s%d, v%d" % (V_T[k], S + 8 * hf + k, S_C, V_NMC))
                for k in range(8):
                    a("v_exp_f32 v%d, v%d" % (V_T[k], V_T[k]))
                a("s_nop 0")
                for p in range(4):
                    a("v_cvt_pk_bf16_f32 v%d, v%d, v%d" % (V_P + 4 * hf + p, V_T[2 * p], V_T[2 * p + 1]))
                for k in range(8):
                    if first:
                        a("v_mov_b32 v%d, v%d" % (V_BS, V_T[k]))
                        first = False
                    else:
                        a("v_add_f32 v%d, v%d, v%d" % (V_BS, V_BS, V_T[k]))
            a("s_setpc_b64 %s" % sr(S_RET, 2))
    a.lines.append(".p2align 6")
    a.lines.append(".type L_table,@object")
    a.label("L_table")
    for d in TABLE:
        a(".long " + ", ".join("0x%x" % x for x in d))
    a.lines.append(".size L_table, %d" % (64 * len(TABLE)))
    a.label("L_codeend")

    hdr = open("cdna_kernels/%s.s.ref" % NAME).read().split("\n")
    out = []
    for ln in hdr:
        if ln.startswith("; @launch"):
            out.append("; @launch grid=(256,1,1) block=(512,1,1) lds=%d" % LDS_TOTAL)
        elif ln.startswith(";"):
            out.append(ln)
        else:
            break
    out += [
        '.amdgcn_target "amdgcn-amd-amdhsa--gfx950"',
        ".text",
        ".globl %s_kernel" % NAME,
        ".p2align 8",
        ".type %s_kernel,@function" % NAME,
    ]
    out += a.lines
    out += [
        '.section .rodata,"a"',
        ".p2align 6",
        ".amdhsa_kernel %s_kernel" % NAME,
        "  .amdhsa_next_free_vgpr 256",
        "  .amdhsa_next_free_sgpr 96",
        "  .amdhsa_accum_offset 256",
        "  .amdhsa_group_segment_fixed_size 0",
        "  .amdhsa_kernarg_size 56",
        "  .amdhsa_user_sgpr_count 2",
        "  .amdhsa_user_sgpr_kernarg_segment_ptr 1",
        "  .amdhsa_system_sgpr_workgroup_id_x 1",
        ".end_amdhsa_kernel",
        "",
    ]
    text = "\n".join(out)
    if A8:
        import align8
        text = align8.process(text)
    return text


def parse_plan(s):
    out = []
    for (seq, parts, _, _, _), x in zip(DEFAULT_PLAN, s.split(",")):
        qg, npre, thr = x.split(".")
        out.append((seq, parts, int(qg), int(npre), int(thr)))
    return out


if __name__ == "__main__":
    dst = sys.argv[1] if len(sys.argv) > 1 and not sys.argv[1].startswith("--") else "cdna_kernels/%s.s" % NAME

    def opt(n, d):
        for x in sys.argv:
            if x.startswith("--" + n + "="):
                return x.split("=", 1)[1].replace("+", " ")
        return d
    plan = parse_plan(opt("plan", "")) if opt("plan", "") else None
    open(dst, "w").write(gen(stamps=(2 if "--dbg" in sys.argv else 1 if "--stamps" in sys.argv else 0), qf=opt("qf", ""), kvf=opt("kvf", ""),
                             stf=opt("stf", ""), BG=int(opt("bg", "14")), rot="--rot" in sys.argv, abl=opt("abl", ""),
                             plan=plan, SM0=int(opt("sm0", "14")), SM1=int(opt("sm1", "35")),
                             RAMP=int(opt("ramp", "2")), NPF=int(opt("npf", "2")),
                             PFWAIT=int(opt("pfwait", "1")), RAMPD=int(opt("rampd", "2")),
                             pfspec=([] if not opt("pf", "") else default_pf(*[int(x) for x in opt("pf", "4.2.3").split(".")])),
                             XC=int(opt("xc", "0")), XM=int(opt("xm", "0")), XMS=int(opt("xms", "2097152")), XMP=int(opt("xmp", "48")), CPF=int(opt("cpf", "1")), EARLY=int(opt("early", "0")), PKMUL=int(opt("pkmul", "1")),
                             ALIGN=int(opt("align", "6")), APAD=int(opt("apad", "0")), A8=int(opt("a8", "1"))))
    print("wrote", dst)
```
